```python
import torch

def _softmax(x, axis=-1):
    return torch.softmax(x, dim=axis)

def _gelu(x):
    return torch.nn.functional.gelu(x, approximate='tanh')

def _silu(x):
    return torch.nn.functional.silu(x)

def _sigmoid(x):
    return torch.sigmoid(x)

def _layernorm(x, axis=-1, eps=1e-05):
    m = x.mean(dim=axis, keepdim=True)
    v = x.var(dim=axis, keepdim=True, unbiased=False)
    return (x - m) / torch.sqrt(v + eps)

def _scatter_add(tgt, idx, src, axis=0):
    return tgt.clone().index_add_(axis, idx, src)

def _segment_sum(src, seg, n):
    out = torch.zeros((n,) + src.shape[1:], dtype=src.dtype)
    return out.index_add_(0, seg, src)

def _pad(x, pw):
    flat = tuple((v for pair in reversed(pw) for v in pair))
    return torch.nn.functional.pad(x, flat)
kernel_name = 'adaLN_cond__gqa_block_cached__moe_arch_mod__prompt'

def setup_inputs():

    _w = lambda a: (lambda t: t.to(torch.bfloat16) if t.is_floating_point() else t)(torch.as_tensor(a))

    def _A_setup():
        B, Sq, D = (1, 2048, 576)
        Hq, Hkv, Sk, Dh = (32, 16, 2048, 128)
        assert Hq % Hkv == 0, (Hq, Hkv)
        return {'x': _w((lambda *s: torch.randn(*s, dtype=torch.bfloat16) * 0.1)(B, Sq, D)), 'k_cache': _w((lambda *s: torch.randn(*s, dtype=torch.bfloat16) * 0.8)(B, Hkv, Sk, Dh)), 'v_cache': _w((lambda *s: torch.randn(*s, dtype=torch.bfloat16) * 0.8)(B, Hkv, Sk, Dh)), 'wq': _w((lambda *s: torch.randn(*s, dtype=torch.bfloat16) * 0.8)(D, Hq * Dh) * D ** (-0.5)), 'wo': _w((lambda *s: torch.randn(*s, dtype=torch.bfloat16) * 0.8)(Hq * Dh, D) * (Hq * Dh) ** (-0.5))}
    _A_in = _A_setup()

    def _B_setup():
        B, S, D, F, C = (1, 2048, 576, 4608, 2)
        return {'x': _w((lambda *s: torch.randn(*s, dtype=torch.bfloat16) * 0.1)(B, S, D)), 'w_r': _w((lambda *s: torch.randn(*s, dtype=torch.bfloat16) * 3.2)(D)), 'w_gate': _w((lambda *s: torch.randn(*s, dtype=torch.bfloat16) * 0.2)(D, F)), 'w_up': _w((lambda *s: torch.randn(*s, dtype=torch.bfloat16) * 0.2)(D, F)), 'w_down': _w((lambda *s: torch.randn(*s, dtype=torch.bfloat16) * 0.2)(F, D))}
    _B_in = _B_setup()
    return {'A_x': _A_in['x'], 'A_k_cache': _A_in['k_cache'], 'A_v_cache': _A_in['v_cache'], 'A_wq': _A_in['wq'], 'A_wo': _A_in['wo'], 'B_x': _B_in['x'], 'B_w_r': _B_in['w_r'], 'B_w_gate': _B_in['w_gate'], 'B_w_up': _B_in['w_up'], 'B_w_down': _B_in['w_down'], 'c': _w((lambda *s: torch.randn(*s, dtype=torch.bfloat16) * 0.4)(1, 576) * 8.0), 'w_mod': _w((lambda *s: torch.randn(*s, dtype=torch.bfloat16) * 0.4)(576, 6 * 576) * 576 ** (-0.5) * 8.0)}

def reference(A_x, A_k_cache, A_v_cache, A_wq, A_wo, B_x, B_w_r, B_w_gate, B_w_up, B_w_down, c, w_mod):

    def _A_ref(x, k_cache, v_cache, wq, wo):
        B, Sq, D = x.shape
        Hq, Dh = (32, 128)
        Hkv = k_cache.shape[1]
        rep = Hq // Hkv
        q = (lambda x, *d: x.permute(*d))((x @ wq).reshape(B, Sq, Hq, Dh), 0, 2, 1, 3)
        k = (lambda x, n, axis: torch.repeat_interleave(x, n, dim=axis))(k_cache, rep, axis=1)
        v = (lambda x, n, axis: torch.repeat_interleave(x, n, dim=axis))(v_cache, rep, axis=1)
        scores = torch.einsum('bhqd,bhkd->bhqk', q, k) * Dh ** (-0.5)
        p = _softmax(scores, axis=-1)
        o = torch.einsum('bhqk,bhkd->bhqd', p, v)
        return (lambda x, *d: x.permute(*d))(o, 0, 2, 1, 3).reshape(B, Sq, Hq * Dh) @ wo

    def _B_ref(x, w_r, w_gate, w_up, w_down):
        B, S, D = x.shape
        C = 2
        r = x @ w_r
        idx = torch.argsort(-r, axis=-1)[:, :C]
        idx_e = (lambda x, n, axis: torch.repeat_interleave(x, n, dim=axis))(idx.reshape(B, C, 1), D, axis=2)
        x_sel = (lambda x, i, axis: torch.take_along_dim(x, i, dim=axis))(x, idx_e, axis=1)
        g = _silu(x_sel @ w_gate)
        u = x_sel @ w_up
        y = g * u @ w_down
        r_sel = _sigmoid((lambda x, i, axis: torch.take_along_dim(x, i, dim=axis))(r, idx, axis=1))
        y = y * r_sel.reshape(B, C, 1)
        b_off = (torch.arange(B) * S).reshape(B, 1)
        flat_idx = (idx + b_off).reshape(B * C)
        zero = (x * 0.0).reshape(B * S, D)
        upd = _scatter_add(zero, flat_idx, y.reshape(B * C, D), axis=0)
        return x + upd.reshape(B, S, D)
    x = A_x
    mod = (_silu(c) @ w_mod).reshape(c.shape[0], 6, 1, -1)
    sa, ca, ga, sb, cb, gb = (mod[:, 0].clone(), mod[:, 1].clone(), mod[:, 2].clone(), mod[:, 3].clone(), mod[:, 4].clone(), mod[:, 5].clone())
    h = _layernorm(x, axis=-1) * (1 + ca) + sa
    x = x + ga * _A_ref(h, A_k_cache, A_v_cache, A_wq, A_wo)
    h = _layernorm(x, axis=-1) * (1 + cb) + sb
    x = x + gb * _B_ref(h, B_w_r, B_w_gate, B_w_up, B_w_down)
    return x
```

```python
import re, sys, subprocess, tempfile
from dsl import *
from sched import Stream
import tail, head

M16 = 'v_mfma_f32_16x16x32_bf16'
KAD = 8
TA = (12, 20, 28)
DK, DV, DQ, DO = 36, 40, 42, 46
IDX, HV, ONES, STV = 50, 51, 52, 56
RL = 58
Q = 64
ACC = 128
P = 128
NEGM = 192
S = 208
TMP = 216
OB = 128
OACC = 192
PK = 224
O = 0
HF = 0
AF = (208, 160)
VF = 160
L = 192
KF = 208
sK, sV, sW, sCNT, sWQ, sWO, sH, sPART, sPASS, sT = 40, 41, 42, 43, 44, 45, 46, 47, 48, 49
SRD_K, SRD_V, SRD_Q, SRD_O, SRD_H, SRD_P, SRD_C = 8, 12, 16, 20, 24, 28, 32
SRD_T, sTCH, sTCH2, TV, TV2 = (32, 80, 84), 39, 38, 57, 62
sFG, sFD, sF = 58, 59, 57
FV, FV2, FW = 254, 255, 51
sWOa, sWOb, sPD, sPR, sOX, sXF, sSAME = 7, 46, 56, 93, 55, 54, 53
sTO, sFM = 52, 6
sAR, AD, AV = 53, 248, 232
SRD_M, sMW = 16, 44
MC, MW, MR, MU, MA = 2, 7, 240, 244, 224
XV, XID = 252, 253
OAC, BUF = 64, 64
sH1 = 43
SRD_D, sEP, sTAG = 88, 94, 95
CNT = 63
QSCALE = 0x3e0293ee
THR = 0x63800000
MOFF = 0xc1c00000
FLAG_LDS = 131072


def tr(dst, base, db, off):
    w = base >> 16
    return f"ds_read_b64_tr_b16 {ar(dst, 2)}, v{TA[w] + db} offset:{(base & 0xffff) + off}"


def dma(voff, srd, soff, p):
    o = f" offset:{1024 * p}" if p else ""
    if srd in (SRD_K, SRD_V) and OPT['kv']:
        o += ' ' + OPT['kv']
    return f"buffer_load_dwordx4 v{voff}, {sr(srd, 4)}, s{soff} offen{o} lds"


def m0(base):
    return f"s_add_u32 m0, s{sW}, {base}"


def tile_ops(kind, base, tag, soff_expr=None):
    ops = []
    for p in range(4):
        pre = []
        if p == 0:
            if soff_expr:
                pre.append(soff_expr)
            pre.append(m0(base))
        if kind == 'K':
            t = dma(DK + p, SRD_K, sK, p)
        elif kind == 'V':
            t = dma(DV + (p & 1), SRD_V, sV, p)
        elif kind == 'Q':
            t = dma(DQ + p, SRD_Q, sT, p)
        else:
            t = dma(DO + p, SRD_O, sT, p)
        post = []
        if p == 3 and kind == 'K':
            post.append(f"s_add_u32 s{sK}, s{sK}, 16384")
        if p == 3 and kind == 'V':
            post.append(f"s_add_u32 s{sV}, s{sV}, 16384")
        ops.append((pre, t, tag, post))
    return ops


def k_tile(k):
    return tile_ops('K', (k % 4) * 16384, f'K{k}')


def v_tile(k):
    return tile_ops('V', 65536 + (k % 4) * 16384, f'V{k}')


def qreg(c):
    return ((c + 1) % 5) * 32768


def wq_tile(c, hh):
    return tile_ops('Q', qreg(c) + 16384 * hh, f'WQ{c}', f"s_add_u32 s{sT}, s{sWQ}, {c * 64 * 8192 + 256 * hh}")


def oreg(c):
    return (0, 2, 1, 3)[c % 4] * 32768


POS = [(0, None), (0, 0), (0, 1), (1, 0), (1, 1), (0, 2), (1, 2), (0, 3), (1, 3)]


def wo_tile(p, tau):
    src, c = POS[p]
    base, col = (sWO, 1024) if c is None else ((sWOa, sWOb)[src], 256 * c)
    return tile_ops('O', oreg(p) + 16384 * tau, f'WO{p}', f"s_add_u32 s{sT}, s{base}, {64 * tau * 1152 + col}")


def h_loads(c):
    ops = []
    for tt in range(2):
        for ks in range(2):
            ops.append(([], f"buffer_load_dwordx4 {ar(HF + 16 * c + 8 * ks + 4 * tt, 4)}, v{HV}, {sr(SRD_H, 4)}, s{sH1 if tt else sH} offen offset:{128 * (2 * c + ks)} sc1", f'H{c}', []))
    return ops


def emit_op(s, op):
    pre, t, tag, post = op
    for x in pre:
        s(x)
    s(t, tag)
    for x in post:
        s(x)


class Gaps:
    def __init__(self):
        self.m = []

    def add(self, text):
        self.m.append(dict(m=text, salu=[], ds=[], vm=[], valu=[], tail=[]))
        return len(self.m) - 1

    def put(self, i, kind, text, tag=None):
        self.m[i][kind].append((text, tag))

    def put_op(self, i, op):
        pre, t, tag, post = op
        for j, x in enumerate(pre):
            self.put(i - len(pre) + j, 'salu', x)
        self.put(i, 'vm', t, tag)
        for x in post:
            self.put(min(i + 1, len(self.m) - 1), 'salu' if i + 1 < len(self.m) else 'tail', x)

    def emit(self, s):
        for i, g in enumerate(self.m[:-1]):
            if OPT['clr'] and g['m'] and g['vm'] and g['ds']:
                self.m[i + 1]['ds'] = g['ds'] + self.m[i + 1]['ds']
                g['ds'] = []
        for g in self.m:
            if g['m']:
                s(g['m'])
            for kind in ('salu', 'ds', 'vm', 'valu', 'tail'):
                for text, tag in g[kind]:
                    s(text, tag)


def stamp(s, diag, i, fine=False):
    if diag and ((OPT['fine'] != 0) == fine or i in (0, 9)):
        s(f"s_memtime {sr(60 + 2 * i, 2)}")


def setup(s):
    s(f"s_lshl_b32 s{sW}, s3, 12")
    s("v_lshrrev_b32 v2, 4, v1")
    s("v_and_b32 v3, 15, v1")
    s("v_lshrrev_b32 v5, 1, v3")
    s("v_mul_u32_u24 v5, 2304, v5")
    s("v_lshl_add_u32 v5, v2, 5, v5")
    s("v_and_b32 v6, 1, v3")
    s(f"v_lshl_add_u32 v{HV}, v6, 4, v5")
    s("s_lshl_b32 s6, s5, 2")
    s("s_add_u32 s6, s6, s3")
    s(f"s_mul_i32 s{sH}, s6, 36864")
    s(f"s_add_u32 s{sH}, s{sH}, {WS_H}")
    s(f"s_add_u32 s{sH1}, s{sH}, 18432")
    s(f"s_mul_i32 s{sWO}, s4, {256 * 1152}")
    s("s_lshl_b32 s7, s3, 4")
    s("v_add_u32 v4, s7, v2")
    s("v_lshlrev_b32 v5, 1, v2")
    s("v_xor_b32 v5, v5, v3")
    s("v_xor_b32 v6, 8, v5")
    s("v_lshlrev_b32 v7, 13, v4")
    s(f"v_lshl_add_u32 v{DQ}, v5, 4, v7")
    s(f"v_lshl_add_u32 v{DQ + 1}, v6, 4, v7")
    s(f"v_add_u32 v{DQ + 2}, {2 * (32768 - 1024)}, v{DQ}")
    s(f"v_add_u32 v{DQ + 3}, {3 * (32768 - 1024)}, v{DQ + 1}")
    s(f"v_add_u32 v{DQ + 1}, {32768 - 1024}, v{DQ + 1}")
    s("s_lshl_b32 s7, s4, 19")
    s(f"s_add_u32 s{SRD_K}, s52, s7")
    s(f"s_addc_u32 s{SRD_K + 1}, s53, 0")
    s(f"s_mov_b32 s{SRD_K + 2}, 524288")
    s(f"s_mov_b32 s{SRD_K + 3}, 0x20000")
    s(f"s_add_u32 s{SRD_V}, s54, s7")
    s(f"s_addc_u32 s{SRD_V + 1}, s55, 0")
    s(f"s_mov_b32 s{SRD_V + 2}, 524288")
    s(f"s_mov_b32 s{SRD_V + 3}, 0x20000")
    a = Asm()
    a.srd(SRD_P, 50, PART_BYTES, WS_PART)
    s(a.text())
    s("v_lshlrev_b32 v7, 8, v4")
    s(f"v_lshl_add_u32 v{DV}, v5, 4, v7")
    s(f"v_lshl_add_u32 v{DV + 1}, v6, 4, v7")
    s(f"v_xor_b32 v{TMP + 8}, v3, v2")
    s(f"v_lshl_add_u32 v{DK}, v{TMP + 8}, 4, v7")
    for p in range(1, 4):
        s(f"v_xor_b32 v{DK + p}, {64 * p}, v{DK}")
    for e, ch in ((0, 5), (1, 6)):
        s(f"v_lshrrev_b32 v7, 3, v{ch}")
        s("v_lshl_add_u32 v7, v7, 7, v4")
        s("v_mul_u32_u24 v7, 1152, v7")
        s(f"v_and_b32 v{TMP + 9}, 7, v{ch}")
        s(f"v_lshl_add_u32 v{DO + e}, v{TMP + 9}, 4, v7")
    s(f"v_add_u32 v{DO + 2}, {2 * (4608 - 1024)}, v{DO}")
    s(f"v_add_u32 v{DO + 3}, {3 * (4608 - 1024)}, v{DO + 1}")
    s(f"v_add_u32 v{DO + 1}, {4608 - 1024}, v{DO + 1}")
    s("v_lshlrev_b32 v7, 8, v3")
    s(f"v_lshl_add_u32 v{KAD}, v{TMP + 8}, 4, v7")
    for k in range(1, 4):
        s(f"v_xor_b32 v{KAD + k}, {64 * k}, v{KAD}")
    s("v_lshrrev_b32 v5, 2, v1")
    s("v_and_b32 v6, 7, v5")
    s("v_lshlrev_b32 v6, 5, v6")
    s("v_lshl_add_u32 v6, v5, 8, v6")
    s("v_and_b32 v7, 3, v1")
    s(f"v_lshl_add_u32 v{TA[0]}, v7, 3, v6")
    for db in range(1, 8):
        s(f"v_xor_b32 v{TA[0] + db}, {32 * db}, v{TA[0]}")
    for w in (1, 2):
        for db in range(8):
            s(f"v_add_u32 v{TA[w] + db}, {65536 * w}, v{TA[0] + db}")
    if OPT['l2']:
        s("v_cmp_gt_u32 s[36:37], 2, v3")
        s("v_mov_b32 v5, 0x3f803f80")
        s("s_nop 0")
        for i in range(4):
            s(f"v_cndmask_b32 v{ONES + i}, 0, v5, s[36:37]")
    else:
        for i in range(4):
            s(f"v_mov_b32 v{ONES + i}, 0x3f803f80")
    s("v_and_b32 v5, 1, v1")
    s("v_mul_u32_u24 v5, 0xaaaa, v5")
    s("v_add_u32 v5, 0x4444, v5")
    s(f"v_lshl_add_u32 v{IDX}, v5, 16, v5")
    s("v_lshrrev_b32 v5, 1, v3")
    s(f"v_mul_u32_u24 v5, {PAIR}, v5")
    s("v_lshl_add_u32 v5, v2, 5, v5")
    s("v_and_b32 v6, 1, v3")
    s(f"v_lshl_add_u32 v{STV}, v6, 4, v5")
    s(f"s_mul_i32 s{sPART}, s6, {16 * PAIR}")
    a = Asm()
    a.srd(SRD_T[0], 82, SZ['wu'])
    a.srd(SRD_T[1], 80, SZ['wg'])
    a.srd(SRD_T[2], 84, SZ['wd'])
    s(a.text())
    s("s_lshr_b32 s7, s2, 3")
    s("s_mul_i32 s7, s7, 18")
    s("s_add_u32 s7, s7, s3")
    s("s_and_b32 s36, s2, 7")
    s("s_mul_i32 s37, s36, 576")
    s("s_add_u32 s37, s37, s7")
    s("s_mul_i32 s37, s37, 1152")
    s("s_mul_i32 s7, s7, 9216")
    s("s_mul_i32 s36, s36, 1152")
    s("s_add_u32 s7, s7, s36")
    s("v_min_u32 v5, 17, v1")
    s(f"v_lshl_add_u32 v{TV}, v5, 6, s7")
    s(f"v_lshl_add_u32 v{TV2}, v5, 6, s37")
    s(f"s_mov_b32 s{sK}, 0")
    s(f"s_mov_b32 s{sV}, 0")
    s(f"s_mov_b32 s{sPASS}, 0")


def qproj(s, diag):
    def rd(n, r):
        c, d = divmod(n, 16)
        ks, u = r >> 1, r & 1
        return tr(VF + 8 * (n % 4) + 4 * ks + 2 * u, qreg(c) + 16384 * (d >> 3), d & 7, 8192 * ks + 4096 * u)
    if OPT['fine'] == 5:
        s("s_memtime s[60:61]")
    s("@vm WQ0")
    s("s_barrier")
    for n in range(3):
        for r in range(4):
            s(rd(n, r))
    for op in h_loads(1):
        emit_op(s, op)
    G = Gaps()
    for n in range(144):
        c, d = divmod(n, 16)
        for tt in range(2):
            for ks in range(2):
                acc = vr(ACC + 8 * d + 4 * tt, 4)
                cin = '0' if (c == 0 and ks == 0) else acc
                i = G.add(f"{M16} {acc}, {ar(VF + 8 * (n % 4) + 4 * ks, 4)}, {ar(HF + 16 * c + 8 * ks + 4 * tt, 4)}, {cin}")
                if n + 3 < 144:
                    G.put(i, 'ds', rd(n + 3, 2 * tt + ks))
    zero = [O + i for i in range(112)] + [L + i for i in range(16)] + [O + i for i in range(112, 128)]
    last = -9
    for c in range(9):
        b = 64 * c
        if c < 8:
            G.put(b + 51, 'tail', f"@vm WQ{c + 1}")
            G.put(b + 51, 'tail', "s_barrier")
        start = -9
        me = sys.modules[__name__]
        tch = head.touch_ops(me)
        if c == 0:
            start = 3
            ops = h_loads(2) + (tch if OPT['kt'] == 0 else tch[:1])
        elif c <= 6:
            start = max(-9, OPT['qs'] - OPT['qd'] * (c - 1))
            ops = wq_tile(c + 2, 0) + wq_tile(c + 2, 1) + h_loads(c + 2)
            if c == OPT['kt']:
                ops += tch[1:]
        elif c == 7:
            ops = k_tile(0) + k_tile(1) + head.arm_ops(me)
        else:
            ops = k_tile(2) + v_tile(0) + v_tile(1)
        for j, op in enumerate(ops):
            assert b + start + 4 * j > last + 2
            G.put_op(b + start + 4 * j, op)
        last = b + start + 4 * (len(ops) - 1)
    free = [i for i in range(64 * 5, 64 * 9) if not G.m[i]['vm'] and not G.m[i - 1]['vm']]
    late = [i for i in free if i >= 64 * 8]
    mid = [i for i in free if 64 * 7 <= i < 64 * 8]
    early = [i for i in free if 64 * 6 <= i < 64 * 7]
    first = [i for i in free if i < 64 * 6]
    zl = list(zero)
    for slots, ok in ((first, lambda r: r < 80 or r >= L), (early, lambda r: r < 96 or r >= L), (mid, lambda r: r < 112 or r >= L), (late, lambda r: True)):
        for i in slots:
            cand = [r for r in zl if ok(r)]
            if cand:
                zl.remove(cand[0]); G.put(i, 'valu', f"v_accvgpr_write_b32 a{cand[0]}, 0")
    for r in zl:
        G.put(575, 'valu', f"v_accvgpr_write_b32 a{r}, 0")
    if OPT['fine'] == 5:
        for c in range(8):
            G.put(64 * c + 1, 'tail', f"s_memtime {sr(62 + 2 * c, 2)}")
        G.put(575, 'tail', "s_memtime s[78:79]")
    G.put(64 * 8 + 55, 'tail', "@vm K0")
    G.put(64 * 8 + 55, 'tail', "s_barrier")
    for k in range(4):
        G.put(64 * 8 + 56 + k, 'ds', kread(0, 0, k))
    G.put(64 * 8 + 60, 'ds', kread(0, 1, 0))
    G.put(64 * 8 + 62, 'salu', f"s_load_dwordx2 {sr(SRD_M, 2)}, s[0:1], {KA['wmod']}")
    G.emit(s)


def kread(k, kb, sidx):
    return f"ds_read_b128 {ar(KF + 16 * (kb & 1) + 4 * sidx, 4)}, v{KAD + sidx} offset:{(k % 4) * 16384 + 4096 * kb}"


def qfinish(s):
    s(f"s_mov_b32 s36, {QSCALE}")
    s(f"s_mov_b32 s37, {QSCALE}")
    for hh in range(2):
        for sx in range(4):
            for tt in range(2):
                q = Q + 16 * (2 * hh + tt) + 4 * sx
                for y in range(2):
                    a0 = ACC + 8 * (8 * hh + 2 * sx + y) + 4 * tt
                    for e in range(2):
                        s(f"v_pk_mul_f32 {vr(a0 + 2 * e, 2)}, {vr(a0 + 2 * e, 2)}, s[36:37]")
                for y in range(2):
                    a0 = ACC + 8 * (8 * hh + 2 * sx + y) + 4 * tt
                    for e in range(2):
                        s(f"v_cvt_pk_bf16_f32 v{q + 2 * y + e}, v{a0 + 2 * e}, v{a0 + 2 * e + 1}")
            for sw in ('v_permlane32_swap_b32', 'v_permlane16_swap_b32'):
                for tt in range(2):
                    q = Q + 16 * (2 * hh + tt) + 4 * sx
                    for e in range(2):
                        s(f"{sw} v{q + e}, v{q + 2 + e}")


def cross_max_to_negm(s, M, off='0'):
    for sw in ('v_permlane16_swap_b32', 'v_permlane32_swap_b32'):
        for qb in range(4):
            s(f"v_mov_b32 v{M + 4 + qb}, v{M + qb}")
        for qb in range(4):
            s(f"{sw} v{M + qb}, v{M + 4 + qb}")
        for qb in range(4):
            s(f"v_max_f32 v{M + qb}, v{M + qb}, v{M + 4 + qb}")
    for qb in range(4):
        for i in range(4):
            s(f"v_sub_f32 v{NEGM + 4 * qb + i}, {off}, v{M + qb}")


def prepass(s):
    s("@lgkm 0")
    for qb in range(4):
        for sx in range(4):
            d = vr(TMP + 4 * qb, 4)
            s(f"{M16} {d}, {ar(KF + 4 * sx, 4)}, {vr(Q + 16 * qb + 4 * sx, 4)}, {'0' if sx == 0 else d}")
    M = TMP + 16
    for qb in range(4):
        t = TMP + 4 * qb
        s(f"v_max3_f32 v{M + qb}, v{t}, v{t + 1}, v{t + 2}")
        s(f"v_max_f32 v{M + qb}, v{M + qb}, v{t + 3}")
    cross_max_to_negm(s, M, MOFF)


def interval_ops(k):
    a = k_tile(k + 2) if k + 2 <= 31 else None
    b = v_tile(k + 1) if k + 1 <= 31 else None
    if k == 30:
        a = wo_tile(0, 0)
    if k == 31:
        a, b = wo_tile(0, 1), wo_tile(1, 0)
    if k == 32:
        a, b = wo_tile(1, 1), wo_tile(2, 0)
    return a + b


def stage(s, k):
    G = Gaps()
    qk, pv = k <= 31, k >= 1
    gi = {}
    for i in range(16):
        kb, qb = i >> 2, i & 3
        for sx in range(4):
            d = vr(S + 4 * (i & 1), 4)
            t = f"{M16} {d}, {ar(KF + 16 * (kb & 1) + 4 * sx, 4)}, {vr(Q + 16 * qb + 4 * sx, 4)}, {vr(NEGM + 4 * qb, 4) if sx == 0 else d}"
            gi[i, sx] = G.add(t if qk else None)
        db = i >> 1
        for x in range(4):
            q2, t = 2 * (i & 1) + (x >> 1), x & 1
            d = ar(O + 16 * db + 4 * q2, 4)
            tx = f"{M16} {d}, {ar(VF + 8 * (db % 4) + 4 * t, 4)}, {vr(P + 32 * ((k - 1) & 1) + 8 * q2 + 4 * t, 4)}, {d}"
            gi[i, 4 + x] = G.add(tx if pv else None)
        lq = {2: 0, 4: 1, 6: 2, 8: 3} if qk else {1: 0, 2: 1, 3: 2, 4: 3}
        if pv and i in lq:
            q2 = lq[i]
            gi[i, 8] = G.add(f"v_smfmac_f32_16x16x64_bf16 {ar(L + 4 * q2, 4)}, {vr(ONES, 4)}, {vr(P + 32 * ((k - 1) & 1) + 8 * q2, 8)}, v{IDX}")
    for i in range(16):
        Gx = 16 * k + i
        T = Gx - 1
        if 0 <= T < 512:
            tk, ti = divmod(T, 16)
            kb, qb = ti >> 2, ti & 3
            sb = S + 4 * (ti & 1)
            for e in range(4):
                G.put(gi[i, e], 'valu', f"v_exp_f32 v{sb + e}, v{sb + e}")
            pd = P + 32 * (tk & 1) + 8 * qb + 2 * kb
            G.put(gi[i, 4], 'valu', f"v_cvt_pk_bf16_f32 v{pd}, v{sb}, v{sb + 1}")
            G.put(gi[i, 6], 'valu', f"v_cvt_pk_bf16_f32 v{pd + 1}, v{sb + 2}, v{sb + 3}")
        B, sx = divmod(Gx + 5, 4)
        if B < 128:
            G.put(gi[i, 6], 'ds', kread(B >> 2, B & 3, sx))
        D, t = divmod(Gx + 3 - 16, 2)
        if 0 <= D < 256:
            vk, db = divmod(D, 8)
            for u in range(2):
                G.put(gi[i, 4 + u], 'ds', tr(VF + 8 * (db % 4) + 4 * t + 2 * u, 65536 + (vk % 4) * 16384, db, 8192 * t + 4096 * u))
        if qk and (pv or i == 15) and i % 2 == 1:
            G.put(gi[i, 7], 'salu', "@lgkm 3")
    if k >= 1:
        for j, op in enumerate(interval_ops(k)):
            if j >= 3:
                place(G, gi, 2 * (j - 3) + 1, op)
    if k <= 31:
        for j, op in enumerate(interval_ops(k + 1)[:3]):
            place(G, gi, 11 + 2 * j, op)
    if 1 <= k <= 28:
        if OPT['x'] & 128:
            pass
        elif k % 4 == 1:
            G.put(gi[2, 2], 'salu', f"s_mov_b32 m0, s{sFM}")
            G.put(gi[2, 7], 'vm', dma(FV, SRD_T[0], sF, 0).replace(' lds', ' ' + OPT['fnt'] + ' lds'), 'T')
            G.put(gi[4, 1], 'salu', f"s_add_u32 s{sFM}, s{sFM}, 4096")
            G.put(gi[4, 2], 'salu', f"s_add_u32 s{sF}, s{sF}, {64 * 9216}")
        elif k % 4:
            d = k % 4 == 3
            G.put(gi[12, 7], 'vm', f"buffer_load_dword v{TMP + k % 4}, v{TV2 if d else TV}, {sr(SRD_T[k % 4 - 1], 4)}, s{sTCH2 if d else sTCH} offen", 'T')
        else:
            G.put(gi[13, 1], 'salu', f"s_sub_u32 s{sTCH}, s{sTCH}, {4 * 9216}")
            G.put(gi[13, 2], 'salu', f"s_sub_u32 s{sTCH2}, s{sTCH2}, {4 * 1152}")
    if k == 0:
        G.put(gi[6, 7], 'salu', f"s_mov_b32 s{sTCH}, {24 * 9216}")
        G.put(gi[6, 7], 'salu', f"s_mov_b32 s{sTCH2}, {24 * 1152}")
    if k == 0:
        G.put(gi[15, 2], 'salu', f"s_mul_i32 s37, s5, 18432")
        G.put(gi[15, 3], 'salu', f"s_add_u32 s37, s37, s{sWO}")
        for x in (f"v_min_u32 v{TMP + 20}, 143, v0", f"v_lshl_add_u32 v{TMP + 20}, v{TMP + 20}, 7, s37",
                  f"v_mul_u32_u24 v{TMP + 19}, 24, v0", f"v_lshrrev_b32 v{TMP + 19}, 8, v{TMP + 19}",
                  f"v_lshl_add_u32 v{TMP + 19}, v{TMP + 19}, 7, s37"):
            G.put(gi[15, 5], 'valu', x)
    if k % 4 == 3 and k <= 28:
        G.put(gi[14, 7], 'vm', f"buffer_load_dword v{TMP + 5}, v{TMP + 19}, {sr(SRD_O, 4)}, 0 offen", 'T')
        G.put(gi[15, 5], 'valu', f"v_add_u32 v{TMP + 19}, {20 * 128}, v{TMP + 19}")
    if k == OPT['wot']:
        G.put(gi[6, 7], 'vm', f"buffer_load_dword v{TMP + 5}, v{TMP + 20}, {sr(SRD_O, 4)}, 0 offen", 'T')
    if k == 0:
        G.put(gi[14, 5], 'valu', f"v_min_u32 v{TMP + 21}, 19, v1")
        G.put(gi[14, 5], 'valu', f"v_lshl_add_u32 v{TMP + 21}, v{TMP + 21}, 7, s36")
        G.put(gi[14, 5], 'valu', f"v_lshl_add_u32 v{TMP + 22}, v1, 7, s36")
        G.put(gi[14, 3], 'salu', f"s_mov_b32 s{sTO}, s{sOX}")
        for x in (f"s_mov_b32 s{sF}, s{sFG}", f"s_lshl_b32 s{sFM}, s3, 10", f"s_add_u32 s{sFM}, s{sFM}, {tail.L_WU}",
                  "s_lshr_b32 s37, s2, 3", f"s_mul_i32 s37, s37, {-14 * 9216}", f"s_add_u32 s37, s37, {448 * 9216}"):
            G.put(gi[13, 5], 'salu', x)
        G.put(gi[14, 7], 'vm', f"buffer_load_dword v{TMP + 1}, v{TV}, {sr(SRD_T[0], 4)}, s37 offen", 'T')
    if OPT['oxt'] & 1 and k % 4 == 0 and 1 <= k <= 28:
        G.put(gi[12, 7], 'vm', f"buffer_load_dword v{TMP}, v{TMP + 21}, {sr(SRD_P, 4)}, s{sTO} offen", 'T')
        G.put(gi[13, 3], 'salu', f"s_add_u32 s{sTO}, s{sTO}, {18 * 128}")
    if OPT['oxt'] & 2 and k in (29, 31):
        G.put(gi[12, 3], 'salu', f"s_add_u32 s37, s{sOX}, {0 if k == 29 else 8192}")
        G.put(gi[12, 7], 'vm', f"buffer_load_dword v{TMP + 23}, v{TMP + 22}, {sr(SRD_P, 4)}, s37 offen", 'T')
    need = []
    if k + 1 <= 31:
        need.append(f'K{k + 1}')
    if k <= 31:
        need.append(f'V{k}')
    if k == 32:
        need.append('WO0')
    if k == 0:
        o, v = ffn_setup()
        for j, x in enumerate(o + v):
            for y in (x if isinstance(x, tuple) else (x,)):
                if j < len(o):
                    G.put(gi[j // 4, j % 4], 'salu', y)
                else:
                    G.put(gi[13, 4], 'valu', y)
    if 29 <= k <= 31:
        for j, i in enumerate((0, 4, 8, 14)):
            n = 4 * (k - 29) + j
            if True:
                pre, t, tag, _ = ffn_load(n)
                G.put(gi[i, 3], 'salu', pre[0])
                G.put(gi[i, 7], 'vm', t, tag)
    if k == 30:
        G.put(gi[0, 5], 'valu', f"v_mov_b32 v{CNT}, 0")
        G.put(gi[2, 7], 'vm', f"buffer_load_dword v{XID}, v{CNT}, {sr(SRD_H, 4)}, s{sXF} offen offset:12 sc1", 'T')
    late_mod(G, gi, k)
    if k == 32:
        lfinish(G, gi)
    G.put(gi[10, 7], 'tail', f"@vm {','.join(need)} force")
    G.put(gi[10, 7], 'tail', "s_barrier")
    if k == 32:
        G.put(gi[11, 6], 'ds', f"ds_read_b128 {vr(TMP + 8, 4)}, v{TMP + 12}")
        for j, op in enumerate(wo_tile(2, 1) + wo_tile(3, 0)):
            i, sl = divmod(j, 2)
            G.put_op(gi[12 + i, 5 + 2 * sl], op)
    G.emit(s)


def place(G, gi, i, op):
    pre, t, tag, post = op
    for j, x in enumerate(pre):
        G.put(gi[i, 1 + j], 'salu', x)
    G.put(gi[i, 7], 'vm', t, tag)
    for x in post:
        G.put(gi[i + 1, 1], 'salu', x)


def lfinish(G, gi):
    ops = []
    for qb in range(4):
        ops.append(f"v_accvgpr_read_b32 v{TMP + 2 * qb}, a{L + 4 * qb}")
        ops.append(f"v_accvgpr_read_b32 v{TMP + 2 * qb + 1}, a{L + 4 * qb + 1}")
    for qb in range(4):
        ops.append(f"v_add_f32 v{RL + qb}, v{TMP + 2 * qb}, v{TMP + 2 * qb + 1}")
    if OPT['l2']:
        for sw in ('v_permlane16_swap_b32', 'v_permlane32_swap_b32'):
            for qb in range(4):
                ops.append(f"v_mov_b32 v{TMP + qb}, v{RL + qb}")
            for qb in range(4):
                ops.append(f"{sw} v{RL + qb}, v{TMP + qb}")
    ops.append(f"v_add_f32 v{TMP}, v{RL}, v{RL + 1}")
    ops.append(f"v_add_f32 v{TMP + 1}, v{RL + 2}, v{RL + 3}")
    ops.append(f"v_add_f32 v{TMP}, v{TMP}, v{TMP + 1}")
    ops.append(f"v_cmp_ngt_f32 vcc, {THR}, v{TMP}")
    for qb in range(4):
        ops.append(f"v_rcp_f32 v{RL + qb}, v{RL + qb}")
    ops.append(f"v_mov_b32 v{TMP + 12}, {FLAG_LDS}")
    ops.append("s_or_b32 s36, vcc_lo, vcc_hi")
    ops.append(f"v_mov_b32 v{TMP + 2}, s36")
    ops.append(f"s_lshl_b32 s37, s3, 2")
    ops.append(f"v_add_u32 v{TMP + 3}, s37, v{TMP + 12}")
    ops.append(f"ds_write_b32 v{TMP + 3}, v{TMP + 2}")
    slots = [gi[i, sl] for i in (6, 7, 8, 9) for sl in ((4, 4, 5, 5, 6, 6, 6, 7, 7, 7) if OPT['l2'] else (4, 5, 6, 6, 7, 7))]
    slots.append(gi[10, 4]); slots.append(gi[10, 4])
    assert len(ops) <= len(slots), (len(ops), len(slots))
    for o, g in zip(ops, slots):
        G.put(g, 'valu', o, 'FLAG')
    G.put(gi[10, 7], 'tail', "@ds FLAG")


def oread(n, r):
    c, nb = divmod(n, 4)
    ks, u = r >> 1, r & 1
    hh, t = ks >> 2, ks & 3
    return tr(AF[n & 1] + 4 * ks + 2 * u, oreg(c) + 16384 * (t >> 1), 4 * hh + nb, 8192 * (t & 1) + 4096 * u)


def normalize(s):
    s(f"v_or3_b32 v{TMP + 8}, v{TMP + 8}, v{TMP + 9}, v{TMP + 10}")
    s(f"v_or_b32 v{TMP + 8}, v{TMP + 8}, v{TMP + 11}")
    s(f"v_readfirstlane_b32 s36, v{TMP + 8}")
    s(f"v_readfirstlane_b32 s38, v{XID}")
    s(f"v_min_u32 v{tail.vF}, 1, v1")
    s(f"v_lshlrev_b32 v{tail.vF}, 31, v{tail.vF}")
    s(f"v_mov_b32 v{tail.vZ}, s{sTAG}")
    s(f"s_getreg_b32 s39, hwreg(HW_REG_XCC_ID, 0, 4)")
    s(f"s_add_u32 s39, s39, s{sTAG}")
    s("s_cmp_eq_u32 s38, s39")
    s(f"s_cselect_b32 s{sSAME}, {0 if OPT['x'] & 4 else 1}, 0")
    for r in range(16):
        s(oread(0, r))
    s("@vm MS")
    s(f"buffer_atomic_add v{MR + 1}, v{MR}, {sr(SRD_D, 4)}, s43 offen sc1")
    s(f"s_andn2_b32 s36, s36, s{sPASS}")
    s("s_cbranch_scc1 Lattn_redo")
    n = 0
    for t in range(4):
        for y in range(2):
            for qb in range(4):
                hh, tt = qb >> 1, qb & 1
                tmp = TMP + 4 * (n % 4); n += 1
                for e in range(4):
                    s(f"v_accvgpr_read_b32 v{tmp + e}, a{O + 16 * (2 * t + y) + 4 * qb + e}")
                for e in range(2):
                    s(f"v_pk_mul_f32 {vr(tmp + 2 * e, 2)}, {vr(tmp + 2 * e, 2)}, {vr((RL + qb) & ~1, 2)} op_sel:[0,{qb & 1}] op_sel_hi:[1,{qb & 1}]")
                d = OB + 32 * tt + 4 * (4 * hh + t) + 2 * y
                for e in range(2):
                    s(f"v_cvt_pk_bf16_f32 v{d + e}, v{tmp + 2 * e}, v{tmp + 2 * e + 1}")
                if y:
                    emit_op(s, o_store(8 * tt + 4 * hh + t))


FP = [('g', i) for i in range(9)] + [('u', 7), ('u', 8), ('d', 0)]


def freg(n):
    return 128 + 4 * n if n < 8 else 240 + 4 * (n - 8)


def wd_dma(i):
    return ([f"s_add_u32 s{sF}, s{sFD}, {i * 4096}", f"s_add_u32 m0, s{sFM}, {tail.L_WD + 4096 * i - tail.L_WU - 7 * 4096}"],
            dma(FV2, SRD_T[2], sF, 0), 'F', [])


def ffn_load(n):
    m, i = FP[n]
    if m == 'd':
        srd_, v, so = SRD_T[2], FV2, f"s{sFD}, {i * 4096}"
    else:
        srd_, v, so = SRD_T[1 if m == 'g' else 0], FV, f"s{sFG}, {i * 64 * 9216}"
    return ([f"s_add_u32 s{sF}, {so}"], f"buffer_load_dwordx4 {ar(freg(n), 4)}, v{v}, {sr(srd_, 4)}, s{sF} offen", 'F', [])


def ffn_write(n):
    m, i = FP[n]
    if m == 'g':
        v, off = FW, 4096 * i
    elif m == 'u':
        v, off = (FW, tail.L_WU - tail.L_WG + 4096 * i) if i < 7 else (FV2, tail.L_WU2 + 4096 * (i - 7))
    else:
        v, off = FV2, tail.L_WD + 4096 * i
    return f"ds_write_b128 v{v}, {ar(freg(n), 4)} offset:{off}"


def mod_block(d, bad):
    return [f"s_lshr_b32 s{d}, s2, 5", f"s_lshl_b32 s{d}, s{d}, 3", f"s_and_b32 s{bad}, s2, 7", f"s_add_u32 s{d}, s{d}, s{bad}",
            f"s_lshl_b32 s{d}, s{d}, 2", f"s_bfe_u32 s{bad}, s2, 0x20003", f"s_add_u32 s{d}, s{d}, s{bad}", f"s_add_u32 s{d}, s{d}, 72",
            (f"s_cmp_lt_u32 s{d}, 216", f"s_cselect_b32 s{bad}, 0, {tail.BIG}")]


def late_mod(G, gi, k):
    def fill(ops, i0, i1, kind='valu'):
        slots = []
        for i in range(i0, i1):
            if kind == 'salu':
                slots += [gi[i, x] for x in (0, 1, 2, 3) if not G.m[gi[i, x]]['salu']]
                continue
            if not G.m[gi[i, 5]]['valu']:
                slots.append(gi[i, 5])
            if i % 2 == 0 and i != 10 and not G.m[gi[i, 7]]['vm']:
                slots += [gi[i, 7]] * 2
        assert len(slots) >= len(ops), (k, len(slots), len(ops))
        for g, x in zip(slots, ops):
            for y in (x if isinstance(x, tuple) else (x,)):
                G.put(g, kind, y)
    t0, t1, t2 = MU, MU + 1, MU + 2
    if 1 <= k <= 28:
        if k % 4 == 1 and not OPT['x'] & 16:
            G.put(gi[14, 7], 'vm', f"buffer_load_dwordx4 {vr(MR, 4)}, v{MW}, {sr(SRD_M, 4)}, s{sMW} offen", 'T')
            G.put(gi[15, 3], 'salu', f"s_add_u32 s{sMW}, s{sMW}, {128 * 6912}")
        if k % 4 == 2 and not OPT['x'] & 32:
            G.put(gi[14, 7], 'vm', f"buffer_store_dwordx4 {vr(AD, 4)}, v{AV}, {sr(SRD_H, 4)}, s{sAR} offen sc1", 'T')
            G.put(gi[15, 3], 'salu', f"s_add_u32 s{sAR}, s{sAR}, 656")
        if k % 4 == 0 and not OPT['x'] & 64:
            ops = []
            for e in range(4):
                a, b = MU + 2 * (e & 1), MU + 2 * (e & 1) + 1
                ops += [f"v_lshlrev_b32 v{a}, 16, v{MR + e}", f"v_and_b32 v{b}, 0xffff0000, v{MR + e}",
                        f"v_fmac_f32 v{MA + 2 * e}, v{MC}, v{a}", f"v_fmac_f32 v{MA + 2 * e + 1}, v{MC}, v{b}"]
            ops += [f"v_mov_b32 v{MC + i}, v{MC + i + 1}" for i in range(4)]
            fill(ops, 0, 16)
    if k == 29:
        ops = [f"v_permlane32_swap_b32 v{MA + e}, v{MA + 4 + e}" for e in range(4)]
        ops += [f"v_add_f32 v{MA + e}, v{MA + e}, v{MA + 4 + e}" for e in range(4)]
        ops += [f"v_and_b32 v{t0}, 1, v1"]
        ops += [f"v_permlane16_swap_b32 v{MA + e}, v{MA + 2 + e}" for e in range(2)]
        ops += [f"v_lshlrev_b32 v{t0}, 5, v{t0}"]
        ops += [f"v_add_f32 v{MA + e}, v{MA + e}, v{MA + 2 + e}" for e in range(2)]
        ops += [f"v_lshrrev_b32 v{t1}, 4, v1", f"v_lshl_add_u32 v{t0}, v{t1}, 3, v{t0}"]
        fill(ops, 0, 16)
        fill(["s_lshl_b32 s38, s3, 6", f"s_add_u32 s38, s38, {FLAG_LDS + 64}"], 0, 2, 'salu')
    if k == 30:
        ops = []
        for ro in (2, 4, 8):
            ops += [f"v_add_f32_dpp v{MA + e}, v{MA + e}, v{MA + e} row_ror:{ro} row_mask:0xf bank_mask:0xf" for e in range(2)]
        ops += [f"v_add_u32 v{t0}, s38, v{t0}", f"v_and_b32 v{t1}, 7, v1"]
        fill(ops, 1, 8)
        G.put(gi[8, 8], 'ds', f"ds_write_b64 v{t0}, {vr(MA, 2)}", 'MW')
        G.put(gi[10, 7], 'tail', "@ds MW")
        fill([f"v_lshlrev_b32 v{t1}, 3, v{t1}", f"v_add_u32 v{t1}, {FLAG_LDS + 64}, v{t1}"], 8, 10)
        for w in range(4):
            G.put(gi[11 + w, 5], 'ds', f"ds_read_b64 {vr(MA + 2 * w, 2)}, v{t1} offset:{64 * w}")
        fill(mod_block(39, 43) + [f"s_or_b32 s43, s43, s{sPASS}", f"s_and_b32 s43, s43, {tail.BIG}", "s_sub_u32 s36, s39, 144",
                                  ("s_cmp_lt_u32 s36, 36", "s_cselect_b32 s36, 1.0, 0"), f"s_lshr_b32 s{sMW}, s39, 1", f"s_lshl_b32 s{sMW}, s{sMW}, 6",
                                  "s_and_b32 s39, s39, 1", "s_lshl_b32 s39, s39, 3", f"s_add_u32 s39, s39, s{sMW}",
                                  f"s_add_u32 s39, s39, {WS_MODP}", "s_or_b32 s39, s39, s43", f"s_and_b32 s43, s{sPASS}, {tail.BIG}"], 2, 16, 'salu')
    if k == 31:
        ops = [f"v_add_f32 v{MA + e}, v{MA + e}, v{MA + 4 + e}" for e in range(4)]
        ops += [f"v_add_f32 v{MA + e}, v{MA + e}, v{MA + 2 + e}" for e in range(2)]
        ops += [f"v_cvt_pk_bf16_f32 v{t2}, v{MA}, v{MA + 1}", f"v_lshlrev_b32 v{MA}, 16, v{t2}", f"v_and_b32 v{MA + 1}, 0xffff0000, v{t2}",
                f"v_add_f32 v{MA}, s36, v{MA}", f"v_add_f32 v{MA + 1}, s36, v{MA + 1}", f"v_cvt_pk_bf16_f32 v{t2}, v{MA}, v{MA + 1}",
                f"v_lshrrev_b32 v{t0}, 1, v0", f"v_lshlrev_b32 v{t0}, 4, v{t0}", f"v_and_b32 v{t1}, 1, v0", f"v_lshl_add_u32 v{t0}, v{t1}, 2, v{t0}",
                f"v_lshrrev_b32 v{t1}, 3, v0", f"v_min_u32 v{t1}, 1, v{t1}", f"v_lshl_or_b32 v{t0}, v{t1}, 31, v{t0}"]
        fill(ops, 0, 16)
    if k == 32:
        G.put(gi[0, 7], 'vm', f"buffer_store_dword v{t2}, v{t0}, {sr(SRD_H, 4)}, s39 offen sc1", 'MS')
        for j, x in enumerate((f"v_min_u32 v{MR}, 1, v0", f"v_lshlrev_b32 v{MR}, 31, v{MR}", f"v_mov_b32 v{MR + 1}, 1")):
            G.put(gi[2 + j, 6], 'valu', x)


def ffn_setup():
    o = ["s_lshr_b32 s6, s2, 3", "s_and_b32 s7, s2, 7", "s_mul_i32 s7, s7, 18", "s_add_u32 s7, s7, s6",
         f"s_lshl_b32 s{sFG}, s7, 6", f"s_mul_i32 s{sFD}, s7, 36864",
         ("s_cmp_lt_u32 s6, 18", f"s_cselect_b32 s7, 0, {tail.BIG}"),
         f"s_or_b32 s{sFG}, s{sFG}, s7", f"s_or_b32 s{sFD}, s{sFD}, s7"]
    v = [f"v_lshrrev_b32 v{FW}, 2, v0", f"v_mul_u32_u24 v{FW}, 9216, v{FW}", f"v_and_b32 v{FV}, 3, v0",
         f"v_lshl_add_u32 v{FV}, v{FV}, 4, v{FW}", f"v_lshlrev_b32 v{FV2}, 4, v0", f"v_add_u32 v{FW}, {tail.L_WG}, v{FV2}"]
    o += ["s_and_b32 s7, s4, 1", "s_lshl_b32 s6, s7, 7",
          "s_xor_b32 s36, s4, 1", f"s_mul_i32 s36, s36, {256 * 1152}", f"s_add_u32 s{sWOb}, s36, s6",
          "s_lshl_b32 s36, s4, 8", f"s_add_u32 s{sPD}, s{sPART}, s36",
          "s_lshr_b32 s36, s4, 1", "s_lshl_b32 s36, s36, 11", "s_lshl_b32 s7, s7, 8", "s_add_u32 s36, s36, s7",
          f"s_add_u32 s{sPR}, s{sPART}, s36",
          "s_lshr_b32 s36, s4, 1", "s_lshl_b32 s36, s36, 4", "s_add_u32 s36, s36, s5", "s_lshl_b32 s36, s36, 9", "s_add_u32 s36, s36, s7",
          "s_lshl_b32 s36, s36, 8", f"s_add_u32 s{sOX}, s36, {OX}",
          f"s_add_u32 s{sWOa}, s{sWO}, s6", f"s_xor_b32 s{sXF}, s{tail.sFL}, 128", "s_lshl_b32 s36, s3, 14"]
    v += [f"v_lshl_add_u32 v{XV}, v1, 4, s36"]
    o = mod_block(sMW, 37) + [f"s_lshl_b32 s{sMW}, s{sMW}, 5", f"s_or_b32 s{sMW}, s{sMW}, s37", f"s_mov_b32 s{SRD_M + 2}, {SZ['wmod']}"] + o
    v += [f"v_mov_b32 v{MA + e}, 0" for e in range(8)]
    o = [f"s_lshl_b32 s{sAR}, s5, 4", f"s_add_u32 s{sAR}, s{sAR}, s4", f"s_lshl_b32 s{sAR}, s{sAR}, 2", f"s_add_u32 s{sAR}, s{sAR}, s3",
         f"s_mul_i32 s{sAR}, s{sAR}, 4608", f"s_add_u32 s{sAR}, s{sAR}, {WS_H2}"] + o
    v += [f"v_mov_b32 v{AD + e}, -1" for e in range(4)] + [f"v_min_u32 v{AV}, 41, v1", f"v_lshlrev_b32 v{AV}, 4, v{AV}"]
    return o, v


def o_store(f):
    pre = [f"s_add_u32 s37, s{sOX}, {4096 * (f >> 2)}"]
    return (pre, f"buffer_store_dwordx4 {vr(OB + 4 * f, 4)}, v{XV}, {sr(SRD_P, 4)}, s37 offen offset:{1024 * (f & 3)} {OPT['ox']}", 'OS', [])


def o_load(f):
    pre = [f"s_add_u32 s37, s{sOX}, {4096 * (f >> 2)}"] if f % 4 == 0 else []
    return (pre, f"buffer_load_dwordx4 {ar(BUF + 4 * f, 4)}, v{XV}, {sr(SRD_P, 4)}, s37 offen offset:{1024 * (f & 3)} {OPT['ol']}", 'OL', [])


def oproj(s):
    G = Gaps()

    def acc(n, tt):
        c = POS[n >> 2][1]
        return OAC + 32 * (1 if c is None else c & 1) + 8 * (n & 3) + 4 * tt
    for n in range(36):
        src, c = POS[n >> 2]
        for tt in range(2):
            for ks in range(8):
                d = vr(acc(n, tt), 4)
                b = ar(BUF + 32 * tt + 4 * ks, 4) if src else vr(OB + 32 * tt + 4 * ks, 4)
                i = G.add(f"{M16} {d}, {ar(AF[n & 1] + 4 * ks, 4)}, {b}, {'0' if ks == 0 and src == 0 else d}")
                if n + 1 < 36:
                    G.put(i, 'ds', oread(n + 1, 8 * tt + ks))
    for _ in range(8):
        G.add(None)
    for n in range(36):
        src, c = POS[n >> 2]
        if c is not None and src == 0:
            continue
        for tt in range(2):
            e0 = 16 * n + 8 * tt + 8 + 4
            a0 = acc(n, tt)
            pk = PK + 8 * ((n >> 1) & 1) + 4 * tt + 2 * (n & 1)
            G.put(e0, 'valu', f"v_cvt_pk_bf16_f32 v{pk}, v{a0}, v{a0 + 1}")
            G.put(e0 + 1, 'valu', f"v_cvt_pk_bf16_f32 v{pk + 1}, v{a0 + 2}, v{a0 + 3}")
            if n & 1:
                base, off = (sPD, 16384) if c is None else (sPR, 512 * c)
                G.put(e0 + 1, 'salu', f"s_add_u32 s38, s{base}, {tt * 8 * PAIR + off + ((n >> 1) & 1) * 128}")
                G.put(e0 + 2, 'vm', f"buffer_store_dwordx4 {vr(pk - 2, 4)}, v{STV}, {sr(SRD_P, 4)}, s38 offen {OPT['st']}", 'ST2' if c in (2, 3) else 'ST1')
    for c in range(8):
        b = 64 * c + 47
        G.put(b, 'tail', f"@vm WO{c + 1}")
        if c in (2, 7):
            G.put(b, 'tail', "@lgkm 0")
        G.put(b, 'tail', "s_barrier")
        if c == 0:
            ops = wo_tile(3, 1)
        elif c <= 5:
            ops = wo_tile(c + 3, 0) + wo_tile(c + 3, 1)
        else:
            ops = []
        for j, op in enumerate(ops):
            G.put_op(b + 9 + 8 * (j >> 1) + 2 * (j & 1), op)

    def spread(ops, lo, hi):
        free = [i for i in range(lo, hi) if i % 2 == 0 and not G.m[i]['vm'] and not G.m[i]['valu'] and not G.m[i + 1]['valu']]
        assert len(free) >= len(ops), (len(free), len(ops))
        for j, op in enumerate(ops):
            G.put_op(free[j * len(free) // len(ops)], op)
    fx, px, cx = OPT['fx'], OPT['px'], OPT['cx']
    G.put(fx - 1, 'tail', "@vm OS")
    G.put(fx - 1, 'tail', f"s_cmp_eq_u32 s{sSAME}, 0")
    G.put(fx - 1, 'tail', "s_cbranch_scc1 Lattn_wb")
    G.put(fx - 1, 'tail', "Lattn_wbdone:")
    G.put(fx, 'vm', f"buffer_store_dword v{tail.vZ}, v{tail.vF}, {sr(SRD_H, 4)}, s{tail.sFL} offen offset:8 sc1")
    G.put(fx + 1, 'salu', f"s_xor_b32 s{sOX}, s{sOX}, 65536")
    spread([([], x_poll(), None, [])], px, px + 8)
    G.put(cx - 2, 'valu', f"v_readfirstlane_b32 s36, v{tail.POLL}")
    G.put(cx, 'tail', f"s_cmp_lg_u32 s36, s{sTAG}")
    G.put(cx, 'tail', "s_cbranch_scc1 Lattn_xspin")
    G.put(cx, 'tail', "Lattn_xgot:")
    spread([o_load(f) for f in range(16)], cx + 3, OPT['ex'])
    for j, x in enumerate(tail.pointer_loads()):
        G.put(fx + 3 + 2 * j, 'tail', x)
    L, ld0, ld1 = tail.prepare()
    g = 64 * 3
    for x in L:
        if x is None:
            g0 = g
            g = max(g, 64 * 6 + 20)
            continue
        x = x if isinstance(x, tuple) else (x,)
        kind = 'salu' if x[0].startswith('s_') else 'valu'
        while G.m[g][kind] or G.m[g]['vm'] or (kind == 'salu' and G.m[g]['valu']) or (kind == 'valu' and G.m[g - 1]['vm']):
            g += 1
        for y in x:
            G.put(g, kind, y)
    assert g < 64 * 7 + 16
    f1, p1, c1 = OPT['f1'], OPT['p1'], OPT['c1']
    spread([(["@vm ST1"], tail.flag_store()[0], None, [tail.flag_store()[1]])], f1, f1 + 12)
    assert p1 > g0
    spread([([], tail.flag_poll(), None, [])], p1, p1 + 12)
    ca = OPT['ca']
    assert ca > g0
    spread([([], f"buffer_load_dword v{CNT}, v{CNT}, {sr(SRD_D, 4)}, 0 offen sc1", None, [])], ca - 60, ca - 40)
    G.put(ca - 2, 'valu', f"v_readfirstlane_b32 s37, v{CNT}")
    for x in ("s_cmp_lt_u32 s37, 256", "s_cbranch_scc1 Lattn_armwait", "Lattn_armed:"):
        G.put(ca, 'tail', x)
    spread(ld0[:6], g0 + 3, ca - 2)
    spread(ld0[6:], ca + 2, 64 * 7 + 6)
    spread(ld1, 64 * 7 + 8, min(c1, 530) - 2)
    if c1 < 576:
        fc = tail.flag_check(1)
        G.put(c1 - 2, 'valu', fc[0])
        for x in fc[1:]:
            G.put(c1, 'tail', x)
        spread(tail.part_loads(0) + tail.part_loads(2), c1 + 2, 572)
    if OPT['fine'] == 3:
        for c in range(8):
            G.put(64 * c + 63, 'tail', f"s_memtime {sr(62 + 2 * c, 2)}")
    G.emit(s)


def x_poll():
    return f"buffer_load_dword v{tail.POLL}, v{tail.vF}, {sr(SRD_H, 4)}, s{sXF} offen offset:8 sc1"


def pair_cold(a):
    a("Lattn_wb:")
    a("buffer_wbl2 sc1")
    a("s_waitcnt vmcnt(0)")
    a("s_branch Lattn_wbdone")
    a("Lattn_xspin:")
    a(f"s_mov_b32 s37, {tail.SPIN}")
    a("Lattn_xloop:")
    a(x_poll())
    a("s_waitcnt vmcnt(0)")
    a(f"v_readfirstlane_b32 s36, v{tail.POLL}")
    a("s_sub_u32 s37, s37, 1")
    a("s_cbranch_scc1 Lattn_xgot")
    a(f"s_cmp_lg_u32 s36, s{sTAG}")
    a("s_cbranch_scc1 Lattn_xloop")
    a("s_branch Lattn_xgot")


def redo():
    s = Stream()
    s("Lattn_redo:")
    s(f"v_xor_b32 v{KAD}, 64, v{KAD + 1}")
    s(f"v_xor_b32 v{KAD + 2}, 64, v{KAD + 3}")
    s("@drain")
    s("s_barrier")
    M = TMP + 16
    for qb in range(4):
        s(f"v_mov_b32 v{M + qb}, 0xff800000")
    s(f"s_mov_b32 s{sK}, 0")
    s(f"s_mov_b32 s{sPASS}, -1")
    s("Lattn_redo_loop:")
    for op in k_tile(0):
        emit_op(s, op)
    s("@drain")
    s("s_barrier")
    for kb in range(4):
        for sx in range(4):
            s(kread(0, kb, sx))
        for qb in range(4):
            for sx in range(4):
                d = vr(TMP + 4 * qb, 4)
                s(f"{M16} {d}, {ar(KF + 16 * (kb & 1) + 4 * sx, 4)}, {vr(Q + 16 * qb + 4 * sx, 4)}, {'0' if sx == 0 else d}")
        for qb in range(4):
            t = TMP + 4 * qb
            s(f"v_max3_f32 v{M + qb}, v{M + qb}, v{t}, v{t + 1}")
            s(f"v_max3_f32 v{M + qb}, v{M + qb}, v{t + 2}, v{t + 3}")
    s("s_barrier")
    s(f"s_cmp_lt_u32 s{sK}, 524288")
    s("s_cbranch_scc1 Lattn_redo_loop")
    cross_max_to_negm(s, M)
    s(f"s_mov_b32 s{sK}, 0")
    s(f"s_mov_b32 s{sV}, 0")
    for op in k_tile(0) + k_tile(1) + k_tile(2) + v_tile(0) + v_tile(1):
        emit_op(s, op)
    for r in list(range(O, O + 128)) + list(range(L, L + 16)):
        s(f"v_accvgpr_write_b32 a{r}, 0")
    s("@drain")
    s("s_barrier")
    for sx in range(4):
        s(kread(0, 0, sx))
    s(kread(0, 1, 0))
    s("@drain")
    s("s_branch Lattn_stage0")
    s.resolve()
    return [t for _, ls in s.split() for t in ls]


def merge_body(copies):
    out = []
    assert len({len(c) for c in copies}) == 1
    for lines in zip(*copies):
        if len(set(lines)) == 1:
            out.append(lines[0])
        else:
            ms = [re.fullmatch(r's_waitcnt (\w+)\((\d+)\)', l) for l in lines]
            assert all(ms) and len({m.group(1) for m in ms}) == 1, lines
            out.append(f"s_waitcnt {ms[0].group(1)}({min(int(m.group(2)) for m in ms)})")
    return out


def insn_sizes(lines):
    src = '.amdgcn_target "amdgcn-amd-amdhsa--gfx950"\n.text\n' + '\n'.join(lines) + '\n'
    with tempfile.TemporaryDirectory() as d:
        open(d + '/t.s', 'w').write(src)
        subprocess.run(['clang', '-x', 'assembler', '-target', 'amdgcn-amd-amdhsa', '-mcpu=gfx950', '-c', d + '/t.s', '-o', d + '/t.o'], check=True)
        dis = subprocess.run(['llvm-objdump', '-d', '--mcpu=gfx950', d + '/t.o'], check=True, capture_output=True, text=True).stdout
    sz = [4 * len(m.group(1).split()) for m in re.finditer(r'// [0-9A-F]{12}: ((?:[0-9A-F]{8} ?)+)', dis)]
    it = iter(sz)
    out = [0 if l.endswith(':') else next(it) for l in lines]
    assert next(it, None) is None
    return out


def page_tour(lines):
    i0 = lines.index('Lhead_tour:')
    if not OPT['tour']:
        return lines
    sz = insn_sizes(lines)
    end = lines.index('Lattn_redo:')
    out = []; pos = 4; page = 1; n = 0
    for i in range(i0 + 1, len(lines)):
        l = lines[i]
        if l == 'Lattn_loop:' and OPT['lal'] >= 0:
            while pos % 64 != OPT['lal']:
                out.append('    s_nop 0'); pos += 4
        want = False
        if i < end and pos >= 4096 * page and not l.endswith(':'):
            prev = lines[i - 1].split()[0]
            if prev.startswith('v_mfma') and not l.split()[0].startswith('s_') or pos - 4096 * page >= 40:
                want = True; page += 1
        if lines[i - 1][:-1] in ('Ltail_spin1', 'Ltail_spin2', 'Ltail_noffn', 'Ltail_final'):
            want = True
        if want:
            out.append(f'Ltour{n}:'); out.append(n); pos += 4; n += 1
        out.append(l); pos += sz[i]
    out = [f"    s_cbranch_execz {'Ltour%d' % (x + 4) if x + 4 < n else 'Lmain'}" if isinstance(x, int) else x for x in out]
    pre = ['    s_mov_b64 exec, 0']
    for w in range(3):
        pre += [f'    s_cmp_eq_u32 s3, {w}', f'    s_cbranch_scc1 Ltour{w}']
    pre += ['    s_branch Ltour3', '.p2align 12', 'Lmain:', '    s_mov_b64 exec, -1']
    return lines[:i0] + pre + out


def k_attn(diag=False):
    s = Stream()
    head.head(s, diag, sys.modules[__name__])
    stamp(s, diag, 1)
    qproj(s, diag)
    stamp(s, diag, 2)
    qfinish(s)
    prepass(s)
    s("@mark pre")
    s("Lattn_stage0:")
    s(f"s_mov_b32 s{sCNT}, 7")
    for k in range(33):
        s(f"@mark st{k}")
        stage(s, k)
    s("@mark post")
    normalize(s)
    s("@mark oproj")
    oproj(s)
    s("@mark tail")
    tail.post(s, diag, [ffn_write(n) for n in range(12)], [wd_dma(i) for i in range(1, 9)], emit_op)
    s.resolve()
    parts = dict(s.split())
    for k in range(1, 5):
        parts[f'body{k}'] = merge_body([parts[f'st{j}'] for j in range(k, 29, 4)])
    a = Asm()

    def put(name):
        for t in parts[name]:
            a(t)
    put('_head'); stamp(a, diag, 3); put('pre'); put('st0')
    stamp(a, diag, 4)
    a("Lattn_loop:")
    for k in range(1, 5):
        put(f'body{k}')
    a(f"s_sub_u32 s{sCNT}, s{sCNT}, 1")
    a(f"s_cmp_lg_u32 s{sCNT}, 0")
    a("s_cbranch_scc1 Lattn_loop")
    stamp(a, diag, 5)
    for k in range(29, 33):
        put(f'st{k}')
    stamp(a, diag, 6)
    put('post')
    if OPT['fine'] == 3:
        stamp(a, diag, 0)
    stamp(a, diag, 7)
    put('oproj')
    if diag:
        stamp(a, diag, 8)
        if OPT['fine'] != 5:
            stamp(a, diag, 9)
        a("s_memrealtime s[98:99]")
        a("s_waitcnt lgkmcnt(0)")
        for i in range(10):
            a(f"s_sub_u32 s7, s{60 + 2 * i}, s60")
            a(f"v_accvgpr_write_b32 a{224 + i}, s7")
        a("v_accvgpr_write_b32 a234, s96")
        a("v_accvgpr_write_b32 a235, s98")
    put('tail')
    tail.body(a, diag)
    if diag:
        tail.dump_stamps(a, 8, WS_STAMP + 0x20000)
        a.srd(SRD_V, 50, 1024 * 64, WS_STAMP)
        for i in range(3):
            a(f"buffer_store_dwordx4 {ar(224 + 4 * i, 4)}, v2, {sr(SRD_V, 4)}, s36 offen offset:{16 * i}")
    a("s_endpgm")
    pair_cold(a)
    tail.flag_spin(a, 1)
    tail.flag_spin(a, 2)
    for t in redo():
        a(t)
    a("Lattn_armwait:")
    a(f"s_mov_b32 s36, {tail.SPIN}")
    a("Lattn_armloop:")
    a(f"v_mov_b32 v{CNT}, 0")
    a(f"buffer_load_dword v{CNT}, v{CNT}, {sr(SRD_D, 4)}, 0 offen sc1")
    a("s_waitcnt vmcnt(0)")
    a(f"v_readfirstlane_b32 s37, v{CNT}")
    a("s_sub_u32 s36, s36, 1")
    a("s_cbranch_scc1 Lattn_armed")
    a("s_cmp_lt_u32 s37, 256")
    a("s_cbranch_scc1 Lattn_armloop")
    a("s_branch Lattn_armed")
    a("Lattn_end:")
    a("s_endpgm")
    a.L = page_tour(a.L)
    return a.text(), 512, dict(grid=256, block=256, lds=163840), s.stats
```

```python
NAME = 'adaLN_cond__gqa_block_cached__moe_arch_mod__prompt'

OPT = dict(st='sc1', touch=3, fine=0, kt=6, qs=-9, qd=0, xl=2, qt=2, ca=410, nq0=0, nq1=4, scr=0, sn=7, f3=0, pa=2, p4=12, wf=0, hb=1, wd0=436, wd1=100, ab=1, hd='844440', co=0, tl=0, na=8, tw=0, pl='sc1', pvo=0, va=0, abl=0, oa=1, sv=0, hc=80, wb=0, o3=0, z0=1, t2=2, ct=31, cl=0, fl=3, pp=-1, tp=0, nq2=4, p3=0, rt=1, ne=24, wl=0, wr=0, nb=1, s0='', s1='D01', fs=16, xp=204, f0=330, p0=400, c0=436, f1=388, p1=500, lw=0, sg=0, at=26, fx=24, px=48, cx=100, ox='', op='nt', fp='nt', oxt=3, wot=29, kv='', ol='sc1', l2=0, clr=1, tour=1, lal=8, p2=8, ex=176, wdp=5, cand=1, so=0, ys=0, fw=3, eo=2, pm='sc1', ph='sc1', pf='sc1', pk='sc1', py='sc1', fnt='', x=0)

KA = dict(x=0, k=8, v=16, wq=24, wo=32, bx=40, wr=48, wg=56, wu=64, wd=72, c=80, wmod=88, out=96, dbg=104, ws=112)
SZ = dict(x=2359296, k=8388608, v=8388608, wq=4718592, wo=4718592, wr=1152, wg=5308416, wu=5308416, wd=5308416,
          c=1152, wmod=3981312, out=2359296, dbg=256, ws=268435456)

WS_GR = 0x8000
WS_MODP = 0x4000
WS_EPOCH = 0x6000
WS_H = 0x10000
WS_H2 = 0x280000
WS_X1 = WS_H2 + 1152
WS_Y = 0x780000
Y_BYTES = 9 * 144 * 512
WS_HFLAG = 0x840000
WS_FLAG = 0x860000
WS_KEY = 0x8E0000
WS_STAMP = 0x900000
WS_PART = 0xA00000
PAIR = 20608
OX = 1024 * PAIR
PART_BYTES = OX + 256 * 65536


def vr(b, n=1, f='v'):
    return f"{f}{b}" if n == 1 else f"{f}[{b}:{b + n - 1}]"


def ar(b, n=1):
    return vr(b, n, 'a')


def sr(b, n=1):
    return vr(b, n, 's')


class Asm:
    def __init__(self):
        self.L = []

    def __call__(self, s):
        for line in s.split('\n'):
            line = line.strip()
            if line:
                self.L.append(line if line.endswith(':') else '    ' + line)

    def text(self):
        return '\n'.join(self.L) + '\n'

    def srd(self, d, ptr, size, off=0):
        if off:
            self(f"s_add_u32 s{d}, s{ptr}, {off}")
            self(f"s_addc_u32 s{d + 1}, s{ptr + 1}, 0")
        elif d != ptr:
            self(f"s_mov_b32 s{d}, s{ptr}")
            self(f"s_mov_b32 s{d + 1}, s{ptr + 1}")
        self(f"s_mov_b32 s{d + 2}, {size}")
        self(f"s_mov_b32 s{d + 3}, 0x20000")

    def xsum(self, regs, tmps, op='v_add_f32', x16=True, x32=True):
        for sw, on in (('v_permlane16_swap_b32', x16), ('v_permlane32_swap_b32', x32)):
            if not on:
                continue
            for r, t in zip(regs, tmps):
                self(f"v_mov_b32 v{t}, v{r}")
            self("s_nop 1")
            for r, t in zip(regs, tmps):
                self(f"{sw} v{r}, v{t}")
            self("s_nop 1")
            for r, t in zip(regs, tmps):
                self(f"{op} v{r}, v{r}, v{t}")

    def dppsum(self, regs, rors, op='v_add_f32'):
        for ro in rors:
            self("s_nop 1")
            for r in regs:
                self(f"{op}_dpp v{r}, v{r}, v{r} row_ror:{ro} row_mask:0xf bank_mask:0xf")

    def rnd_bf16(self, regs, tmp):
        for i in range(0, len(regs), 2):
            a, b = regs[i], regs[i + 1]
            self(f"v_cvt_pk_bf16_f32 v{tmp}, v{a}, v{b}")
            self(f"v_lshlrev_b32 v{a}, 16, v{tmp}")
            self(f"v_and_b32 v{b}, 0xffff0000, v{tmp}")

    def rnd1(self, r):
        self(f"v_cvt_pk_bf16_f32 v{r}, v{r}, v{r}")
        self(f"v_and_b32 v{r}, 0xffff0000, v{r}")

    def unpack(self, dst, src, n):
        for i in range(n):
            self(f"v_lshlrev_b32 v{dst + 2 * i}, 16, v{src + i}")
            self(f"v_and_b32 v{dst + 2 * i + 1}, 0xffff0000, v{src + i}")


def kernel_text(label, body):
    return f".globl {label}\n.p2align 8\n.type {label},@function\n{label}:\n{body}"


def kd_text(label, nv, acc, ns=102):
    return f""".p2align 6
.amdhsa_kernel {label}
  .amdhsa_next_free_vgpr {nv}
  .amdhsa_next_free_sgpr {ns}
  .amdhsa_accum_offset {acc}
  .amdhsa_group_segment_fixed_size 0
  .amdhsa_kernarg_size 120
  .amdhsa_user_sgpr_count 2
  .amdhsa_user_sgpr_kernarg_segment_ptr 1
  .amdhsa_system_sgpr_workgroup_id_x 1
  .amdhsa_float_denorm_mode_32 3
.end_amdhsa_kernel
"""
```

```python
from dsl import *
from tail import unpack, pack, rnd1, red, srd, BIG, SPIN

L_RED, L_MOD = 0, 1024
vC, vW, vX, vP, vM, vG, vQ2, vQ, vT = 64, 65, 66, 67, 68, 69, 70, 71, 72
CV, WV, XR = 80, 88, 108
AC, UT = 128, 136
X, D, C1, SA = 144, 168, 192, 216
PF = 240
vK, vV = 120, 121


def silu(s, r, t):
    d, q, e = t, t + 1, t + 2
    s(f"v_mul_f32 v{d}, 0xbfb8aa3b, v{r}")
    s(f"v_min_f32 v{d}, 0x42fc0000, v{d}")
    s(f"v_exp_f32 v{d}, v{d}")
    s(f"v_add_f32 v{d}, 1.0, v{d}")
    s(f"v_rcp_f32 v{q}, v{d}")
    s(f"v_mul_f32 v{e}, v{r}, v{q}")
    s(f"v_fma_f32 v{d}, -v{e}, v{d}, v{r}")
    s(f"v_fma_f32 v{r}, v{d}, v{q}, v{e}")


def interleave(s, fns):
    lists = []
    for f in fns:
        l = []
        f(l.append)
        lists.append(l)
    for i in range(max(map(len, lists))):
        for l in lists:
            if i < len(l):
                s(l[i])


def sum24(s, dst, t, f):
    for e in range(0, 24, 2):
        f(t if e & 2 else dst, e, e < 4)
    s(f"v_pk_add_f32 {vr(dst, 2)}, {vr(dst, 2)}, {vr(t, 2)}")
    s(f"v_add_f32 v{dst}, v{dst}, v{dst + 1}")


def head(s, diag, K):
    st = lambda i: OPT['fine'] == 1 and K.stamp(s, diag, i, True)
    s2 = lambda i: OPT['fine'] == 2 and K.stamp(s, diag, i, True)
    SC, SM, SX, SW = K.SRD_K, K.SRD_V, K.SRD_O, K.SRD_H
    s("s_cmp_ge_u32 s2, 256")
    s("s_cbranch_scc1 Lattn_end")
    if OPT['scr']:
        s("s_and_b32 s3, s2, 7")
        s("s_lshl_b32 s3, s3, 5")
        s("s_lshr_b32 s2, s2, 3")
        s("s_or_b32 s2, s2, s3")
    s(f"s_load_dwordx2 {sr(SC, 2)}, s[0:1], {KA['c']}")
    s(f"s_load_dwordx2 {sr(SM, 2)}, s[0:1], {KA['wmod']}")
    s(f"s_load_dwordx2 {sr(SX, 2)}, s[0:1], {KA['x']}")
    s(f"s_load_dwordx2 s[50:51], s[0:1], {KA['ws']}")
    s(f"s_load_dwordx8 s[52:59], s[0:1], {KA['k']}")
    s(f"s_load_dwordx4 s[80:83], s[0:1], {KA['wg']}")
    s(f"s_load_dwordx2 s[84:85], s[0:1], {KA['wd']}")
    s(f"s_load_dwordx2 {sr(K.SRD_D, 2)}, s[0:1], {KA['dbg']}")
    if diag:
        s("s_memrealtime s[96:97]")
    K.stamp(s, diag, 0)
    s("s_getpc_b64 s[32:33]")
    s("Lattn_pc:")
    s("s_mov_b32 s34, Lattn_end-Lattn_pc")
    s("s_mov_b32 s35, 0x20000")
    s("s_lshr_b32 s6, s2, 3")
    s("s_lshl_b32 s7, s6, 6")
    s("v_lshrrev_b32 v3, 6, v0")
    s("v_and_b32 v1, 63, v0")
    s("v_lshrrev_b32 v2, 2, v0")
    s("v_lshlrev_b32 v2, 11, v2")
    s("v_readfirstlane_b32 s3, v3")
    s(f"buffer_load_dword v{PF}, v2, s[32:35], s7 offen", 'PF')
    s("s_and_b32 s7, s2, 7")
    s("s_lshl_b32 s4, s7, 1")
    s("s_and_b32 s5, s6, 1")
    s("s_add_u32 s4, s4, s5")
    s("s_lshr_b32 s5, s2, 4")
    s("s_lshr_b32 s38, s6, 2")
    s("s_lshl_b32 s38, s38, 3")
    s("s_add_u32 s38, s38, s7")
    s("s_cmp_lt_u32 s38, 18")
    s(f"s_cselect_b32 s39, 0, {BIG}")
    s("s_lshl_b32 s38, s38, 2")
    s("s_and_b32 s36, s6, 3")
    s("s_add_u32 s38, s38, s36")
    s(f"s_mov_b32 s{SM + 2}, {SZ['wmod']}")
    s(f"s_mul_i32 s92, s6, {18 * 6912}")
    s("s_lshl_b32 s36, s7, 7")
    s("s_add_u32 s92, s92, s36")
    s("s_cmp_lt_u32 s7, 2")
    s("s_cselect_b32 s36, 53, 35")
    s("v_lshrrev_b32 v2, 2, v0")
    s("v_min_u32 v2, s36, v2")
    s("v_mul_u32_u24 v3, 57, v2")
    s("v_lshrrev_b32 v3, 10, v3")
    s(f"v_mul_i32_i24 v3, {1024 - 18 * 6912}, v3")
    s(f"v_mul_u32_u24 v2, 6912, v2")
    s(f"v_add_u32 v{vT}, v2, v3")
    s(f"s_mov_b32 s{SM + 3}, 0x20000")
    s(f"s_mov_b32 s{SC + 2}, {SZ['c']}")
    s(f"s_mov_b32 s{SC + 3}, 0x20000")
    s(f"s_mov_b32 s{SX + 2}, {SZ['x']}")
    s(f"s_mov_b32 s{SX + 3}, 0x20000")
    s(f"v_and_b32 v{vC}, 0xfe, v0")
    s(f"v_mul_u32_u24 v{vW}, 3456, v{vC}")
    s("v_and_b32 v2, 1, v0")
    s(f"v_lshl_add_u32 v{vW}, v2, 4, v{vW}")
    s("s_lshl_b32 s36, s38, 5")
    s("s_or_b32 s36, s36, s39")
    s("v_and_b32 v4, 31, v1")
    s("v_lshrrev_b32 v5, 5, v1")
    s("v_cmp_gt_u32 vcc, 24, v4")
    s(f"v_mov_b32 v6, {BIG}")
    s("s_lshl_b32 s7, s5, 4")
    s("s_add_u32 s7, s7, s4")
    s("s_lshl_b32 s7, s7, 2")
    s("s_add_u32 s7, s7, s3")
    s("v_cndmask_b32 v6, v6, 0, vcc")
    s("s_mul_i32 s49, s7, 2304")
    s("v_lshrrev_b32 v7, 2, v4")
    s("v_lshl_add_u32 v7, v7, 6, v6")
    s("v_and_b32 v2, 3, v4")
    s("v_lshl_add_u32 v7, v2, 3, v7")
    s("v_mul_u32_u24 v2, 1152, v5")
    s(f"v_add_u32 v{vX}, v7, v2")
    st(1)
    s("s_waitcnt lgkmcnt(0)")
    s2(1)
    s(f"s_load_dword s{K.sEP}, s[50:51], {WS_EPOCH}")
    s(f"buffer_load_dword v{PF + 1}, v{vT}, {sr(SM, 4)}, s92 offen", 'PF')
    for i in range(5):
        s(f"buffer_load_ushort v{CV + i}, v{vC}, {sr(SC, 4)}, 0 offen offset:{256 * i}")
    s2(2)

    def ldx():
        for i in range(3):
            for u in range(2):
                s(f"buffer_load_dwordx2 {vr(XR + 4 * i + 2 * u, 2)}, v{vX}, {sr(SX, 4)}, s49 offen offset:{384 * i + 32 * u}")
        srd(s, K.SRD_O, 58, SZ['wo'])
    if OPT['xl'] == 0:
        ldx()
    s2(3)
    for i in range(5):
        s(f"buffer_load_dwordx4 {vr(WV + 4 * i, 4)}, v{vW}, {sr(SM, 4)}, s36 offen")
        if i < 4:
            s(f"s_add_u32 s36, s36, {128 * 6912}")
    nA = OPT['nq1']
    srd(s, K.SRD_Q, 56, SZ['wq'])
    s(f"s_lshl_b32 s{K.sWQ}, s4, 9")
    for d, sh, rows, r0 in ((vQ, 2, 4 * nA, 0), (vQ2, 1, 4 * (9 - nA), 64 * nA)):
        s(f"s_mul_i32 s36, s5, {rows * 8192}")
        s(f"s_add_u32 s36, s36, {r0 * 8192}")
        s(f"v_lshrrev_b32 v2, {sh}, v0")
        s(f"v_min_u32 v2, {4 * rows - 1}, v2")
        s("v_lshrrev_b32 v3, 2, v2")
        s("v_and_b32 v2, 3, v2")
        s("v_lshl_add_u32 v2, v2, 7, s36")
        s(f"v_lshl_add_u32 v{d}, v3, 13, v2")
    s2(4)
    s(f"s_add_u32 s92, s49, {WS_H}")
    s("v_lshl_add_u32 v7, v5, 4, v6")
    s(f"v_lshl_add_u32 v{vP}, v4, 5, v7")
    s("v_min_u32 v4, 23, v4")
    s(f"v_lshlrev_b32 v{vM}, 4, v4")
    srd(s, SW, 50, WS_PART)
    s(f"s_mov_b32 s{K.SRD_D + 2}, 256")
    s(f"s_mov_b32 s{K.SRD_D + 3}, 0x20000")
    s("s_cmp_ge_u32 s38, 36")
    s("s_cselect_b32 s93, 1.0, 0")
    s("s_lshl_b32 s36, s38, 7")
    s(f"v_lshl_add_u32 v{vG}, v0, 3, s36")
    s("v_cmp_gt_u32 s[36:37], 8, v0")
    s(f"v_mov_b32 v2, {BIG}")
    s("v_mov_b32 v3, s39")
    s("v_cndmask_b32 v2, v2, v3, s[36:37]")
    s(f"v_or_b32 v{vG}, v{vG}, v2")
    s("s_mul_i32 s36, s5, 3072")
    s("s_lshl_b32 s37, s5, 11")
    s(f"v_lshrrev_b32 v{vK}, 3, v0")
    s(f"v_min_u32 v{vK}, 23, v{vK}")
    s(f"v_lshl_add_u32 v{vK}, v{vK}, 7, s36")
    s(f"v_lshrrev_b32 v{vV}, 4, v0")
    s(f"v_lshl_add_u32 v{vV}, v{vV}, 7, s37")
    K.setup(s)
    if OPT['xl'] == 1:
        ldx()
    st(2)
    s2(5)
    for i in range(5):
        s(f"v_lshlrev_b32 v{CV + i}, 16, v{CV + i}")
    interleave(s, [(lambda e, i=i: (silu(e, CV + i, X + 4 * i), rnd1(e, CV + i))) for i in range(5)])
    if OPT['xl'] == 2:
        ldx()
    s2(6)
    if OPT['qt'] == 1:
        s(f"buffer_load_dword v{PF + 2}, v{vQ}, {sr(K.SRD_Q, 4)}, s{K.sWQ} offen", 'PF')
    if OPT['kt'] == -1:
        for op in touch_ops(K)[1:]:
            K.emit_op(s, op)
    for i in range(5):
        unpack(s, UT, WV + 4 * i, 4)
        c2 = (CV + i) & ~1
        o = (CV + i) & 1
        for e in range(0, 8, 2):
            if i == 0:
                s(f"v_pk_mul_f32 {vr(AC + e, 2)}, {vr(UT + e, 2)}, {vr(c2, 2)} op_sel:[0,{o}] op_sel_hi:[1,{o}]")
            else:
                s(f"v_pk_fma_f32 {vr(AC + e, 2)}, {vr(UT + e, 2)}, {vr(c2, 2)}, {vr(AC + e, 2)} op_sel:[0,{o},0] op_sel_hi:[1,{o},1]")
    s2(7)
    if OPT['qt'] == 0:
        s(f"buffer_load_dword v{PF + 2}, v{vQ}, {sr(K.SRD_Q, 4)}, s{K.sWQ} offen", 'PF')
    for e in range(4):
        s(f"v_permlane32_swap_b32 v{AC + e}, v{AC + 4 + e}")
    s(f"v_and_b32 v{vT}, 1, v1")
    for e in (0, 2):
        s(f"v_pk_add_f32 {vr(AC + e, 2)}, {vr(AC + e, 2)}, {vr(AC + 4 + e, 2)}")
    s(f"v_lshlrev_b32 v{vT}, 5, v{vT}")
    s(f"v_lshrrev_b32 v{vT + 1}, 4, v1")
    for e in range(2):
        s(f"v_permlane16_swap_b32 v{AC + e}, v{AC + 2 + e}")
    s(f"v_lshl_add_u32 v{vT}, v{vT + 1}, 3, v{vT}")
    s(f"v_pk_add_f32 {vr(AC, 2)}, {vr(AC, 2)}, {vr(AC + 2, 2)}")
    s("s_lshl_b32 s36, s3, 6")
    s(f"v_add_u32 v{vT}, s36, v{vT}")
    red(s, [AC, AC + 1], [], (2, 4, 8), False, False)
    s(f"ds_write_b64 v{vT}, {vr(AC, 2)} offset:{L_RED}")
    s(f"v_and_b32 v{vT + 1}, 7, v1")
    s(f"v_lshlrev_b32 v{vT + 1}, 3, v{vT + 1}")
    s("@lgkm 0")
    s("s_barrier")
    for w in range(4):
        s(f"ds_read_b64 {vr(AC + 2 * w, 2)}, v{vT + 1} offset:{L_RED + 64 * w}")
    s(f"s_add_u32 s{K.sTAG}, s{K.sEP}, 0x9e3779b9")
    s(f"v_mov_b32 v{UT + 1}, s{K.sTAG}")
    s(f"s_mov_b32 s37, {WS_GR}")
    s(f"v_pk_add_f32 {vr(AC, 2)}, {vr(AC, 2)}, {vr(AC + 2, 2)}")
    s(f"v_pk_add_f32 {vr(AC + 4, 2)}, {vr(AC + 4, 2)}, {vr(AC + 6, 2)}")
    s(f"v_pk_add_f32 {vr(AC, 2)}, {vr(AC, 2)}, {vr(AC + 4, 2)}")
    pack(s, UT, AC, 1)
    unpack(s, AC, UT, 1)
    s(f"v_add_f32 v{AC}, s93, v{AC}")
    s(f"v_add_f32 v{AC + 1}, s93, v{AC + 1}")
    pack(s, UT, AC, 1)
    s(f"buffer_store_dwordx2 {vr(UT, 2)}, v{vG}, {sr(SW, 4)}, s37 offen sc1")
    st(3)
    s2(8)
    unpack(s, X, XR, 12)
    if OPT['qt'] == 2:
        s(f"buffer_load_dword v{PF + 2}, v{vQ}, {sr(K.SRD_Q, 4)}, s{K.sWQ} offen", 'PF')
    m, v, t = vT, vT + 2, vT + 4

    def f_sum(acc, e, first):
        if e < 4:
            s(f"v_pk_add_f32 {vr(acc, 2)}, {vr(X + e, 2)}, {vr(X + e + 4, 2)}")
        elif e >= 8:
            s(f"v_pk_add_f32 {vr(acc, 2)}, {vr(acc, 2)}, {vr(X + e, 2)}")
    sum24(s, m, t, f_sum)
    red(s, [m], [t], (1, 2, 4, 8), True, False)
    s(f"v_mul_f32 v{m}, 0x3ae38e39, v{m}")
    for e in range(0, 24, 2):
        s(f"v_pk_add_f32 {vr(D + e, 2)}, {vr(X + e, 2)}, {vr(m, 2)} op_sel_hi:[1,0] neg_lo:[0,1] neg_hi:[0,1]")

    def f_sq(acc, e, first):
        if first:
            s(f"v_pk_mul_f32 {vr(acc, 2)}, {vr(D + e, 2)}, {vr(D + e, 2)}")
        else:
            s(f"v_pk_fma_f32 {vr(acc, 2)}, {vr(D + e, 2)}, {vr(D + e, 2)}, {vr(acc, 2)}")
    sum24(s, v, t, f_sq)
    s(f"v_cndmask_b32 v{v}, 0, v{v}, vcc")
    red(s, [v], [t], (1, 2, 4, 8), True, False)
    s(f"v_mul_f32 v{v}, 0x3ae38e39, v{v}")
    s(f"v_cvt_pk_bf16_f32 v{t}, v{m}, v{v}")
    s(f"v_and_b32 v{v}, 0xffff0000, v{t}")
    s(f"v_lshlrev_b32 v{m}, 16, v{t}")
    s(f"v_add_f32 v{v}, 0x3727c5ac, v{v}")
    rnd1(s, v)
    s(f"v_sqrt_f32 v{v}, v{v}")
    for e in range(0, 24, 2):
        s(f"v_pk_add_f32 {vr(D + e, 2)}, {vr(X + e, 2)}, {vr(m, 2)} op_sel_hi:[1,0] neg_lo:[0,1] neg_hi:[0,1]")
    rnd1(s, v)
    s(f"v_rcp_f32 v{v}, v{v}")
    pack(s, XR, D, 12)
    unpack(s, D, XR, 12)
    for e in range(0, 24, 2):
        s(f"v_pk_mul_f32 {vr(D + e, 2)}, {vr(D + e, 2)}, {vr(v, 2)} op_sel_hi:[1,0]")
    pack(s, XR, D, 12)
    unpack(s, D, XR, 12)
    G0, a0, a1 = WV, vT, vT + 1
    s("s_mul_i32 s36, s3, 72")
    s(f"v_add_u32 v{a0}, s36, v1")
    s(f"v_and_b32 v{a1}, 7, v1")
    s("s_add_u32 s36, s36, 64")
    s(f"v_add_u32 v{a1}, s36, v{a1}")
    s(f"s_movk_i32 s36, {L_MOD}")
    for a_, d in ((a0, vT + 2), (a1, vT + 3)):
        s(f"v_and_b32 v{vT + 4}, 3, v{a_}")
        s(f"v_lshlrev_b32 v{vT + 4}, 4, v{vT + 4}")
        s(f"v_lshrrev_b32 v{a_}, 2, v{a_}")
        s(f"v_lshl_add_u32 v{d}, v{a_}, 7, v{vT + 4}")
        s(f"v_and_b32 v{vT + 5}, 1, v{a_}")
        s(f"v_lshl_add_u32 v{vT + 4}, v{vT + 5}, 3, v{vT + 4}")
        s(f"v_lshrrev_b32 v{a_}, 1, v{a_}")
        s(f"v_lshl_add_u32 v{a_}, v{a_}, 6, v{vT + 4}")
        s(f"v_add_u32 v{a_}, s36, v{a_}")
    if OPT['qt'] == 3:
        s(f"buffer_load_dword v{PF + 2}, v{vQ}, {sr(K.SRD_Q, 4)}, s{K.sWQ} offen", 'PF')
    for c in range(OPT['nq0']):
        for op in K.wq_tile(c, 0) + K.wq_tile(c, 1):
            K.emit_op(s, op)
    s("Lhead_tour:")
    s(f"s_mov_b32 s38, {SPIN}")
    st(4)
    s("Lhead_pollm:")
    s(f"buffer_load_dwordx4 {vr(G0, 4)}, v{vT + 2}, {sr(SW, 4)}, s37 offen sc1")
    s(f"buffer_load_dwordx4 {vr(G0 + 4, 4)}, v{vT + 3}, {sr(SW, 4)}, s37 offen sc1")
    s("s_sub_u32 s38, s38, 1")
    s("s_cbranch_scc1 Lhead_gotm")
    s("@drain")
    for r in (1, 3, 5, 7):
        s(f"v_xor_b32 v{G0 + r}, s{K.sTAG}, v{G0 + r}")
    s(f"v_or3_b32 v{G0 + 1}, v{G0 + 1}, v{G0 + 3}, v{G0 + 5}")
    s(f"v_or_b32 v{G0 + 1}, v{G0 + 1}, v{G0 + 7}")
    s(f"v_cmp_ne_u32 vcc, 0, v{G0 + 1}")
    s("s_cbranch_vccnz Lhead_pollm")
    s("Lhead_gotm:")
    s("@drain")
    s(f"ds_write2_b32 v{a0}, v{G0}, v{G0 + 2} offset0:0 offset1:1")
    s(f"ds_write2_b32 v{a1}, v{G0 + 4}, v{G0 + 6} offset0:0 offset1:1")
    s("@lgkm 0")
    s("s_barrier")
    st(5)
    for i in range(3):
        s(f"ds_read_b128 {vr(X + 4 * i, 4)}, v{vM} offset:{L_MOD + 1152 + 384 * i}")
    for i in range(3):
        s(f"ds_read_b128 {vr(X + 12 + 4 * i, 4)}, v{vM} offset:{L_MOD + 384 * i}")
    unpack(s, C1, X, 12)
    for e in range(0, 24, 2):
        s(f"v_pk_mul_f32 {vr(D + e, 2)}, {vr(D + e, 2)}, {vr(C1 + e, 2)}")
    pack(s, XR, D, 12)
    unpack(s, SA, X + 12, 12)
    unpack(s, D, XR, 12)
    for i in range(3):
        for e in range(8 * i, 8 * i + 8, 2):
            s(f"v_pk_add_f32 {vr(D + e, 2)}, {vr(D + e, 2)}, {vr(SA + e, 2)}")
        pack(s, XR + 4 * i, D + 8 * i, 4)
        s(f"buffer_store_dwordx4 {vr(XR + 4 * i, 4)}, v{vP}, {sr(SW, 4)}, s92 offen offset:{768 * i} sc1", 'HS')
    s("s_lshl_b32 s36, s5, 13")
    s(f"s_add_u32 s36, s36, {WS_HFLAG}")
    s("s_lshl_b32 s37, s4, 9")
    s("s_add_u32 s37, s37, s36")
    s("s_lshl_b32 s38, s3, 7")
    s("s_add_u32 s37, s37, s38")
    s("s_lshl_b32 s38, s3, 11")
    s("s_add_u32 s36, s36, s38")
    s(f"v_min_u32 v{vT}, 1, v1")
    s(f"v_lshlrev_b32 v{vT}, 31, v{vT}")
    s(f"v_and_b32 v{vT + 1}, 15, v1")
    s(f"v_lshlrev_b32 v{vT + 1}, 7, v{vT + 1}")
    s("v_cmp_gt_u32 vcc, 162, v0")
    for e in range(4):
        s(f"v_mov_b32 v{WV + e}, -1")
    s("s_mul_i32 s39, s2, 2592")
    s(f"s_add_u32 s39, s39, {WS_Y}")
    s(f"v_lshl_add_u32 v{vT + 2}, v0, 4, s39")
    s("s_lshl_b32 s39, s2, 7")
    s(f"s_add_u32 s39, s39, {WS_KEY}")
    s(f"v_mov_b32 v{vT + 3}, s39")
    s(f"v_cndmask_b32 v{vT + 2}, v{vT + 3}, v{vT + 2}, vcc")
    s("s_lshl_b32 s92, s5, 13")
    s(f"s_add_u32 s92, s92, {WS_FLAG}")
    s("s_add_u32 s92, s92, s38")
    s("s_lshl_b32 s38, s4, 7")
    s("s_add_u32 s92, s92, s38")
    s("s_getreg_b32 s38, hwreg(HW_REG_XCC_ID, 0, 4)")
    s(f"s_add_u32 s38, s38, s{K.sTAG}")
    s(f"v_mov_b32 v{vT + 4}, s38")
    for i in range(5):
        s(f"v_mov_b32 v{K.MC + i}, v{CV + i}")
    s(f"v_mov_b32 v{K.MW}, v{vW}")
    s("@vm HS")
    s(f"buffer_store_dword v{UT + 1}, v{vT}, {sr(SW, 4)}, s37 offen sc1")
    st(6)
    if OPT['kt'] == -2:
        for op in touch_ops(K)[1:]:
            K.emit_op(s, op)
    for c in range(OPT['nq0'], nA):
        for op in K.wq_tile(c, 0) + K.wq_tile(c, 1):
            K.emit_op(s, op)
    s(f"s_mov_b32 s38, {SPIN}")
    st(7)
    s("Lhead_pollh:")
    s(f"buffer_load_dword v{vT + 3}, v{vT + 1}, {sr(SW, 4)}, s36 offen sc1")
    s("s_sub_u32 s38, s38, 1")
    s("s_cbranch_scc1 Lhead_goth")
    s("@drain")
    s(f"v_cmp_ne_u32 vcc, s{K.sTAG}, v{vT + 3}")
    s("s_cbranch_vccnz Lhead_pollh")
    s("Lhead_goth:")
    s("@drain")
    st(8)
    assert nA == 3
    for c in range(1):
        for op in K.h_loads(c):
            K.emit_op(s, op)


def touch_ops(K):
    ops = [f"buffer_load_dword v{vT + 5}, v{vQ2}, {sr(K.SRD_Q, 4)}, s{K.sWQ} offen"]
    if True:
        ops += [f"buffer_load_dword v{vT + 6}, v{vK}, {sr(K.SRD_K, 4)}, 0 offen",
                f"buffer_load_dword v{vT + 7}, v{vV}, {sr(K.SRD_V, 4)}, 0 offen"]
    return [([], t, 'PF', []) for t in ops]


def arm_ops(K):
    SW = K.SRD_H
    ops = [f"buffer_store_dword v{vT + 4}, v{vT}, {sr(SW, 4)}, s92 offen offset:12 sc1",
           f"buffer_store_dwordx4 {vr(WV, 4)}, v{vT + 2}, {sr(SW, 4)}, 0 offen sc1"]
    return [([], t, 'ARM', []) for t in ops]
```

```python
import re

TRANS = ('v_exp_f32', 'v_rcp_f32', 'v_rsq_f32', 'v_sqrt_f32', 'v_log_f32')


def regs(op):
    op = op.strip().lstrip('-')
    m = re.fullmatch(r'([va])(\d+)', op)
    if m:
        return {(m.group(1), int(m.group(2)))}
    m = re.fullmatch(r'([va])\[(\d+):(\d+)\]', op)
    if m:
        return {(m.group(1), i) for i in range(int(m.group(2)), int(m.group(3)) + 1)}
    return set()


class Ins:
    def __init__(self, text, tag=None):
        self.text = text
        self.tag = tag
        self.dst = set(); self.src = set(); self.srcC = set(); self.srcAB = set()
        t = text.split(None, 1)
        self.mn = mn = t[0]
        ops = [o.strip() for o in t[1].split(',')] if len(t) > 1 else []
        ops = [o.split()[0] if o else o for o in ops]
        R = [regs(o) for o in ops]
        U = lambda xs: set().union(*xs) if xs else set()
        if mn.endswith(':') or mn.startswith('@'):
            self.k = 'meta'
        elif mn.startswith('v_mfma'):
            self.k = 'mfma'; self.dst = R[0]; self.srcAB = R[1] | R[2]; self.srcC = R[3]
        elif mn.startswith('v_smfmac'):
            self.k = 'mfma'; self.dst = R[0]; self.srcAB = R[1] | R[2] | R[3]; self.srcC = R[0]
        elif mn.startswith('ds_read') or mn.startswith('ds_bperm'):
            self.k = 'ds'; self.dst = R[0]; self.src = U(R[1:])
        elif mn.startswith('ds_'):
            self.k = 'ds'; self.src = U(R)
        elif mn.startswith('buffer_load'):
            self.k = 'vm'
            if text.rstrip().endswith(' lds') or ' lds ' in text:
                self.src = R[0]
            else:
                self.dst = R[0]; self.src = R[1]
        elif mn.startswith('buffer_'):
            self.k = 'vm'; self.src = U(R)
        elif mn.startswith('v_'):
            self.k = 'valu'
            self.dst = R[0]; self.src = U(R[1:])
            if 'swap' in mn:
                self.dst = R[0] | R[1]; self.src = R[0] | R[1]
            if 'fmac' in mn or 'dpp' in mn:
                self.src |= R[0]
        else:
            self.k = 'salu'
        if self.k == 'mfma':
            self.src = self.srcAB | self.srcC

    def states(self):
        if self.k == 'meta':
            return 0
        if self.mn == 's_nop':
            return int(self.text.split()[1]) + 1
        return 1


class Stream:
    def __init__(self):
        self.I = []

    def __call__(self, text, tag=None):
        for line in text.split('\n'):
            line = line.strip()
            if line:
                self.I.append(Ins(line, tag))

    def resolve(self):
        out = []
        ds = []; ds_done = 0
        vm = []; vm_done = 0
        pend_ds = {}; pend_vm = {}
        last_mfma_pos = None
        ds_at_mfma = 0; vm_at_mfma = 0
        self.stats = dict(lgkm=0, vm=0, nop=0)

        def wait(kind, n):
            assert n >= 0
            lim = 15 if kind == 'lgkmcnt' else 63
            return Ins(f"s_waitcnt {kind}({min(n, lim)})")

        for ins in self.I:
            if ins.mn == '@lgkm':
                n = int(ins.text.split()[1])
                out.append(wait('lgkmcnt', n)); ds_done = max(ds_done, len(ds) - n)
                continue
            if ins.mn == '@ds':
                need = max(i for i, x in enumerate(ds) if x.tag == ins.text.split()[1]) + 1
                if need > ds_done:
                    out.append(wait('lgkmcnt', len(ds) - need)); ds_done = need
                continue
            if ins.mn == '@vm':
                tags = ins.text.split()[1].split(',')
                idx = [i for i, x in enumerate(vm) if x.tag in tags]
                assert idx, tags
                need = max(idx) + 1
                force = len(ins.text.split()) > 2
                if need > vm_done or force:
                    assert len(vm) - need <= 63
                    out.append(wait('vmcnt', len(vm) - need)); vm_done = max(need, vm_done)
                continue
            if ins.mn == '@drain':
                out.append(Ins("s_waitcnt vmcnt(0) lgkmcnt(0)")); ds_done = len(ds); vm_done = len(vm)
                continue
            if ins.k == 'meta':
                out.append(ins)
                if ins.mn.endswith(':'):
                    last_mfma_pos = None
                continue
            touched = ins.src | ins.dst
            for kind, q, pend in (('lgkmcnt', ds, pend_ds), ('vmcnt', vm, pend_vm)):
                need = max([pend[r] + 1 for r in touched if r in pend], default=0)
                done = ds_done if kind == 'lgkmcnt' else vm_done
                if need > done:
                    at = ds_at_mfma if kind == 'lgkmcnt' else vm_at_mfma
                    lim = 15 if kind == 'lgkmcnt' else 63
                    if ins.k == 'mfma' and last_mfma_pos is not None and need <= at:
                        n = min(at - need, lim)
                        out.insert(last_mfma_pos, wait(kind, n)); done = at - n
                    else:
                        n = min(len(q) - need, lim)
                        out.append(wait(kind, n)); done = len(q) - n
                    self.stats['lgkm' if kind == 'lgkmcnt' else 'vm'] += 1
                    if kind == 'lgkmcnt':
                        ds_done = done
                    else:
                        vm_done = done
            out.append(ins)
            if ins.k == 'ds':
                for r in ins.dst:
                    pend_ds[r] = len(ds)
                if ins.mn.startswith('ds_write'):
                    for r in ins.src:
                        if r[0] == 'a':
                            pend_ds[r] = len(ds)
                ds.append(ins)
            elif ins.k == 'vm':
                for r in ins.dst:
                    pend_vm[r] = len(vm)
                vm.append(ins)
                assert len(vm) - vm_done <= 63 + 16, 'too many VMEM in flight'
            if ins.k == 'mfma':
                last_mfma_pos = len(out); ds_at_mfma = len(ds); vm_at_mfma = len(vm)
        self.I = self.pad(out)
        return self

    def pad(self, seq):
        out = []
        for ins in seq:
            need = 0
            dist = 0
            for p in reversed(out):
                if dist >= 12:
                    break
                req = 0
                if p.k == 'mfma':
                    npass8 = '32x32' in p.mn
                    if ins.k == 'mfma':
                        if p.dst & ins.srcAB:
                            req = 12 if npass8 else 8
                        elif p.dst & ins.srcC and p.dst != ins.srcC:
                            req = 10 if npass8 else 6
                    elif ins.k in ('valu', 'ds', 'vm'):
                        if p.dst & (ins.src | ins.dst):
                            req = 12 if npass8 else 8
                        elif ins.k == 'valu' and p.srcC & ins.dst:
                            req = 7 if npass8 else 3
                elif p.k == 'valu':
                    if ins.k == 'mfma' and p.dst & ins.src:
                        req = 2
                    elif ins.k == 'valu' and p.dst & ins.src:
                        if 'permlane' in ins.mn or 'dpp' in ins.mn:
                            req = 2
                        elif 'readfirstlane' in ins.mn or 'readlane' in ins.mn:
                            req = 1
                        elif p.mn in TRANS and ins.mn not in TRANS:
                            req = 1
                        elif 'permlane' in p.mn:
                            req = 1
                elif p.k == 'vm' and p.mn.startswith('buffer_store'):
                    if p.src & ins.dst:
                        req = 2
                elif p.k == 'salu' and re.search(r'\sm0,', p.text) and ins.k == 'vm' and ' lds' in ins.text:
                    req = 1
                need = max(need, req - dist)
                dist += p.states()
            if need > 0:
                out.append(Ins(f"s_nop {need - 1}")); self.stats['nop'] += 1
            out.append(ins)
        return out

    def split(self):
        parts = []; cur = ('_head', [])
        for ins in self.I:
            if ins.mn == '@mark':
                parts.append(cur); cur = (ins.text.split()[1], [])
            else:
                cur[1].append(ins.text)
        parts.append(cur)
        return parts
```

```python
from dsl import *
from sched import Stream

M16 = 'v_mfma_f32_16x16x32_bf16'
BIG = 0x80000000
SPIN = 1 << 14
SW, SP, SX, SO, SR, SY = 24, 28, 12, 16, 20, 8
sLU, sLU2 = 38, 39
sOCT, sIDX, sROLE, sA, sB, sC, sT0, sT1, sN = 40, 41, 42, 43, 44, 45, 46, 47, 48
sFL, sPL, sK0, sK1 = 92, 39, 92, 93
pWS = 50
vP, vXC, vX, vM, vR, vTOK, vF, vPL, vZ, POLL = 2, 3, 4, 5, 6, 7, 8, 9, 10, 11
vPD, vXC2, vX2, vM2, vR2 = 54, 55, 58, 59, 60
RAW = ((36, 40, 244), (192, 196, 200), (204, 208, 212), (64, 68, 72), (76, 80, 84), (216, 220, 88))
X1, GA, C1, SB, WR, GB = 12, 96, 120, 144, 168, 192
SEL, SELD = 248, 240
A, H, PKX, PKH, PKO = 64, 216, 36, 64, 144
tM, tV, tT, tU = 48, 50, 52, 62
PB = (0, 64, 32)
HB, WF, DF = 120, 0, 72
L_WG, L_WU, L_WU2, L_WD, L_XCH, L_KEY, L_SEL = 98304, 135168, 40960, 49152, 32768, 36864, 36928


def unpack(s, dst, src, n):
    for i in range(n):
        s(f"v_lshlrev_b32 v{dst + 2 * i}, 16, v{src + i}")
        s(f"v_and_b32 v{dst + 2 * i + 1}, 0xffff0000, v{src + i}")


def pack(s, dst, src, n):
    for i in range(n):
        s(f"v_cvt_pk_bf16_f32 v{dst + i}, v{src + 2 * i}, v{src + 2 * i + 1}")


def rnd1(s, r):
    s(f"v_cvt_pk_bf16_f32 v{r}, v{r}, v{r}")
    s(f"v_and_b32 v{r}, 0xffff0000, v{r}")


def red(s, regs, tmps, rors, x16, x32, op='v_add_f32'):
    for ro in rors:
        for r in regs:
            s(f"{op}_dpp v{r}, v{r}, v{r} row_ror:{ro} row_mask:0xf bank_mask:0xf")
    for sw, on in (('v_permlane16_swap_b32', x16), ('v_permlane32_swap_b32', x32)):
        if on:
            for r, t in zip(regs, tmps):
                s(f"v_mov_b32 v{t}, v{r}")
            for r, t in zip(regs, tmps):
                s(f"{sw} v{r}, v{t}")
            for r, t in zip(regs, tmps):
                s(f"{op} v{r}, v{r}, v{t}")


def top2_lane(s, K, n, k1, k2):
    s(f"v_max_u32 v{k1}, v{K}, v{K + 1}")
    s(f"v_min_u32 v{k2}, v{K}, v{K + 1}")
    for i in range(2, n):
        s(f"v_med3_u32 v{k2}, v{k1}, v{k2}, v{K + i}")
        s(f"v_max_u32 v{k1}, v{k1}, v{K + i}")


def top2_wave(s, k1, k2, p1, p2, t):
    def merge():
        s(f"v_min_u32 v{t}, v{k1}, v{p1}")
        s(f"v_max_u32 v{k1}, v{k1}, v{p1}")
        s(f"v_max3_u32 v{k2}, v{t}, v{k2}, v{p2}")
    for ro in (1, 2, 4, 8):
        s(f"v_mov_b32_dpp v{p1}, v{k1} row_ror:{ro} row_mask:0xf bank_mask:0xf")
        s(f"v_mov_b32_dpp v{p2}, v{k2} row_ror:{ro} row_mask:0xf bank_mask:0xf")
        merge()
    for sw in ('v_permlane16_swap_b32', 'v_permlane32_swap_b32'):
        s(f"v_mov_b32 v{p1}, v{k1}")
        s(f"v_mov_b32 v{p2}, v{k2}")
        s(f"{sw} v{k1}, v{p1}")
        s(f"{sw} v{k2}, v{p2}")
        merge()


def srd(s, *args):
    a = Asm(); a.srd(*args); s(a.text())


def fin(s):
    s.resolve()
    return [t for _, ls in s.split() for t in ls]


def stamp(s, diag, i, fine=False):
    if diag and (fine == (OPT['fine'] == 4) or i in (0, 7)):
        s(f"s_memrealtime {sr(60 + 2 * i, 2)}")


def prepare():
    L = []
    s = L.append
    t0, t1, t2, t3 = 240, 241, 242, 243
    s(f"s_lshl_b32 s{sOCT}, s5, 4")
    s(f"s_add_u32 s{sOCT}, s{sOCT}, s4")
    s(f"v_and_b32 v{t0}, 31, v1")
    s(f"v_lshrrev_b32 v{t1}, 5, v1")
    s(f"v_cmp_gt_u32 vcc, 8, v{t0}")
    s(f"v_mov_b32 v{t2}, {BIG}")
    s(f"s_lshl_b32 s{sA}, s{sOCT}, 3")
    s(f"s_lshl_b32 s{sB}, s3, 1")
    s(f"s_add_u32 s{sA}, s{sA}, s{sB}")
    s(f"v_cndmask_b32 v{t2}, v{t2}, 0, vcc")
    s(f"v_add_u32 v{vTOK}, s{sA}, v{t1}")
    s(f"v_lshlrev_b32 v{vM}, 4, v{t0}")
    s(f"v_lshlrev_b32 v{t3}, 4, v{t1}")
    s(f"v_lshl_add_u32 v{vP}, v{t0}, 5, v{t3}")
    s(f"s_mul_i32 s{sB}, s{sA}, {PAIR // 2}")
    s(f"v_lshrrev_b32 v{t3}, 2, v{t0}")
    s(f"v_lshlrev_b32 v{t3}, 6, v{t3}")
    s(f"v_and_b32 v{t1}, 3, v{t0}")
    s(f"v_lshl_add_u32 v{vXC}, v{t1}, 3, v{t3}")
    s(f"v_mul_u32_u24 v{t3}, 1152, v{vTOK}")
    s(f"v_add_u32 v{vX}, v{t3}, v{vXC}")
    s(f"v_lshl_add_u32 v{vR}, v{t3}, 1, v{vM}")
    for d, r in ((vXC2, vXC), (vX2, vX), (vM2, vM), (vR2, vR)):
        s(f"v_or_b32 v{d}, v{r}, v{t2}")
    s(f"v_lshrrev_b32 v{t3}, 4, v1")
    s(f"v_lshlrev_b32 v{t3}, 8, v{t3}")
    s(f"v_and_b32 v{t1}, 7, v1")
    s(f"v_lshl_add_u32 v{t3}, v{t1}, 5, v{t3}")
    s(f"v_and_b32 v{t1}, 8, v1")
    s(f"v_lshl_add_u32 v{vPD}, v{t1}, 1, v{t3}")
    s(f"s_lshr_b32 s{sIDX}, s2, 3")
    for d, n in ((SX, 'x'), (SO, 'out')):
        s(f"s_mov_b32 s{d + 2}, {SZ[n]}")
        s(f"s_mov_b32 s{d + 3}, 0x20000")
    s((f"s_add_u32 s{SY}, s{pWS}, {WS_Y}", f"s_addc_u32 s{SY + 1}, s{pWS + 1}, 0"))
    s(f"s_mov_b32 s{SY + 2}, {Y_BYTES}")
    s(f"s_mov_b32 s{SY + 3}, 0x20000")
    s(f"s_lshl_b32 s{sPL}, s5, 13")
    s(f"s_add_u32 s{sPL}, s{sPL}, {WS_FLAG}")
    s(f"s_lshr_b32 s{sC}, s4, 2")
    s(f"s_lshl_b32 s{sC}, s{sC}, 11")
    s(f"s_add_u32 s{sPL}, s{sPL}, s{sC}")
    s(f"v_and_b32 v{vPL}, 15, v1")
    s(f"v_lshlrev_b32 v{vPL}, 7, v{vPL}")
    s(f"v_lshrrev_b32 v{t0}, 4, v1")
    s(f"v_bfe_u32 v{t1}, v1, 2, 2")
    s(f"v_cmp_eq_u32 s[54:55], v{t0}, v{t1}")
    s(f"v_and_b32 v{t0}, 1, v1")
    s(f"v_lshlrev_b32 v{t0}, 4, v{t0}")
    s(f"v_mov_b32 v{t1}, 0x3f80")
    s(f"v_lshlrev_b32 v{t0}, v{t0}, v{t1}")
    s(f"v_bfe_i32 v{t1}, v1, 1, 1")
    s(f"v_and_b32 v{SELD + 3}, v{t0}, v{t1}")
    s(f"v_xor_b32 v{SELD + 2}, v{t0}, v{SELD + 3}")
    s(f"v_cndmask_b32 v{SEL + 2}, 0, v{SELD + 2}, s[54:55]")
    s(f"v_cndmask_b32 v{SEL + 3}, 0, v{SELD + 3}, s[54:55]")
    for r in (SEL, SEL + 1, SEL + 4, SEL + 5, SELD, SELD + 1):
        s(f"v_mov_b32 v{r}, 0")
    s(None)
    s(f"s_and_b32 s{sROLE}, s2, 7")
    s(f"s_mov_b64 {sr(SR, 2)}, s[52:53]")
    s(f"s_mov_b32 s{SR + 2}, {SZ['wr']}")
    s(f"s_mov_b32 s{SR + 3}, 0x20000")

    def mod(dst, which):
        return [([f"s_mov_b32 s{sC}, {WS_MODP + 1152 * which}"] if i == 0 else [],
                 f"buffer_load_dwordx4 {vr(dst[i], 4)}, v{vM2 if i == 2 else vM}, {sr(SW, 4)}, s{sC} offen offset:{512 * i} sc1", 'R', []) for i in range(3)]

    def row(dst, voff, srd_):
        return [([], f"buffer_load_dwordx2 {vr(dst[i] + 2 * u, 2)}, v{voff[i == 2]}, {sr(srd_, 4)}, 0 offen offset:{512 * i + 32 * u}", 'R', [])
                for i in range(3) for u in range(2)]
    return L, row(RAW[0], (vX, vX2), SX) + mod(RAW[1], 2) + mod(RAW[2], 4), mod(RAW[3], 3) + row(RAW[4], (vXC, vXC2), SR) + mod(RAW[5], 5)


def pointer_loads():
    return [f"s_load_dwordx2 {sr(SX, 2)}, s[0:1], {KA['x']}", f"s_load_dwordx2 {sr(SO, 2)}, s[0:1], {KA['out']}",
            f"s_load_dwordx2 s[52:53], s[0:1], {KA['wr']}"]


def flag_store():
    return [f"buffer_store_dword v{vZ}, v{vF}, {sr(SW, 4)}, s{sFL} offen sc1", f"s_add_u32 s{sFL}, s{sFL}, 4"]


def flag_poll():
    return f"buffer_load_dword v{POLL}, v{vPL}, {sr(SW, 4)}, s{sPL} offen sc1"


def flag_check(n):
    return [f"v_cmp_ne_u32 s[54:55], s95, v{POLL}", "s_cmp_lg_u64 s[54:55], 0", f"s_cbranch_scc1 Ltail_spin{n}",
            f"Ltail_got{n}:", f"s_add_u32 s{sPL}, s{sPL}, 4"]


def flag_spin(a, n):
    a(f"Ltail_spin{n}:")
    a(f"s_mov_b32 s{sN}, {SPIN}")
    a(f"Ltail_spinl{n}:")
    a(flag_poll())
    a("s_waitcnt vmcnt(0)")
    a(f"v_cmp_ne_u32 s[54:55], s95, v{POLL}")
    a(f"s_sub_u32 s{sN}, s{sN}, 1")
    a(f"s_cbranch_scc1 Ltail_got{n}")
    a("s_cmp_lg_u64 s[54:55], 0")
    a(f"s_cbranch_scc1 Ltail_spinl{n}")
    a(f"s_branch Ltail_got{n}")


def part_loads(i):
    ops = []
    for k in range(4 if i == 2 else 8):
        if i == 2:
            pre, v, off = ([16384] if k == 0 else []), vPD, 1024 * k
        else:
            pre, v, off = ([2048 * k] if k % 2 == 0 else []), vP, 1024 * i + 2048 * (k & 1)
        ops.append(([f"s_add_u32 s{sC}, s{sB}, {x}" for x in pre],
                    f"buffer_load_dwordx4 {ar(PB[i] + 4 * k, 4)}, v{v}, {sr(SP, 4)}, s{sC} offen offset:{off} sc1", 'PL', []))
    return ops


def post(s, diag, fwrites, fdma, emit_op):
    def acc(i):
        for k in range(4 if i == 2 else 8):
            for u in range(2):
                d = vr(A + 8 * i + 4 * u, 4)
                s(f"{M16} {d}, {vr((SELD if i == 2 else SEL) + 2 - 2 * u, 4)}, {ar(PB[i] + 4 * k, 4)}, {'0' if k == 0 else d}")

    def unp(dst, r):
        for i in range(3):
            unpack(s, dst + 8 * i, r[i], 4)

    def resid(i):
        for e in range(8 * i, 8 * i + 8, 2):
            s(f"v_pk_fma_f32 {vr(X1 + e, 2)}, {vr(GA + e, 2)}, {vr(A + e, 2)}, {vr(X1 + e, 2)}")
        pack(s, PKX + 4 * i, X1 + 8 * i, 4)
        unpack(s, X1 + 8 * i, PKX + 4 * i, 4)
        s(f"s_mov_b32 s{sC}, {WS_X1}")
        s(f"buffer_store_dwordx4 {vr(PKX + 4 * i, 4)}, v{vR2 if i == 2 else vR}, {sr(SW, 4)}, s{sC} offen offset:{512 * i} sc1")
        e = X1 + 8 * i
        if i == 0:
            s(f"v_pk_add_f32 {vr(m, 2)}, {vr(e, 2)}, {vr(e + 2, 2)}")
            s(f"v_pk_add_f32 {vr(v, 2)}, {vr(e + 4, 2)}, {vr(e + 6, 2)}")
        else:
            for x in range(4):
                r = (m, v)[x & 1]
                s(f"v_pk_add_f32 {vr(r, 2)}, {vr(r, 2)}, {vr(e + 2 * x, 2)}")
    m, v, t = tM, tV, tT
    stamp(s, diag, 0)
    if diag:
        s("s_memrealtime s[72:73]")
    for dst, r in zip((SB, WR, X1, GA), (RAW[3], RAW[4], RAW[0], RAW[1])):
        unp(dst, r)
    s(f"v_mov_b32 v{SELD + 4}, 0")
    s(f"v_mov_b32 v{SELD + 5}, 0")
    s("@vm ST2")
    s(flag_store()[0])
    stamp(s, diag, 1, True)
    if OPT['c1'] >= 576:
        for x in flag_check(1):
            s(x)
        ops = part_loads(0) + part_loads(2)
    else:
        ops = []
    for op in ops[:OPT['p2']]:
        emit_op(s, op)
    for x in fwrites:
        s(x)
    unp(C1, RAW[2])
    unp(GB, RAW[5])
    s(flag_poll())
    for op in ops[OPT['p2']:]:
        emit_op(s, op)
    if OPT['p2'] < 12:
        for x in flag_check(2):
            s(x)
        for op in part_loads(1):
            emit_op(s, op)
    acc(0)
    acc(2)
    for e in range(8):
        s(f"v_mov_b32_dpp v{A + 16 + e}, v{A + 16 + e} row_ror:8 row_mask:0x4 bank_mask:0xf")
    stamp(s, diag, 2, True)
    if OPT['p2'] >= 12:
        for x in flag_check(2):
            s(x)
    stamp(s, diag, 1)
    stamp(s, diag, 3, True)
    for op in (part_loads(1) if OPT['p2'] >= 12 else []) + (fdma if OPT['wdp'] == 0 else []):
        emit_op(s, op)
    stamp(s, diag, 4, True)
    resid(0)
    resid(2)
    acc(1)
    if OPT['wdp'] == 1:
        for op in fdma:
            emit_op(s, op)
    stamp(s, diag, 2)
    stamp(s, diag, 5, True)
    resid(1)
    s(f"v_pk_add_f32 {vr(m, 2)}, {vr(m, 2)}, {vr(v, 2)}")
    s(f"v_add_f32 v{m}, v{m}, v{m + 1}")
    red(s, [m], [t], (1, 2, 4, 8), True, False)
    s(f"v_mul_f32 v{m}, 0x3ae38e39, v{m}")
    for e in range(0, 24, 2):
        s(f"v_pk_add_f32 {vr(H + e, 2)}, {vr(X1 + e, 2)}, {vr(m, 2)} op_sel_hi:[1,0] neg_lo:[0,1] neg_hi:[0,1]")

    def dot(p, q, mask):
        for e in range(0, 8, 2):
            for r, o in ((v, 0), (t, 8), (tU, 16)):
                if e == 0:
                    s(f"v_pk_mul_f32 {vr(r, 2)}, {vr(p + o, 2)}, {vr(q + o, 2)}")
                else:
                    s(f"v_pk_fma_f32 {vr(r, 2)}, {vr(p + o + e, 2)}, {vr(q + o + e, 2)}, {vr(r, 2)}")
        s(f"v_pk_add_f32 {vr(v, 2)}, {vr(v, 2)}, {vr(t, 2)}")
        s(f"v_add_f32 v{tU}, v{tU}, v{tU + 1}")
        s(f"v_add_f32 v{v}, v{v}, v{v + 1}")
        if mask:
            s(f"v_cndmask_b32 v{tU}, 0, v{tU}, vcc")
        s(f"v_add_f32 v{v}, v{v}, v{tU}")
    dot(H, H, True)
    red(s, [v], [t], (1, 2, 4, 8), True, False)
    s(f"v_mul_f32 v{v}, 0x3ae38e39, v{v}")
    s(f"v_cvt_pk_bf16_f32 v{t}, v{m}, v{v}")
    s(f"v_and_b32 v{v}, 0xffff0000, v{t}")
    s(f"v_lshlrev_b32 v{t}, 16, v{t}")
    s(f"v_add_f32 v{v}, 0x3727c5ac, v{v}")
    s(f"v_sub_f32 v{m}, v{m}, v{t}")
    rnd1(s, v)
    s(f"v_sqrt_f32 v{v}, v{v}")
    rnd1(s, v)
    s(f"v_rcp_f32 v{v}, v{v}")
    s(f"s_mov_b32 s{sC}, {WS_H2}")
    s(f"v_mul_f32 v{m}, v{m}, v{v}")
    for e in range(0, 24, 2):
        s(f"v_pk_fma_f32 {vr(H + e, 2)}, {vr(H + e, 2)}, {vr(v, 2)}, {vr(m, 2)} op_sel_hi:[1,0,0]")
    for e in range(0, 24, 2):
        s(f"v_pk_fma_f32 {vr(H + e, 2)}, {vr(H + e, 2)}, {vr(C1 + e, 2)}, {vr(SB + e, 2)}")
    pack(s, PKH, H, 12)
    for i in range(3):
        s(f"buffer_store_dwordx4 {vr(PKH + 4 * i, 4)}, v{vR2 if i == 2 else vR}, {sr(SW, 4)}, s{sC} offen offset:{512 * i} sc1")
    unpack(s, H, PKH, 12)
    dot(H, WR, False)
    s(f"v_lshlrev_b32 v{m}, 2, v{vTOK}")
    s(f"v_and_b32 v{m}, 28, v{m}")
    s(f"v_sub_u32 v{m + 1}, 2047, v{vTOK}")
    red(s, [v], [t], (1, 2, 4, 8), True, False)
    s(f"v_ashrrev_i32 v{t}, 31, v{v}")
    s(f"v_or_b32 v{t}, 0x80000000, v{t}")
    s(f"v_xor_b32 v{t}, v{t}, v{v}")
    s(f"v_and_b32 v{t}, 0xfffff800, v{t}")
    s(f"v_min_u32 v{t}, 0xfffff000, v{t}")
    s(f"v_or_b32 v{t}, v{t}, v{m + 1}")
    s("s_mov_b32 exec_lo, 1")
    s("s_mov_b32 exec_hi, 1")
    s(f"ds_write_b32 v{m}, v{t} offset:{L_KEY}")
    s("s_mov_b64 exec, -1")
    stamp(s, diag, 3)
    s("@lgkm 0")
    s("s_barrier")
    stamp(s, diag, 4)


def default_out():
    s = Stream()
    T = GB
    for e in range(0, 24, 2):
        s(f"v_pk_mul_f32 {vr(T + e, 2)}, {vr(T + e, 2)}, {vr(H + e, 2)}")
    pack(s, PKO, T, 12)
    unpack(s, T, PKO, 12)
    for e in range(0, 24, 2):
        s(f"v_pk_add_f32 {vr(T + e, 2)}, {vr(T + e, 2)}, {vr(X1 + e, 2)}")
    pack(s, PKO, T, 12)
    return fin(s)


KK, k1, k2, vKA, vKL = 128, 136, 137, 140, 141


def publish():
    s = Stream()
    s(f"v_mov_b32 v{vKL}, {L_KEY}")
    s(f"ds_read_b128 {vr(KK, 4)}, v{vKL}")
    s(f"ds_read_b128 {vr(KK + 4, 4)}, v{vKL} offset:16")
    s(f"s_lshl_b32 s{sC}, s2, 7")
    s(f"s_add_u32 s{sC}, s{sC}, {WS_KEY}")
    top2_lane(s, KK, 8, k1, k2)
    s(f"buffer_store_dwordx2 {vr(k1, 2)}, v{vF}, {sr(SW, 4)}, s{sC} offen sc1")
    return fin(s)


def route(diag):
    s = Stream()
    s(f"v_lshlrev_b32 v{vKA}, 7, v0")
    s(f"s_mov_b32 s{sC}, {WS_KEY}")
    s(f"s_lshl_b32 s36, s3, 3")
    s(f"v_mov_b32 v{vKL}, s36")
    s(f"s_mov_b32 s{sN}, {SPIN}")
    s("Ltail_pollk:")
    s(f"buffer_load_dwordx2 {vr(k1, 2)}, v{vKA}, {sr(SW, 4)}, s{sC} offen sc1")
    s(f"s_sub_u32 s{sN}, s{sN}, 1")
    s("s_cbranch_scc1 Ltail_gotk")
    s(f"v_max_u32 v138, v{k1}, v{k2}")
    s(f"v_cmp_eq_u32 vcc, -1, v138")
    s("s_cbranch_vccnz Ltail_pollk")
    s("Ltail_gotk:")
    s("s_waitcnt vmcnt(0)")
    top2_wave(s, k1, k2, 138, 139, 142)
    s(f"ds_write_b64 v{vKL}, {vr(k1, 2)} offset:{L_SEL}")
    s(f"v_mov_b32 v{vKL}, {L_SEL}")
    s("@lgkm 0")
    s("s_barrier")
    s(f"ds_read_b128 {vr(KK, 4)}, v{vKL}")
    s(f"ds_read_b128 {vr(KK + 4, 4)}, v{vKL} offset:16")
    s("s_or_b32 s36, s2, s3")
    s(f"s_cselect_b32 s{sC}, -4, {WS_EPOCH}")
    s("s_add_u32 s36, s94, 1")
    s("v_mov_b32 v138, s36")
    s(f"buffer_store_dword v138, v{vF}, {sr(SW, 4)}, s{sC} offen")
    top2_lane(s, KK, 8, k1, k2)
    s(f"v_readfirstlane_b32 s{sK0}, v{k1}")
    s(f"v_readfirstlane_b32 s{sK1}, v{k2}")
    s(f"s_andn2_b32 s{sT0}, 0x7ff, s{sK0}")
    s(f"s_andn2_b32 s{sT1}, 0x7ff, s{sK1}")
    return fin(s)


def store_out(s):
    s(f"v_cmp_ne_u32 vcc, s{sT0}, v{vTOK}")
    s(f"v_cmp_ne_u32 s[36:37], s{sT1}, v{vTOK}")
    s(f"v_mov_b32 v31, {BIG}")
    s("s_and_b64 vcc, vcc, s[36:37]")
    s("s_nop 1")
    s(f"v_cndmask_b32 v30, v31, v{vX2}, vcc")
    s(f"v_cndmask_b32 v31, v31, v{vX}, vcc")
    for i in range(3):
        for u in range(2):
            s(f"buffer_store_dwordx2 {vr(PKO + 4 * i + 2 * u, 2)}, v{30 if i == 2 else 31}, {sr(SO, 4)}, 0 offen offset:{512 * i + 32 * u}")


def ffn_frags():
    s = Stream()
    s(f"s_mov_b32 s{sLU}, {L_WU}")
    s(f"s_mov_b32 s{sLU2}, {L_WU2 - 14 * 2048}")
    s("v_lshrrev_b32 v9, 2, v1")
    s("v_and_b32 v10, 3, v1")
    s("v_lshlrev_b32 v10, 3, v10")
    s(f"s_and_b32 s{sC}, s3, 1")
    s(f"s_lshl_b32 s{sC}, s{sC}, 5")
    s("v_lshl_add_u32 v11, v9, 6, v10")
    s(f"v_add_u32 v11, s{sC}, v11")
    s("s_cmp_lt_u32 s3, 2")
    s(f"s_cselect_b32 s{sB}, {L_WG}, s{sLU}")
    s(f"s_cselect_b32 s{sC}, {L_WG}, s{sLU2}")
    s(f"v_add_u32 v12, s{sC}, v11")
    s(f"v_add_u32 v11, s{sB}, v11")
    for k in range(18):
        for u in range(2):
            s(f"ds_read_b64_tr_b16 {ar(WF + 4 * k + 2 * u, 2)}, v{11 if k < 14 else 12} offset:{2048 * k + 1024 * u}")
    s("v_mul_u32_u24 v12, 1152, v9")
    s(f"s_lshl_b32 s{sB}, s3, 7")
    s(f"s_add_u32 s{sB}, s{sB}, {L_WD}")
    s(f"v_add3_u32 v12, v12, v10, s{sB}")
    s("v_lshlrev_b32 v13, 4, v1")
    s(f"v_add_u32 v13, {L_XCH}, v13")
    s(f"s_lshl_b32 s{sB}, s3, 10")
    s(f"v_add_u32 v14, s{sB}, v13")
    s("v_bfe_u32 v15, v1, 2, 2")
    for g in range(4):
        s(f"v_cmp_eq_u32 s[{52 + 2 * g}:{53 + 2 * g}], {g}, v15")
    s(f"s_mul_i32 s{sA}, s{sROLE}, 18")
    s(f"s_add_u32 s{sA}, s{sA}, s{sIDX}")
    s(f"s_lshl_b32 s{sA}, s{sA}, 9")
    s(f"s_mul_i32 s{sB}, s3, 73728")
    s(f"s_add_u32 s{sA}, s{sA}, s{sB}")
    s("v_lshlrev_b32 v15, 3, v1")
    return fin(s)


def ffn(diag):
    s = Stream()
    s(f"s_mul_i32 s{sB}, s{sT0}, 2304")
    s(f"s_mul_i32 s{sC}, s{sT1}, 2304")
    s(f"s_sub_u32 s{sC}, s{sC}, s{sB}")
    s("v_and_b32 v8, 1, v1")
    s(f"v_mul_lo_u32 v8, v8, s{sC}")
    s("v_and_b32 v9, 48, v1")
    s(f"v_add3_u32 v8, v8, v9, s{sB}")
    s(f"s_mov_b32 s{sC}, {WS_H2}")
    s(f"s_mov_b32 s{sN}, {SPIN}")
    s("Ltail_pollh:")
    for k in range(18):
        s(f"buffer_load_dwordx4 {ar(HB + 4 * k, 4)}, v8, {sr(SW, 4)}, s{sC} offen offset:{64 * k} sc1")
    for z in range(3):
        for g in range(4):
            for u in range(2):
                s(f"ds_read_b64_tr_b16 {ar(DF + 16 * z + 4 * g + 2 * u, 2)}, v12 offset:{18432 * u + 512 * z + 32 * g}")
    for k in range(18):
        d = vr(16 + 4 * (k & 1), 4)
        s(f"{M16} {d}, {ar(WF + 4 * k, 4)}, {ar(HB + 4 * k, 4)}, {'0' if k < 2 else d}")
    s(f"s_sub_u32 s{sN}, s{sN}, 1")
    s("v_pk_add_f32 v[16:17], v[16:17], v[20:21]")
    s("v_pk_add_f32 v[18:19], v[18:19], v[22:23]")
    s("s_cbranch_scc1 Ltail_goth")
    s("v_cmp_u_f32 vcc, v16, v16")
    s("s_cbranch_vccnz Ltail_pollh")
    s("Ltail_goth:")
    stamp(s, diag, 6)
    s("ds_write_b128 v14, v[16:19]")
    s("@lgkm 0")
    s("s_barrier")
    G, Uu, E = 16, 24, 32
    for w in range(4):
        s(f"ds_read_b128 {vr(G + 4 * w, 4)}, v13 offset:{1024 * w}")
    s(f"s_mov_b32 s36, 0xbfb8aa3b")
    s(f"s_mov_b32 s37, 0xbfb8aa3b")
    pack(s, E, G, 4)
    unpack(s, G, E, 4)
    for e in range(0, 8, 2):
        s(f"v_pk_mul_f32 {vr(E + e, 2)}, {vr(G + e, 2)}, s[36:37]")
    for e in range(8):
        s(f"v_exp_f32 v{E + e}, v{E + e}")
    pack(s, 60, Uu, 4)
    for e in range(0, 8, 2):
        s(f"v_pk_add_f32 {vr(E + e, 2)}, {vr(E + e, 2)}, 1.0 op_sel_hi:[1,0]")
    for e in range(8):
        s(f"v_rcp_f32 v{E + e}, v{E + e}")
    unpack(s, Uu, 60, 4)
    for e in range(0, 8, 2):
        s(f"v_pk_mul_f32 {vr(G + e, 2)}, {vr(G + e, 2)}, {vr(E + e, 2)}")
    pack(s, E, G, 4)
    unpack(s, G, E, 4)
    for e in range(0, 8, 2):
        s(f"v_pk_mul_f32 {vr(G + e, 2)}, {vr(G + e, 2)}, {vr(Uu + e, 2)}")
    pack(s, E, G, 4)
    for g in range(4):
        for e in range(4):
            s(f"v_cndmask_b32 v{64 + 4 * g + e}, 0, v{E + e}, s[{52 + 2 * g}:{53 + 2 * g}]")
    for z in range(3):
        for g in range(4):
            d = vr(16 + 4 * z, 4)
            s(f"{M16} {d}, {vr(64 + 4 * g, 4)}, {ar(DF + 16 * z + 4 * g, 4)}, {'0' if g == 0 else d}")
    for z in range(3):
        for e in range(2):
            s(f"v_min_u32 v{16 + 4 * z + e}, -2, v{16 + 4 * z + e}")
        s(f"buffer_store_dwordx2 {vr(16 + 4 * z, 2)}, v15, {sr(SY, 4)}, s{sA} offen sc1")
        if z < 2:
            s(f"s_add_u32 s{sA}, s{sA}, {4 * 73728}")
    store_out(s)
    return fin(s)


def final(diag):
    s = Stream()
    s(f"s_mul_i32 s{sA}, s{sROLE}, 9")
    s(f"s_add_u32 s{sA}, s{sA}, s{sIDX}")
    s(f"s_sub_u32 s{sA}, s{sA}, 18")
    s("v_bfe_u32 v8, v1, 2, 1")
    s("v_cmp_eq_u32 vcc, 1, v8")
    s(f"v_mov_b32 v9, s{sT0}")
    s(f"v_mov_b32 v10, s{sT1}")
    s("v_and_b32 v11, 3, v1")
    s("v_cndmask_b32 v9, v9, v10, vcc")
    s(f"s_lshr_b32 s{sB}, s{sA}, 2")
    s(f"s_lshl_b32 s{sB}, s{sB}, 6")
    s(f"s_and_b32 s{sC}, s{sA}, 1")
    s(f"s_lshl_b32 s{sC}, s{sC}, 5")
    s(f"s_add_u32 s{sB}, s{sB}, s{sC}")
    s(f"s_and_b32 s{sC}, s{sA}, 2")
    s(f"s_lshl_b32 s{sC}, s{sC}, 2")
    s(f"s_add_u32 s{sB}, s{sB}, s{sC}")
    s("v_lshrrev_b32 v12, 1, v11")
    s(f"v_lshl_add_u32 v12, v12, 4, s{sB}")
    s("v_and_b32 v13, 1, v11")
    s("v_lshl_add_u32 v12, v13, 2, v12")
    s("v_mul_u32_u24 v13, 1152, v9")
    s("v_lshl_add_u32 v14, v13, 1, v12")
    s(f"v_add_u32 v15, {WS_H2}, v14")
    s(f"s_mov_b32 s{sC}, {WS_MODP + 5 * 1152}")
    s(f"buffer_load_dword v18, v12, {sr(SW, 4)}, s{sC} offen sc1")
    s(f"v_mov_b32 v19, s{sK0}")
    s(f"v_mov_b32 v10, s{sK1}")
    s("v_cndmask_b32 v19, v19, v10, vcc")
    s("v_and_b32 v19, 0xfffff800, v19")
    s("v_or_b32 v19, 0x400, v19")
    s("v_ashrrev_i32 v10, 31, v19")
    s("v_not_b32 v10, v10")
    s("v_or_b32 v10, 0x80000000, v10")
    s("v_xor_b32 v19, v19, v10")
    s(f"s_lshl_b32 s{sC}, s{sA}, 4")
    s(f"v_lshl_add_u32 v13, v11, 2, v13")
    s(f"v_add_u32 v13, s{sC}, v13")
    s("v_lshrrev_b32 v14, 2, v1")
    s("v_lshlrev_b32 v14, 9, v14")
    s("v_lshl_add_u32 v14, v11, 4, v14")
    s(f"s_lshr_b32 s{sB}, s{sA}, 3")
    s(f"s_mul_i32 s{sB}, s{sB}, 73728")
    s(f"s_and_b32 s{sC}, s{sA}, 7")
    s(f"s_lshl_b32 s{sC}, s{sC}, 6")
    s(f"s_add_u32 s{sB}, s{sB}, s{sC}")
    store_out(s)
    s("v_cmp_eq_u32 s[36:37], 1, v8")
    rnd1(s, 19)
    s("v_mul_f32 v19, 0xbfb8aa3b, v19")
    s("v_exp_f32 v19, v19")
    unpack(s, 24, 18, 1)
    s("v_add_f32 v19, 1.0, v19")
    s("v_rcp_f32 v19, v19")
    s(f"s_mov_b32 s{sN}, {SPIN}")
    rnd1(s, 19)
    Y = 64
    s("Ltail_polly:")
    for i in range(9):
        s(f"s_add_u32 s{sC}, s{sB}, {8192 * i}")
        s(f"buffer_load_dwordx4 {vr(Y + 4 * i, 4)}, v14, {sr(SY, 4)}, s{sC} offen sc1")
    s(f"s_mov_b32 s{sC}, {WS_X1 - WS_H2}")
    s(f"buffer_load_dword v16, v15, {sr(SW, 4)}, s{sC} offen sc1")
    s(f"buffer_load_dword v17, v15, {sr(SW, 4)}, 0 offen sc1")
    s(f"s_sub_u32 s{sN}, s{sN}, 1")
    s("s_cbranch_scc1 Ltail_goty")
    s(f"v_max3_u32 v26, v{Y}, v{Y + 1}, v{Y + 2}")
    for i in range(3, 35, 2):
        s(f"v_max3_u32 v26, v26, v{Y + i}, v{Y + i + 1}")
    s(f"v_max_u32 v26, v26, v{Y + 35}")
    s(f"v_max3_u32 v26, v26, v16, v17")
    s("v_cmp_eq_u32 vcc, -1, v26")
    s("s_cbranch_vccnz Ltail_polly")
    s("Ltail_goty:")
    s("@drain")
    stamp(s, diag, 6)
    unpack(s, 20, 16, 2)
    for i in range(1, 9):
        for e in (0, 2):
            s(f"v_pk_add_f32 {vr(Y + e, 2)}, {vr(Y + e, 2)}, {vr(Y + 4 * i + e, 2)}")
    red(s, [Y, Y + 1, Y + 2, Y + 3], [Y + 4, Y + 5, Y + 6, Y + 7], (4, 8), True, True)
    s(f"v_cndmask_b32 v26, v{Y}, v{Y + 1}, s[36:37]")
    s(f"v_cndmask_b32 v27, v{Y + 2}, v{Y + 3}, s[36:37]")

    def r2():
        pack(s, 28, 26, 1); unpack(s, 26, 28, 1)
    r2()
    s("v_mul_f32 v26, v26, v19")
    s("v_mul_f32 v27, v27, v19")
    r2()
    s("v_pk_add_f32 v[26:27], v[26:27], v[22:23]")
    r2()
    s("v_pk_mul_f32 v[26:27], v[26:27], v[24:25]")
    r2()
    s("v_pk_add_f32 v[26:27], v[26:27], v[20:21]")
    pack(s, 28, 26, 1)
    s("s_mov_b64 exec, 0xff")
    s(f"buffer_store_dword v28, v13, {sr(SO, 4)}, 0 offen")
    return fin(s)


def body(a, diag):
    a("s_cmp_lg_u32 s3, 0")
    a("s_cbranch_scc1 Ltail_notw0")
    for t in publish():
        a(t)
    a("Ltail_notw0:")
    for t in default_out() + ffn_frags() + route(diag):
        a(t)
    stamp(a, diag, 5)
    a(f"s_cmp_ge_u32 s{sIDX}, 18")
    a("s_cbranch_scc1 Ltail_noffn")
    for t in ffn(diag):
        a(t)
    a("s_branch Ltail_done")
    a("Ltail_noffn:")
    a(f"s_cmp_lt_u32 s{sIDX}, 27")
    a("s_cselect_b32 s36, s3, 1")
    a("s_cmp_eq_u32 s36, 0")
    a("s_cbranch_scc1 Ltail_final")
    s = Stream(); store_out(s)
    for t in fin(s):
        a(t)
    a("s_branch Ltail_done")
    a("Ltail_final:")
    for t in final(diag):
        a(t)
    a("Ltail_done:")


def dump_stamps(a, n, region):
    a("s_waitcnt vmcnt(0)")
    stamp(a, True, n - 1)
    a("s_waitcnt lgkmcnt(0)")
    a("s_mov_b64 exec, -1")
    a.srd(SX, pWS, 1024 * 64, region)
    a("s_lshl_b32 s36, s2, 2")
    a("s_add_u32 s36, s36, s3")
    a("s_lshl_b32 s36, s36, 6")
    a("v_mov_b32 v2, 0")
    for i in range(n):
        a(f"v_mov_b32 v3, s{60 + 2 * i}")
        a(f"buffer_store_dword v3, v2, {sr(SX, 4)}, s36 offen offset:{4 * i}")
```

```python
import sys, os
sys.path.insert(0, os.path.dirname(os.path.abspath(__file__)))
from dsl import *
import attn


def add_timeline(body, idx, name):
    lines = body.split('\n')
    end = f"L{name}_end:"
    epi = f"""    s_waitcnt vmcnt(0)
    s_memrealtime s[92:93]
    s_load_dwordx2 s[84:85], s[0:1], {KA['ws']}
    s_mov_b64 exec, -1
    v_mov_b32 v1, 0
    s_waitcnt lgkmcnt(0)
    s_add_u32 s84, s84, {WS_STAMP + 65536 + idx * 4096}
    s_addc_u32 s85, s85, 0
    s_mov_b32 s86, 4096
    s_mov_b32 s87, 0x20000
    s_lshl_b32 s88, s2, 3
    v_mov_b32 v2, s100
    v_mov_b32 v3, s92
    buffer_store_dwordx2 v[2:3], v1, s[84:87], s88 offen
    s_endpgm"""
    i = next(k for k, l in enumerate(lines) if l.strip() == 's_endpgm')
    lines[i] = epi
    return "    s_memrealtime s[100:101]\n" + '\n'.join(lines)


def build(diag=False):
    ks = []
    for name, fn in ((NAME, lambda: attn.k_attn(diag)),):
        r = fn()
        if len(r) > 3:
            print(name, r[3], file=sys.stderr)
        body = r[0]
        if diag or OPT['tl']:
            body = add_timeline(body, len(ks), name)
        ks.append((name + '_kernel', body, r[1], r[2]))
    ref = open(os.path.join(os.path.dirname(os.path.abspath(__file__)), '..', NAME + '.s.ref')).read()
    head = [l for l in ref.split('\n') if l.startswith(';') and 'launch' not in l.replace('launch list', '').replace('later launches', '') and 'grid=' not in l]
    out = '\n'.join(head) + '\n'
    out += '; Generated by gen/gen.py (hand-written generator).\n'
    for label, _, _, g in ks:
        out += f"; @launch {'kernel=' + label + ' ' if len(ks) > 1 or diag else ''}grid=({g['grid']},1,1) block=({g['block']},1,1) lds={g['lds']}\n"
    out += '.amdgcn_target "amdgcn-amd-amdhsa--gfx950"\n.text\n'
    for label, body, _, _ in ks:
        out += kernel_text(label, body)
    out += '.section .rodata,"a"\n'
    for label, _, nv, _ in ks:
        out += kd_text(label, nv, min(256, (nv + 3) // 4 * 4))
    return out


if __name__ == '__main__':
    diag = '--diag' in sys.argv
    for x in sys.argv[1:]:
        if x.startswith('--') and '=' in x:
            k, v = x[2:].split('=')
            assert k in OPT, k
            OPT[k] = type(OPT[k])(v.replace('+', ' '))
    dst = [x for x in sys.argv[1:] if not x.startswith('--')]
    dst = dst[0] if dst else os.path.join(os.path.dirname(os.path.abspath(__file__)), '..', NAME + '.s')
    open(dst, 'w').write(build(diag))
```

```python
import re, sys, subprocess, tempfile
from dsl import *
from sched import Stream
import tail, head

M16 = 'v_mfma_f32_16x16x32_bf16'
KAD = 8
TA = (12, 20, 28)
DK, DV, DQ, DO = 36, 40, 42, 46
IDX, HV, ONES, STV = 50, 51, 52, 56
RL = 58
Q = 64
ACC = 128
P = 128
NEGM = 192
S = 208
TMP = 216
OBT = (128, 144, 192, 176)
OACC = 192
PK = 224
O = 0
HF = 0
AF = (208, 160)
VF = 160
L = 192
KF = 208
sK, sV, sW, sCNT, sWQ, sWO, sH, sPART, sPASS, sT = 40, 41, 42, 43, 44, 45, 46, 47, 48, 49
SRD_K, SRD_V, SRD_Q, SRD_O, SRD_H, SRD_P, SRD_C = 8, 12, 16, 20, 24, 28, 32
SRD_T, sTCH, sTCH2, TV, TV2 = (32, 80, 84), 39, 38, 57, 62
sFG, sFD, sF = 58, 59, 57
FV, FV2, FW = 254, 255, 51
sWOa, sWOb, sPD, sPR, sOX, sXF, sSAME = 7, 46, 56, 93, 55, 54, 53
sTO, sFM = 52, 6
sAR, AD, AV = 53, 248, 232
SRD_M, sMW = 16, 44
MC, MW, MR, MU, MA = 2, 7, 240, 244, 224
XV, XID = 252, 253
OAC, BUF = 64, 64
sH1 = 43
SRD_D, sEP, sTAG = 88, 94, 95
CNT = 63
QSCALE = 0x3e0293ee
THR = 0x63800000
MOFF = 0xc1c00000
FLAG_LDS = 131072


def tr(dst, base, db, off):
    w = base >> 16
    return f"ds_read_b64_tr_b16 {ar(dst, 2)}, v{TA[w] + db} offset:{(base & 0xffff) + off}"


def dma(voff, srd, soff, p):
    o = f" offset:{1024 * p}" if p else ""
    if srd in (SRD_K, SRD_V) and OPT['kv']:
        o += ' ' + OPT['kv']
    return f"buffer_load_dwordx4 v{voff}, {sr(srd, 4)}, s{soff} offen{o} lds"


def m0(base):
    return f"s_add_u32 m0, s{sW}, {base}"


def tile_ops(kind, base, tag, soff_expr=None):
    ops = []
    for p in range(4):
        pre = []
        if p == 0:
            if soff_expr:
                pre.append(soff_expr)
            pre.append(m0(base))
        if kind == 'K':
            t = dma(DK + p, SRD_K, sK, p)
        elif kind == 'V':
            t = dma(DV + (p & 1), SRD_V, sV, p)
        elif kind == 'Q':
            t = dma(DQ + p, SRD_Q, sT, p)
        else:
            t = dma(DO + p, SRD_O, sT, p)
        post = []
        if p == 3 and kind == 'K':
            post.append(f"s_add_u32 s{sK}, s{sK}, 16384")
        if p == 3 and kind == 'V':
            post.append(f"s_add_u32 s{sV}, s{sV}, 16384")
        ops.append((pre, t, tag, post))
    return ops


def k_tile(k):
    return tile_ops('K', (k % 4) * 16384, f'K{k}')


def v_tile(k):
    return tile_ops('V', 65536 + (k % 4) * 16384, f'V{k}')


def qreg(c):
    return ((c + 1) % 5) * 32768


def wq_tile(c, hh):
    return tile_ops('Q', qreg(c) + 16384 * hh, f'WQ{c}', f"s_add_u32 s{sT}, s{sWQ}, {c * 64 * 8192 + 256 * hh}")


def oreg(c):
    return (0, 2, 1, 3)[c % 4] * 32768


POS = [(0, None), (0, 0), (0, 1), (1, 0), (1, 1), (0, 2), (1, 2), (0, 3), (1, 3)]


def wo_tile(p, tau):
    src, c = POS[p]
    base, col = (sWO, 1024) if c is None else ((sWOa, sWOb)[src], 256 * c)
    return tile_ops('O', oreg(p) + 16384 * tau, f'WO{p}', f"s_add_u32 s{sT}, s{base}, {64 * tau * 1152 + col}")


def h_loads(c):
    ops = []
    for tt in range(2):
        for ks in range(2):
            ops.append(([], f"buffer_load_dwordx4 {ar(HF + 16 * c + 8 * ks + 4 * tt, 4)}, v{HV}, {sr(SRD_H, 4)}, s{sH1 if tt else sH} offen offset:{128 * (2 * c + ks)} sc1", f'H{c}', []))
    return ops


def emit_op(s, op):
    pre, t, tag, post = op
    for x in pre:
        s(x)
    s(t, tag)
    for x in post:
        s(x)


class Gaps:
    def __init__(self):
        self.m = []

    def add(self, text):
        self.m.append(dict(m=text, salu=[], ds=[], vm=[], valu=[], tail=[]))
        return len(self.m) - 1

    def put(self, i, kind, text, tag=None):
        self.m[i][kind].append((text, tag))

    def put_op(self, i, op):
        pre, t, tag, post = op
        for j, x in enumerate(pre):
            self.put(i - len(pre) + j, 'salu', x)
        self.put(i, 'vm', t, tag)
        for x in post:
            self.put(min(i + 1, len(self.m) - 1), 'salu' if i + 1 < len(self.m) else 'tail', x)

    def emit(self, s):
        for i, g in enumerate(self.m[:-1]):
            if OPT['clr'] and g['m'] and g['vm'] and g['ds']:
                self.m[i + 1]['ds'] = g['ds'] + self.m[i + 1]['ds']
                g['ds'] = []
        for g in self.m:
            if g['m']:
                s(g['m'])
            for kind in ('salu', 'ds', 'vm', 'valu', 'tail'):
                for text, tag in g[kind]:
                    s(text, tag)


def stamp(s, diag, i, fine=False):
    if diag and ((OPT['fine'] != 0) == fine or i in (0, 9)):
        s(f"s_memtime {sr(60 + 2 * i, 2)}")


def setup(s):
    s(f"s_lshl_b32 s{sW}, s3, 12")
    s("v_lshrrev_b32 v2, 4, v1")
    s("v_and_b32 v3, 15, v1")
    s("v_lshrrev_b32 v5, 1, v3")
    s("v_mul_u32_u24 v5, 2304, v5")
    s("v_lshl_add_u32 v5, v2, 5, v5")
    s("v_and_b32 v6, 1, v3")
    s(f"v_lshl_add_u32 v{HV}, v6, 4, v5")
    s("s_lshl_b32 s6, s5, 2")
    s("s_add_u32 s6, s6, s3")
    s(f"s_mul_i32 s{sH}, s6, 36864")
    s(f"s_add_u32 s{sH}, s{sH}, {WS_H}")
    s(f"s_add_u32 s{sH1}, s{sH}, 18432")
    s(f"s_mul_i32 s{sWO}, s4, {256 * 1152}")
    s("s_lshl_b32 s7, s3, 4")
    s("v_add_u32 v4, s7, v2")
    s("v_lshlrev_b32 v5, 1, v2")
    s("v_xor_b32 v5, v5, v3")
    s("v_xor_b32 v6, 8, v5")
    s("v_lshlrev_b32 v7, 13, v4")
    s(f"v_lshl_add_u32 v{DQ}, v5, 4, v7")
    s(f"v_lshl_add_u32 v{DQ + 1}, v6, 4, v7")
    s(f"v_add_u32 v{DQ + 2}, {2 * (32768 - 1024)}, v{DQ}")
    s(f"v_add_u32 v{DQ + 3}, {3 * (32768 - 1024)}, v{DQ + 1}")
    s(f"v_add_u32 v{DQ + 1}, {32768 - 1024}, v{DQ + 1}")
    s("s_lshl_b32 s7, s4, 19")
    s(f"s_add_u32 s{SRD_K}, s52, s7")
    s(f"s_addc_u32 s{SRD_K + 1}, s53, 0")
    s(f"s_mov_b32 s{SRD_K + 2}, 524288")
    s(f"s_mov_b32 s{SRD_K + 3}, 0x20000")
    s(f"s_add_u32 s{SRD_V}, s54, s7")
    s(f"s_addc_u32 s{SRD_V + 1}, s55, 0")
    s(f"s_mov_b32 s{SRD_V + 2}, 524288")
    s(f"s_mov_b32 s{SRD_V + 3}, 0x20000")
    a = Asm()
    a.srd(SRD_P, 50, PART_BYTES, WS_PART)
    s(a.text())
    s("v_lshlrev_b32 v7, 8, v4")
    s(f"v_lshl_add_u32 v{DV}, v5, 4, v7")
    s(f"v_lshl_add_u32 v{DV + 1}, v6, 4, v7")
    s(f"v_xor_b32 v{TMP + 8}, v3, v2")
    s(f"v_lshl_add_u32 v{DK}, v{TMP + 8}, 4, v7")
    for p in range(1, 4):
        s(f"v_xor_b32 v{DK + p}, {64 * p}, v{DK}")
    for e, ch in ((0, 5), (1, 6)):
        s(f"v_lshrrev_b32 v7, 3, v{ch}")
        s("v_lshl_add_u32 v7, v7, 7, v4")
        s("v_mul_u32_u24 v7, 1152, v7")
        s(f"v_and_b32 v{TMP + 9}, 7, v{ch}")
        s(f"v_lshl_add_u32 v{DO + e}, v{TMP + 9}, 4, v7")
    s(f"v_add_u32 v{DO + 2}, {2 * (4608 - 1024)}, v{DO}")
    s(f"v_add_u32 v{DO + 3}, {3 * (4608 - 1024)}, v{DO + 1}")
    s(f"v_add_u32 v{DO + 1}, {4608 - 1024}, v{DO + 1}")
    s("v_lshlrev_b32 v7, 8, v3")
    s(f"v_lshl_add_u32 v{KAD}, v{TMP + 8}, 4, v7")
    for k in range(1, 4):
        s(f"v_xor_b32 v{KAD + k}, {64 * k}, v{KAD}")
    s("v_lshrrev_b32 v5, 2, v1")
    s("v_and_b32 v6, 7, v5")
    s("v_lshlrev_b32 v6, 5, v6")
    s("v_lshl_add_u32 v6, v5, 8, v6")
    s("v_and_b32 v7, 3, v1")
    s(f"v_lshl_add_u32 v{TA[0]}, v7, 3, v6")
    for db in range(1, 8):
        s(f"v_xor_b32 v{TA[0] + db}, {32 * db}, v{TA[0]}")
    for w in (1, 2):
        for db in range(8):
            s(f"v_add_u32 v{TA[w] + db}, {65536 * w}, v{TA[0] + db}")
    if OPT['l2']:
        s("v_cmp_gt_u32 s[36:37], 2, v3")
        s("v_mov_b32 v5, 0x3f803f80")
        s("s_nop 0")
        for i in range(4):
            s(f"v_cndmask_b32 v{ONES + i}, 0, v5, s[36:37]")
    else:
        for i in range(4):
            s(f"v_mov_b32 v{ONES + i}, 0x3f803f80")
    s("v_and_b32 v5, 1, v1")
    s("v_mul_u32_u24 v5, 0xaaaa, v5")
    s("v_add_u32 v5, 0x4444, v5")
    s(f"v_lshl_add_u32 v{IDX}, v5, 16, v5")
    s("v_lshrrev_b32 v5, 1, v3")
    s(f"v_mul_u32_u24 v5, {PAIR}, v5")
    s("v_lshl_add_u32 v5, v2, 5, v5")
    s("v_and_b32 v6, 1, v3")
    s(f"v_lshl_add_u32 v{STV}, v6, 4, v5")
    s(f"s_mul_i32 s{sPART}, s6, {16 * PAIR}")
    a = Asm()
    a.srd(SRD_T[0], 82, SZ['wu'])
    a.srd(SRD_T[1], 80, SZ['wg'])
    a.srd(SRD_T[2], 84, SZ['wd'])
    s(a.text())
    s("s_lshr_b32 s7, s2, 3")
    s("s_mul_i32 s7, s7, 18")
    s("s_add_u32 s7, s7, s3")
    s("s_and_b32 s36, s2, 7")
    s("s_mul_i32 s37, s36, 576")
    s("s_add_u32 s37, s37, s7")
    s("s_mul_i32 s37, s37, 1152")
    s("s_mul_i32 s7, s7, 9216")
    s("s_mul_i32 s36, s36, 1152")
    s("s_add_u32 s7, s7, s36")
    s("v_min_u32 v5, 17, v1")
    s(f"v_lshl_add_u32 v{TV}, v5, 6, s7")
    s(f"v_lshl_add_u32 v{TV2}, v5, 6, s37")
    s(f"s_mov_b32 s{sK}, 0")
    s(f"s_mov_b32 s{sV}, 0")
    s(f"s_mov_b32 s{sPASS}, 0")


def qproj(s, diag):
    def rd(n, r):
        c, d = divmod(n, 16)
        ks, u = r >> 1, r & 1
        return tr(VF + 8 * (n % 4) + 4 * ks + 2 * u, qreg(c) + 16384 * (d >> 3), d & 7, 8192 * ks + 4096 * u)
    if OPT['fine'] == 5:
        s("s_memtime s[60:61]")
    s("@vm WQ0")
    s("s_barrier")
    for n in range(3):
        for r in range(4):
            s(rd(n, r))
    for op in h_loads(1):
        emit_op(s, op)
    G = Gaps()
    for n in range(144):
        c, d = divmod(n, 16)
        for tt in range(2):
            for ks in range(2):
                acc = vr(ACC + 8 * d + 4 * tt, 4)
                cin = '0' if (c == 0 and ks == 0) else acc
                i = G.add(f"{M16} {acc}, {ar(VF + 8 * (n % 4) + 4 * ks, 4)}, {ar(HF + 16 * c + 8 * ks + 4 * tt, 4)}, {cin}")
                if n + 3 < 144:
                    G.put(i, 'ds', rd(n + 3, 2 * tt + ks))
    zero = [O + i for i in range(112)] + [L + i for i in range(16)] + [O + i for i in range(112, 128)]
    last = -9
    for c in range(9):
        b = 64 * c
        if c < 8:
            G.put(b + 51, 'tail', f"@vm WQ{c + 1}")
            G.put(b + 51, 'tail', "s_barrier")
        start = -9
        me = sys.modules[__name__]
        tch = head.touch_ops(me)
        if c == 0:
            start = 3
            ops = (wq_tile(2, 0) + wq_tile(2, 1) if OPT['nq2'] == 2 else []) + h_loads(2) + (tch if OPT['kt'] == 0 else tch[:1])
        elif c <= 6:
            start = max(-9, OPT['qs'] - OPT['qd'] * (c - 1))
            ops = wq_tile(c + 2, 0) + wq_tile(c + 2, 1) + h_loads(c + 2)
            if c == OPT['kt']:
                ops += tch[1:]
        elif c == 7:
            ops = k_tile(0) + k_tile(1) + head.arm_ops(me)
        else:
            ops = k_tile(2) + v_tile(0) + v_tile(1)
        for j, op in enumerate(ops):
            assert b + start + 4 * j > last + 2
            G.put_op(b + start + 4 * j, op)
        last = b + start + 4 * (len(ops) - 1)
    free = [i for i in range(64 * 5, 64 * 9) if not G.m[i]['vm'] and not G.m[i - 1]['vm']]
    late = [i for i in free if i >= 64 * 8]
    mid = [i for i in free if 64 * 7 <= i < 64 * 8]
    early = [i for i in free if 64 * 6 <= i < 64 * 7]
    first = [i for i in free if i < 64 * 6]
    zl = list(zero)
    for slots, ok in ((first, lambda r: r < 80 or r >= L), (early, lambda r: r < 96 or r >= L), (mid, lambda r: r < 112 or r >= L), (late, lambda r: True)):
        for i in slots:
            cand = [r for r in zl if ok(r)]
            if cand:
                zl.remove(cand[0]); G.put(i, 'valu', f"v_accvgpr_write_b32 a{cand[0]}, 0")
    for r in zl:
        G.put(575, 'valu', f"v_accvgpr_write_b32 a{r}, 0")
    if OPT['fine'] == 5:
        for c in range(8):
            G.put(64 * c + 1, 'tail', f"s_memtime {sr(62 + 2 * c, 2)}")
        G.put(575, 'tail', "s_memtime s[78:79]")
    G.put(64 * 8 + 55, 'tail', "@vm K0")
    G.put(64 * 8 + 55, 'tail', "s_barrier")
    for k in range(4):
        G.put(64 * 8 + 56 + k, 'ds', kread(0, 0, k))
    G.put(64 * 8 + 60, 'ds', kread(0, 1, 0))
    G.put(64 * 8 + 62, 'salu', f"s_load_dwordx2 {sr(SRD_M, 2)}, s[0:1], {KA['wmod']}")
    G.emit(s)


def kread(k, kb, sidx):
    return f"ds_read_b128 {ar(KF + 16 * (kb & 1) + 4 * sidx, 4)}, v{KAD + sidx} offset:{(k % 4) * 16384 + 4096 * kb}"


def qfinish(s):
    s(f"s_mov_b32 s36, {QSCALE}")
    s(f"s_mov_b32 s37, {QSCALE}")
    for hh in range(2):
        for sx in range(4):
            for tt in range(2):
                q = Q + 16 * (2 * hh + tt) + 4 * sx
                for y in range(2):
                    a0 = ACC + 8 * (8 * hh + 2 * sx + y) + 4 * tt
                    for e in range(2):
                        s(f"v_pk_mul_f32 {vr(a0 + 2 * e, 2)}, {vr(a0 + 2 * e, 2)}, s[36:37]")
                for y in range(2):
                    a0 = ACC + 8 * (8 * hh + 2 * sx + y) + 4 * tt
                    for e in range(2):
                        s(f"v_cvt_pk_bf16_f32 v{q + 2 * y + e}, v{a0 + 2 * e}, v{a0 + 2 * e + 1}")
            for sw in ('v_permlane32_swap_b32', 'v_permlane16_swap_b32'):
                for tt in range(2):
                    q = Q + 16 * (2 * hh + tt) + 4 * sx
                    for e in range(2):
                        s(f"{sw} v{q + e}, v{q + 2 + e}")


def cross_max_to_negm(s, M, off='0'):
    for sw in ('v_permlane16_swap_b32', 'v_permlane32_swap_b32'):
        for qb in range(4):
            s(f"v_mov_b32 v{M + 4 + qb}, v{M + qb}")
        for qb in range(4):
            s(f"{sw} v{M + qb}, v{M + 4 + qb}")
        for qb in range(4):
            s(f"v_max_f32 v{M + qb}, v{M + qb}, v{M + 4 + qb}")
    for qb in range(4):
        for i in range(4):
            s(f"v_sub_f32 v{NEGM + 4 * qb + i}, {off}, v{M + qb}")


def prepass(s):
    s("@lgkm 0")
    for qb in range(4):
        for sx in range(4):
            d = vr(TMP + 4 * qb, 4)
            s(f"{M16} {d}, {ar(KF + 4 * sx, 4)}, {vr(Q + 16 * qb + 4 * sx, 4)}, {'0' if sx == 0 else d}")
    M = TMP + 16
    for qb in range(4):
        t = TMP + 4 * qb
        s(f"v_max3_f32 v{M + qb}, v{t}, v{t + 1}, v{t + 2}")
        s(f"v_max_f32 v{M + qb}, v{M + qb}, v{t + 3}")
    cross_max_to_negm(s, M, MOFF)


def interval_ops(k):
    a = k_tile(k + 2) if k + 2 <= 31 else None
    b = v_tile(k + 1) if k + 1 <= 31 else None
    if k == 30:
        a = wo_tile(0, 0)
    if k == 31:
        a, b = wo_tile(0, 1), wo_tile(1, 0)
    if k == 32:
        a, b = wo_tile(1, 1), wo_tile(2, 0)
    return a + b


def rowsum(k, q2):
    return f"v_smfmac_f32_16x16x64_bf16 {ar(L + 4 * q2, 4)}, {vr(ONES, 4)}, {vr(P + 32 * ((k - 1) & 1) + 8 * q2, 8)}, v{IDX}"


def ob(tt, ks):
    return OBT[ks & 3] + 4 * (2 * (ks >> 2) + tt)


def norm_tile(n):
    db, qb = divmod(n, 4)
    hh, tt, t, y = qb >> 1, qb & 1, db >> 1, db & 1
    tmp = S + 4 * (n & 1)
    ops = [(f"v_accvgpr_read_b32 v{tmp + e}, a{O + 4 * n + e}", None) for e in range(4)]
    ops += [(f"v_pk_mul_f32 {vr(tmp + 2 * e, 2)}, {vr(tmp + 2 * e, 2)}, {vr((RL + qb) & ~1, 2)} op_sel:[0,{qb & 1}] op_sel_hi:[1,{qb & 1}]", None) for e in range(2)]
    d = ob(tt, 4 * hh + t) + 2 * y
    ops += [(f"v_cvt_pk_bf16_f32 v{d + e}, v{tmp + 2 * e}, v{tmp + 2 * e + 1}", None) for e in range(2)]
    if y:
        pre, st, tag, _ = o_store(8 * tt + 4 * hh + t)
        ops += [(pre[0], None), (st, tag)]
    return ops


def stage(s, k):
    G = Gaps()
    qk, pv = k <= 31, k >= 1
    gi = {}
    for i in range(16):
        kb, qb = i >> 2, i & 3
        for sx in range(4):
            d = vr(S + 4 * (i & 1), 4)
            t = f"{M16} {d}, {ar(KF + 16 * (kb & 1) + 4 * sx, 4)}, {vr(Q + 16 * qb + 4 * sx, 4)}, {vr(NEGM + 4 * qb, 4) if sx == 0 else d}"
            if k == 32 and i == 0 and sx < 3:
                gi[i, sx] = G.add(rowsum(k, sx))
                continue
            gi[i, sx] = G.add(t if qk else None)
        db = i >> 1
        for x in range(4):
            q2, t = 2 * (i & 1) + (x >> 1), x & 1
            d = ar(O + 16 * db + 4 * q2, 4)
            tx = f"{M16} {d}, {ar(VF + 8 * (db % 4) + 4 * t, 4)}, {vr(P + 32 * ((k - 1) & 1) + 8 * q2 + 4 * t, 4)}, {d}"
            gi[i, 4 + x] = G.add(tx if pv else None)
        lq = ({1: 0, 3: 1, 5: 2, 7: 3} if OPT['sg'] else {2: 0, 4: 1, 6: 2, 8: 3}) if qk else {0: 3}
        if pv and i in lq:
            q2 = lq[i]
            gi[i, 8] = G.add(rowsum(k, q2))
    for i in range(16):
        Gx = 16 * k + i
        T = Gx - 1
        if 0 <= T < 512:
            tk, ti = divmod(T, 16)
            kb, qb = ti >> 2, ti & 3
            sb = S + 4 * (ti & 1)
            for e in range(4):
                G.put(gi[i, e], 'valu', f"v_exp_f32 v{sb + e}, v{sb + e}")
            pd = P + 32 * (tk & 1) + 8 * qb + 2 * kb
            G.put(gi[i, 4], 'valu', f"v_cvt_pk_bf16_f32 v{pd}, v{sb}, v{sb + 1}")
            G.put(gi[i, 6], 'valu', f"v_cvt_pk_bf16_f32 v{pd + 1}, v{sb + 2}, v{sb + 3}")
        B, sx = divmod(Gx + 5, 4)
        if B < 128:
            G.put(gi[i, 6], 'ds', kread(B >> 2, B & 3, sx))
        D, t = divmod(Gx + 3 - 16, 2)
        if 0 <= D < 256:
            vk, db = divmod(D, 8)
            for u in range(2):
                G.put(gi[i, 4 + u], 'ds', tr(VF + 8 * (db % 4) + 4 * t + 2 * u, 65536 + (vk % 4) * 16384, db, 8192 * t + 4096 * u))
        if OPT['lw'] == 0:
            if qk and (pv or i == 15) and i % 2 == 1:
                G.put(gi[i, 7], 'salu', "@lgkm 3")
        elif qk and (pv or i == 14) and i % 2 == 0:
            G.put(gi[i, 0], 'salu', "@lgkm 3")
    if k >= 1:
        for j, op in enumerate(interval_ops(k)):
            if j >= 3:
                place(G, gi, 2 * (j - 3) + 1, op)
    if k <= 31:
        for j, op in enumerate(interval_ops(k + 1)[:3]):
            place(G, gi, 11 + 2 * j, op)
    if 1 <= k <= 28:
        if OPT['x'] & 128:
            pass
        elif k % 4 == 1:
            G.put(gi[2, 2], 'salu', f"s_mov_b32 m0, s{sFM}")
            G.put(gi[2, 7], 'vm', dma(FV, SRD_T[0], sF, 0).replace(' lds', ' ' + OPT['fnt'] + ' lds'), 'T')
            G.put(gi[4, 1], 'salu', f"s_add_u32 s{sFM}, s{sFM}, 4096")
            G.put(gi[4, 2], 'salu', f"s_add_u32 s{sF}, s{sF}, {64 * 9216}")
        elif k % 4:
            d = k % 4 == 3
            G.put(gi[12, 7], 'vm', f"buffer_load_dword v{TMP + k % 4}, v{TV2 if d else TV}, {sr(SRD_T[k % 4 - 1], 4)}, s{sTCH2 if d else sTCH} offen", 'T')
        else:
            G.put(gi[13, 1], 'salu', f"s_sub_u32 s{sTCH}, s{sTCH}, {4 * 9216}")
            G.put(gi[13, 2], 'salu', f"s_sub_u32 s{sTCH2}, s{sTCH2}, {4 * 1152}")
    if k == 0:
        G.put(gi[6, 7], 'salu', f"s_mov_b32 s{sTCH}, {24 * 9216}")
        G.put(gi[6, 7], 'salu', f"s_mov_b32 s{sTCH2}, {24 * 1152}")
    if k == 0:
        G.put(gi[15, 2], 'salu', f"s_mul_i32 s37, s5, 18432")
        G.put(gi[15, 3], 'salu', f"s_add_u32 s37, s37, s{sWO}")
        for x in (f"v_min_u32 v{TMP + 20}, 143, v0", f"v_lshl_add_u32 v{TMP + 20}, v{TMP + 20}, 7, s37",
                  f"v_mul_u32_u24 v{TMP + 19}, 24, v0", f"v_lshrrev_b32 v{TMP + 19}, 8, v{TMP + 19}",
                  f"v_lshl_add_u32 v{TMP + 19}, v{TMP + 19}, 7, s37"):
            G.put(gi[15, 5], 'valu', x)
    if k % 4 == 3 and k <= 28:
        G.put(gi[14, 7], 'vm', f"buffer_load_dword v{TMP + 5}, v{TMP + 19}, {sr(SRD_O, 4)}, 0 offen", 'T')
        G.put(gi[15, 5], 'valu', f"v_add_u32 v{TMP + 19}, {20 * 128}, v{TMP + 19}")
    if k == OPT['wot']:
        G.put(gi[6, 7], 'vm', f"buffer_load_dword v{TMP + 5}, v{TMP + 20}, {sr(SRD_O, 4)}, 0 offen", 'T')
    if k == 0:
        G.put(gi[14, 5], 'valu', f"v_min_u32 v{TMP + 21}, 19, v1")
        G.put(gi[14, 5], 'valu', f"v_lshl_add_u32 v{TMP + 21}, v{TMP + 21}, 7, s36")
        G.put(gi[14, 5], 'valu', f"v_lshl_add_u32 v{TMP + 22}, v1, 7, s36")
        G.put(gi[14, 3], 'salu', f"s_mov_b32 s{sTO}, s{sOX}")
        for x in (f"s_mov_b32 s{sF}, s{sFG}", f"s_lshl_b32 s{sFM}, s3, 10", f"s_add_u32 s{sFM}, s{sFM}, {tail.L_WU}",
                  "s_lshr_b32 s37, s2, 3", f"s_mul_i32 s37, s37, {-14 * 9216}", f"s_add_u32 s37, s37, {448 * 9216}"):
            G.put(gi[13, 5], 'salu', x)
        G.put(gi[14, 7], 'vm', f"buffer_load_dword v{TMP + 1}, v{TV}, {sr(SRD_T[0], 4)}, s37 offen", 'T')
    if OPT['oxt'] & 1 and k % 4 == 0 and 1 <= k <= 28:
        G.put(gi[12, 7], 'vm', f"buffer_load_dword v{TMP}, v{TMP + 21}, {sr(SRD_P, 4)}, s{sTO} offen", 'T')
        G.put(gi[13, 3], 'salu', f"s_add_u32 s{sTO}, s{sTO}, {18 * 128}")
    if OPT['oxt'] & 2:
        for j, (kk, i) in enumerate({0: ((29, 12), (31, 12)), 1: ((29, 12), (30, 12)), 2: ((29, 2), (29, 12)), 3: ((29, 2), (30, 6))}[OPT['rt']]):
            if k == kk:
                G.put(gi[i, 3], 'salu', f"s_add_u32 s37, s{sOX}, {8192 * j}")
                G.put(gi[i, 7], 'vm', f"buffer_load_dword v{TMP + 23 - 5 * j}, v{TMP + 22}, {sr(SRD_P, 4)}, s37 offen", 'T')
    need = []
    if k + 1 <= 31:
        need.append(f'K{k + 1}')
    if k <= 31:
        need.append(f'V{k}')
    if k == 32:
        need.append('WO0')
    if k == 0:
        o, v = ffn_setup()
        for j, x in enumerate(o + v):
            for y in (x if isinstance(x, tuple) else (x,)):
                if j < len(o):
                    G.put(gi[j // 4, j % 4], 'salu', y)
                else:
                    G.put(gi[13, 4], 'valu', y)
    if 29 <= k <= 31:
        for j, i in enumerate((0, 4, 8, 14)):
            n = 4 * (k - 29) + j
            if not OPT['x'] & 256:
                pre, t, tag, _ = ffn_load(n)
                G.put(gi[i, 3], 'salu', pre[0])
                G.put(gi[i, 7], 'vm', t, tag)
    if k == 30:
        G.put(gi[0, 5], 'valu', f"v_mov_b32 v{CNT}, 0")
        G.put(gi[2, 7], 'vm', f"buffer_load_dword v{XID}, v{CNT}, {sr(SRD_H, 4)}, s{sXF} offen offset:12 sc1", 'T')
    late_mod(G, gi, k)
    if k == 32:
        lfinish(G, gi)
    G.put(gi[10, 7], 'tail', f"@vm {','.join(need)} force")
    G.put(gi[10, 7], 'tail', "s_barrier")
    if k == 32:
        G.put(gi[11, 6], 'ds', f"ds_read_b128 {vr(TMP + 8, 4)}, v{TMP + 12}")
        for j, op in enumerate(wo_tile(2, 1) + wo_tile(3, 0)):
            i, sl = divmod(j, 2)
            G.put_op(gi[12 + i, 5 + 2 * sl], op)
    G.emit(s)


def place(G, gi, i, op):
    pre, t, tag, post = op
    for j, x in enumerate(pre):
        G.put(gi[i, 1 + j], 'salu', x)
    G.put(gi.get((i, 8), gi[i, 7]) if OPT['sg'] == 2 else gi[i, 7], 'vm', t, tag)
    for x in post:
        G.put(gi[i + 1, 1], 'salu', x)


def lfinish(G, gi):
    ops = []
    for qb in range(4):
        ops.append(f"v_accvgpr_read_b32 v{TMP + 2 * qb}, a{L + 4 * qb}")
        ops.append(f"v_accvgpr_read_b32 v{TMP + 2 * qb + 1}, a{L + 4 * qb + 1}")
    for qb in range(4):
        ops.append(f"v_add_f32 v{RL + qb}, v{TMP + 2 * qb}, v{TMP + 2 * qb + 1}")
    if OPT['l2']:
        for sw in ('v_permlane16_swap_b32', 'v_permlane32_swap_b32'):
            for qb in range(4):
                ops.append(f"v_mov_b32 v{TMP + qb}, v{RL + qb}")
            for qb in range(4):
                ops.append(f"{sw} v{RL + qb}, v{TMP + qb}")
    ops.append(f"v_add_f32 v{TMP}, v{RL}, v{RL + 1}")
    ops.append(f"v_add_f32 v{TMP + 1}, v{RL + 2}, v{RL + 3}")
    ops.append(f"v_add_f32 v{TMP}, v{TMP}, v{TMP + 1}")
    ops.append(f"v_cmp_ngt_f32 vcc, {THR}, v{TMP}")
    for qb in range(4):
        ops.append(f"v_rcp_f32 v{RL + qb}, v{RL + qb}")
    ops.append(f"v_mov_b32 v{TMP + 12}, {FLAG_LDS}")
    ops.append("s_or_b32 s36, vcc_lo, vcc_hi")
    ops.append(f"v_mov_b32 v{TMP + 2}, s36")
    ops.append(f"s_lshl_b32 s38, s3, 2")
    ops.append(f"v_add_u32 v{TMP + 3}, s38, v{TMP + 12}")
    ops.append(f"ds_write_b32 v{TMP + 3}, v{TMP + 2}")
    assert not OPT['l2']
    slots = [gi[i, sl] for i in (1, 2, 3) for sl in (4, 5, 5, 6, 6, 7, 7)][1:] + [gi[i, sl] for i in (4, 5, 6) for sl in (4, 5)]
    for n in range(OPT['ne']):
        for o, tag in norm_tile(n):
            G.put(gi[16 - OPT['ne'] // 2 + (n >> 1), 6 + (n & 1)], 'valu', o, tag)
    assert len(ops) <= len(slots), (len(ops), len(slots))
    for o, g in zip(ops, slots):
        G.put(g, 'valu', o, 'FLAG')
    G.put(gi[10, 7], 'tail', "@ds FLAG")


def oread(n, r):
    c, nb = divmod(n, 4)
    ks, u = r >> 1, r & 1
    hh, t = ks >> 2, ks & 3
    return tr(AF[n & 1] + 4 * ks + 2 * u, oreg(c) + 16384 * (t >> 1), 4 * hh + nb, 8192 * (t & 1) + 4096 * u)


def normalize(s):
    s(f"v_or3_b32 v{TMP + 8}, v{TMP + 8}, v{TMP + 9}, v{TMP + 10}")
    s(f"v_or_b32 v{TMP + 8}, v{TMP + 8}, v{TMP + 11}")
    s(f"v_readfirstlane_b32 s36, v{TMP + 8}")
    s(f"v_readfirstlane_b32 s38, v{XID}")
    s(f"v_min_u32 v{tail.vF}, 1, v1")
    s(f"v_lshlrev_b32 v{tail.vF}, 31, v{tail.vF}")
    s(f"v_mov_b32 v{tail.vZ}, s{sTAG}")
    s(f"s_getreg_b32 s39, hwreg(HW_REG_XCC_ID, 0, 4)")
    s(f"s_add_u32 s39, s39, s{sTAG}")
    s("s_cmp_eq_u32 s38, s39")
    s(f"s_cselect_b32 s{sSAME}, {0 if OPT['x'] & 4 else 1}, 0")
    for r in range(16):
        s(oread(0, r))
    s(f"s_andn2_b32 s36, s36, s{sPASS}")
    s("s_cbranch_scc1 Lattn_redo")
    for n in range(OPT['ne'], 32):
        for o, tag in norm_tile(n):
            s(o, tag)


FP = [('g', i) for i in range(9)] + [('u', 7), ('u', 8), ('d', 0)]


def freg(n):
    return 128 + 4 * n if n < 8 else 240 + 4 * (n - 8)


def wd_dma(i):
    return ([f"s_add_u32 s{sF}, s{sFD}, {i * 4096}", f"s_add_u32 m0, s{sFM}, {tail.L_WD + 4096 * i - tail.L_WU - 7 * 4096}"],
            dma(FV2, SRD_T[2], sF, 0), 'F', [])


def ffn_load(n):
    m, i = FP[n]
    if m == 'd':
        srd_, v, so = SRD_T[2], FV2, f"s{sFD}, {i * 4096}"
    else:
        srd_, v, so = SRD_T[1 if m == 'g' else 0], FV, f"s{sFG}, {i * 64 * 9216}"
    return ([f"s_add_u32 s{sF}, {so}"], f"buffer_load_dwordx4 {ar(freg(n), 4)}, v{v}, {sr(srd_, 4)}, s{sF} offen", 'F', [])


def ffn_write(n):
    m, i = FP[n]
    if m == 'g':
        v, off = FW, 4096 * i
    elif m == 'u':
        v, off = (FW, tail.L_WU - tail.L_WG + 4096 * i) if i < 7 else (FV2, tail.L_WU2 + 4096 * (i - 7))
    else:
        v, off = FV2, tail.L_WD + 4096 * i
    return f"ds_write_b128 v{v}, {ar(freg(n), 4)} offset:{off}"


def mod_block(d, bad):
    return [f"s_lshr_b32 s{d}, s2, 5", f"s_lshl_b32 s{d}, s{d}, 3", f"s_and_b32 s{bad}, s2, 7", f"s_add_u32 s{d}, s{d}, s{bad}",
            f"s_lshl_b32 s{d}, s{d}, 2", f"s_bfe_u32 s{bad}, s2, 0x20003", f"s_add_u32 s{d}, s{d}, s{bad}", f"s_add_u32 s{d}, s{d}, 72",
            (f"s_cmp_lt_u32 s{d}, 216", f"s_cselect_b32 s{bad}, 0, {tail.BIG}")]


def late_mod(G, gi, k):
    def fill(ops, i0, i1, kind='valu'):
        slots = []
        for i in range(i0, i1):
            if kind == 'salu':
                slots += [gi[i, x] for x in (0, 1, 2, 3) if not G.m[gi[i, x]]['salu']]
                continue
            if not G.m[gi[i, 5]]['valu']:
                slots.append(gi[i, 5])
            if i % 2 == 0 and i != 10 and not G.m[gi[i, 7]]['vm']:
                slots += [gi[i, 7]] * 2
        assert len(slots) >= len(ops), (k, len(slots), len(ops))
        for g, x in zip(slots, ops):
            for y in (x if isinstance(x, tuple) else (x,)):
                G.put(g, kind, y)
    t0, t1, t2 = MU, MU + 1, MU + 2
    if 1 <= k <= 28:
        if k % 4 == 1 and not OPT['x'] & 16:
            G.put(gi[14, 7], 'vm', f"buffer_load_dwordx4 {vr(MR, 4)}, v{MW}, {sr(SRD_M, 4)}, s{sMW} offen", 'T')
            G.put(gi[15, 3], 'salu', f"s_add_u32 s{sMW}, s{sMW}, {128 * 6912}")
        if k % 4 == 2 and not OPT['x'] & 32:
            G.put(gi[14, 7], 'vm', f"buffer_store_dwordx4 {vr(AD, 4)}, v{AV}, {sr(SRD_H, 4)}, s{sAR} offen sc1", 'T')
            G.put(gi[15, 3], 'salu', f"s_add_u32 s{sAR}, s{sAR}, 656")
        if k % 4 == 0 and not OPT['x'] & 64:
            ops = []
            for e in range(4):
                a, b = MU + 2 * (e & 1), MU + 2 * (e & 1) + 1
                ops += [f"v_lshlrev_b32 v{a}, 16, v{MR + e}", f"v_and_b32 v{b}, 0xffff0000, v{MR + e}",
                        f"v_fmac_f32 v{MA + 2 * e}, v{MC}, v{a}", f"v_fmac_f32 v{MA + 2 * e + 1}, v{MC}, v{b}"]
            ops += [f"v_mov_b32 v{MC + i}, v{MC + i + 1}" for i in range(4)]
            fill(ops, 0, 16)
    if k == 29:
        ops = [f"v_permlane32_swap_b32 v{MA + e}, v{MA + 4 + e}" for e in range(4)]
        ops += [f"v_add_f32 v{MA + e}, v{MA + e}, v{MA + 4 + e}" for e in range(4)]
        ops += [f"v_and_b32 v{t0}, 1, v1"]
        ops += [f"v_permlane16_swap_b32 v{MA + e}, v{MA + 2 + e}" for e in range(2)]
        ops += [f"v_lshlrev_b32 v{t0}, 5, v{t0}"]
        ops += [f"v_add_f32 v{MA + e}, v{MA + e}, v{MA + 2 + e}" for e in range(2)]
        ops += [f"v_lshrrev_b32 v{t1}, 4, v1", f"v_lshl_add_u32 v{t0}, v{t1}, 3, v{t0}"]
        fill(ops, 0, 16)
        fill(["s_lshl_b32 s38, s3, 6", f"s_add_u32 s38, s38, {FLAG_LDS + 64}"], 0, 2, 'salu')
    if k == 30:
        ops = []
        for ro in (2, 4, 8):
            ops += [f"v_add_f32_dpp v{MA + e}, v{MA + e}, v{MA + e} row_ror:{ro} row_mask:0xf bank_mask:0xf" for e in range(2)]
        ops += [f"v_add_u32 v{t0}, s38, v{t0}", f"v_and_b32 v{t1}, 7, v1"]
        fill(ops, 1, 8)
        G.put(gi.get((8, 8), gi[8, 5]), 'ds', f"ds_write_b64 v{t0}, {vr(MA, 2)}", 'MW')
        G.put(gi[10, 7], 'tail', "@ds MW")
        fill([f"v_lshlrev_b32 v{t1}, 3, v{t1}", f"v_add_u32 v{t1}, {FLAG_LDS + 64}, v{t1}"], 8, 10)
        for w in range(4):
            G.put(gi[11 + w, 5], 'ds', f"ds_read_b64 {vr(MA + 2 * w, 2)}, v{t1} offset:{64 * w}")
        fill(mod_block(39, 43) + [f"s_or_b32 s43, s43, s{sPASS}", f"s_and_b32 s43, s43, {tail.BIG}", "s_sub_u32 s36, s39, 144",
                                  ("s_cmp_lt_u32 s36, 36", "s_cselect_b32 s36, 1.0, 0"), f"s_lshr_b32 s{sMW}, s39, 1", f"s_lshl_b32 s{sMW}, s{sMW}, 6",
                                  "s_and_b32 s39, s39, 1", "s_lshl_b32 s39, s39, 3", f"s_add_u32 s39, s39, s{sMW}",
                                  f"s_add_u32 s39, s39, {WS_MODP}", "s_or_b32 s39, s39, s43"], 2, 16, 'salu')
    if k == 31:
        ops = [f"v_add_f32 v{MA + e}, v{MA + e}, v{MA + 4 + e}" for e in range(4)]
        ops += [f"v_add_f32 v{MA + e}, v{MA + e}, v{MA + 2 + e}" for e in range(2)]
        ops += [f"v_cvt_pk_bf16_f32 v{t2}, v{MA}, v{MA + 1}", f"v_lshlrev_b32 v{MA}, 16, v{t2}", f"v_and_b32 v{MA + 1}, 0xffff0000, v{t2}",
                f"v_add_f32 v{MA}, s36, v{MA}", f"v_add_f32 v{MA + 1}, s36, v{MA + 1}", f"v_cvt_pk_bf16_f32 v{t2}, v{MA}, v{MA + 1}",
                f"v_lshrrev_b32 v{t0}, 1, v0", f"v_lshlrev_b32 v{t0}, 4, v{t0}", f"v_and_b32 v{t1}, 1, v0", f"v_lshl_add_u32 v{t0}, v{t1}, 2, v{t0}",
                f"v_lshrrev_b32 v{t1}, 3, v0", f"v_min_u32 v{t1}, 1, v{t1}", f"v_lshl_or_b32 v{t0}, v{t1}, 31, v{t0}"]
        fill(ops, 0, 16)
    if k == 32:
        G.put(gi[0, 7], 'vm', f"buffer_store_dword v{t2}, v{t0}, {sr(SRD_H, 4)}, s39 offen sc1", 'MS')
        for j, x in enumerate((f"v_min_u32 v{MR}, 1, v0", f"v_lshlrev_b32 v{MR}, 31, v{MR}", f"v_mov_b32 v{MR + 1}, 1")):
            G.put(gi[7 + j, 4], 'valu', x)


def ffn_setup():
    o = ["s_lshr_b32 s6, s2, 3", "s_and_b32 s7, s2, 7", "s_mul_i32 s7, s7, 18", "s_add_u32 s7, s7, s6",
         f"s_lshl_b32 s{sFG}, s7, 6", f"s_mul_i32 s{sFD}, s7, 36864",
         ("s_cmp_lt_u32 s6, 18", f"s_cselect_b32 s7, 0, {tail.BIG}"),
         f"s_or_b32 s{sFG}, s{sFG}, s7", f"s_or_b32 s{sFD}, s{sFD}, s7"]
    v = [f"v_lshrrev_b32 v{FW}, 2, v0", f"v_mul_u32_u24 v{FW}, 9216, v{FW}", f"v_and_b32 v{FV}, 3, v0",
         f"v_lshl_add_u32 v{FV}, v{FV}, 4, v{FW}", f"v_lshlrev_b32 v{FV2}, 4, v0", f"v_add_u32 v{FW}, {tail.L_WG}, v{FV2}"]
    o += ["s_and_b32 s7, s4, 1", "s_lshl_b32 s6, s7, 7",
          "s_xor_b32 s36, s4, 1", f"s_mul_i32 s36, s36, {256 * 1152}", f"s_add_u32 s{sWOb}, s36, s6",
          "s_lshl_b32 s36, s4, 8", f"s_add_u32 s{sPD}, s{sPART}, s36",
          "s_lshr_b32 s36, s4, 1", "s_lshl_b32 s36, s36, 11", "s_lshl_b32 s7, s7, 8", "s_add_u32 s36, s36, s7",
          f"s_add_u32 s{sPR}, s{sPART}, s36",
          "s_lshr_b32 s36, s4, 1", "s_lshl_b32 s36, s36, 4", "s_add_u32 s36, s36, s5", "s_lshl_b32 s36, s36, 9", "s_add_u32 s36, s36, s7",
          "s_lshl_b32 s36, s36, 8", f"s_add_u32 s{sOX}, s36, {OX}",
          f"s_add_u32 s{sWOa}, s{sWO}, s6", f"s_xor_b32 s{sXF}, s{tail.sFL}, 128", "s_lshl_b32 s36, s3, 14"]
    v += [f"v_lshl_add_u32 v{XV}, v1, 4, s36"]
    o = mod_block(sMW, 37) + [f"s_lshl_b32 s{sMW}, s{sMW}, 5", f"s_or_b32 s{sMW}, s{sMW}, s37", f"s_mov_b32 s{SRD_M + 2}, {SZ['wmod']}"] + o
    v += [f"v_mov_b32 v{MA + e}, 0" for e in range(8)]
    o = [f"s_lshl_b32 s{sAR}, s5, 4", f"s_add_u32 s{sAR}, s{sAR}, s4", f"s_lshl_b32 s{sAR}, s{sAR}, 2", f"s_add_u32 s{sAR}, s{sAR}, s3",
         f"s_mul_i32 s{sAR}, s{sAR}, 4608", f"s_add_u32 s{sAR}, s{sAR}, {WS_H2}"] + o
    v += [f"v_mov_b32 v{AD + e}, -1" for e in range(4)] + [f"v_min_u32 v{AV}, 41, v1", f"v_lshlrev_b32 v{AV}, 4, v{AV}"]
    return o, v


def o_store(f):
    pre = [f"s_add_u32 s37, s{sOX}, {4096 * (f >> 2)}"]
    return (pre, f"buffer_store_dwordx4 {vr(ob(f >> 3, f & 7), 4)}, v{XV}, {sr(SRD_P, 4)}, s37 offen offset:{1024 * (f & 3)} {OPT['ox']}", 'OS', [])


def o_load(f):
    pre = [f"s_add_u32 s37, s{sOX}, {4096 * (f >> 2)}"] if f % 4 == 0 else []
    return (pre, f"buffer_load_dwordx4 {ar(BUF + 4 * f, 4)}, v{XV}, {sr(SRD_P, 4)}, s37 offen offset:{1024 * (f & 3)} {OPT['ol']}", 'OL', [])


def oproj(s):
    G = Gaps()

    def acc(n, tt):
        c = POS[n >> 2][1]
        return OAC + 32 * (1 if c is None else c & 1) + 8 * (n & 3) + 4 * tt
    for n in range(36):
        src, c = POS[n >> 2]
        for tt in range(2):
            for ks in range(8):
                d = vr(acc(n, tt), 4)
                b = ar(BUF + 32 * tt + 4 * ks, 4) if src else vr(ob(tt, ks), 4)
                i = G.add(f"{M16} {d}, {ar(AF[n & 1] + 4 * ks, 4)}, {b}, {'0' if ks == 0 and src == 0 else d}")
                if n + 1 < 36:
                    G.put(i, 'ds', oread(n + 1, 8 * tt + ks))
    for _ in range(8):
        G.add(None)
    for n in range(36):
        src, c = POS[n >> 2]
        if c is not None and src == 0:
            continue
        for tt in range(2):
            e0 = 16 * n + 8 * tt + 8 + 4
            a0 = acc(n, tt)
            pk = PK + 8 * ((n >> 1) & 1) + 4 * tt + 2 * (n & 1)
            G.put(e0, 'valu', f"v_cvt_pk_bf16_f32 v{pk}, v{a0}, v{a0 + 1}")
            G.put(e0 + 1, 'valu', f"v_cvt_pk_bf16_f32 v{pk + 1}, v{a0 + 2}, v{a0 + 3}")
            if n & 1:
                base, off = (sPD, 16384) if c is None else (sPR, 512 * c)
                G.put(e0 + 1, 'salu', f"s_add_u32 s38, s{base}, {tt * 8 * PAIR + off + ((n >> 1) & 1) * 128}")
                G.put(e0 + 2, 'vm', f"buffer_store_dwordx4 {vr(pk - 2, 4)}, v{STV}, {sr(SRD_P, 4)}, s38 offen {OPT['st']}", 'STD' if c is None else f'ST{c}')
    for c in range(8):
        b = 64 * c + 47
        G.put(b, 'tail', f"@vm WO{c + 1}")
        if c in (2, 7):
            G.put(b, 'tail', "@lgkm 0")
        G.put(b, 'tail', "s_barrier")
        if c == 0:
            ops = wo_tile(3, 1)
        elif c <= 5:
            ops = wo_tile(c + 3, 0) + wo_tile(c + 3, 1)
        else:
            ops = []
        for j, op in enumerate(ops):
            G.put_op(b + 9 + 8 * (j >> 1) + 2 * (j & 1), op)

    def spread(ops, lo, hi, step=2):
        free = [i for i in range(lo, hi) if i % step == step - 2 and not G.m[i]['vm'] and not G.m[i]['valu'] and not G.m[i + 1]['valu']]
        assert len(free) >= len(ops), (len(free), len(ops))
        for j, op in enumerate(ops):
            G.put_op(free[j * len(free) // len(ops)], op)
    fx, px, cx = OPT['fx'], OPT['px'], OPT['cx']
    assert fx < OPT['at'] < 176
    G.put(fx - 1, 'tail', "@vm OS")
    G.put(fx - 1, 'tail', f"s_cmp_eq_u32 s{sSAME}, 0")
    G.put(fx - 1, 'tail', "s_cbranch_scc1 Lattn_wb")
    G.put(fx - 1, 'tail', "Lattn_wbdone:")
    G.put(fx, 'vm', f"buffer_store_dword v{tail.vZ}, v{tail.vF}, {sr(SRD_H, 4)}, s{tail.sFL} offen offset:8 sc1")
    G.put(fx + 1, 'salu', f"s_xor_b32 s{sOX}, s{sOX}, 65536")
    spread([([], f"buffer_atomic_add v{MR + 1}, v{MR}, {sr(SRD_D, 4)}, 0 offen sc1", None, [])], OPT['at'], OPT['at'] + 12)
    spread([([], x_poll(), None, [])], px, px + 8)
    G.put(cx - 2, 'valu', f"v_readfirstlane_b32 s36, v{tail.POLL}")
    G.put(cx, 'tail', f"s_cmp_lg_u32 s36, s{sTAG}")
    G.put(cx, 'tail', "s_cbranch_scc1 Lattn_xspin")
    G.put(cx, 'tail', "Lattn_xgot:")
    spread([o_load(f) for f in range(16)], cx + 3, OPT['ex'])
    for j, x in enumerate(tail.pointer_loads()):
        G.put(fx + 3 + 2 * j, 'tail', x)
    L, ldx, ld0, ld1 = tail.prepare()
    g0 = 200

    def flag(f, groups):
        spread([([tail.flag_store()[0], "@vm ST" + groups[-1]], tail.flag_store()[1], None, [])], f, f + 12)

    def poll(p):
        assert p > g0
        spread([(tail.flag_poll()[:1], tail.flag_poll()[1], None, [])], p, p + 12)
    if OPT['s0']:
        flag(OPT['f0'], OPT['s0'])
        poll(OPT['p0'])
        c0 = OPT['c0']
        fc = tail.flag_try() if OPT['nb'] else tail.flag_check(0)
        assert c0 > 404 or not OPT['nb']
        G.put(c0 - 2, 'valu', fc[0])
        for x in fc[1:]:
            G.put(c0, 'tail', x)
        spread(tail.part_loads(OPT['s0'], tail.sB0 if OPT['nb'] else None), c0 + 2, c0 + 2 + 18 * len(OPT['s0']))
    flag(OPT['f1'], OPT['s1'])
    poll(OPT['p1'])
    ca = OPT['ca']
    assert ca > g0
    spread([([], f"buffer_load_dword v{CNT}, v{CNT}, {sr(SRD_D, 4)}, 0 offen sc1", None, [])], ca - 60, ca - 40)
    G.put(ca - 2, 'valu', f"v_readfirstlane_b32 s37, v{CNT}")
    for x in ("s_cmp_lt_u32 s37, 256", "s_cbranch_scc1 Lattn_armwait", "Lattn_armed:"):
        G.put(ca, 'tail', x)
    spread(ldx, OPT['xp'], OPT['xp'] + 40)
    spread(ld0, ca + 2, ca + 44)
    spread(ld1, max(64 * 7 + 8, ca + 46), 536)
    g = max(72, OPT['at'] + 14)
    for x in L:
        if isinstance(x, int):
            assert x != 190 or g < g0
            g = max(g, x)
            continue
        x = x if isinstance(x, tuple) else (x,)
        kind = 'salu' if x[0].startswith('s_') else 'valu'
        while G.m[g][kind] or G.m[g]['vm'] or (kind == 'salu' and G.m[g]['valu']) or (kind == 'valu' and G.m[g - 1]['vm']):
            g += 1
        for y in x:
            G.put(g, kind, y)
        if 's[36:37]' in x[0] or 's[54:55]' in x[0]:
            assert g < min(OPT['ca'], OPT['c0']) - 4
    assert g < 64 * 7 + 6
    if OPT['fine'] == 3:
        for c in range(8):
            G.put(64 * c + 63, 'tail', f"s_memtime {sr(62 + 2 * c, 2)}")
    G.emit(s)


def x_poll():
    return f"buffer_load_dword v{tail.POLL}, v{tail.vF}, {sr(SRD_H, 4)}, s{sXF} offen offset:8 sc1"


def pair_cold(a):
    a("Lattn_wb:")
    a("buffer_wbl2 sc1")
    a("s_waitcnt vmcnt(0)")
    a("s_branch Lattn_wbdone")
    a("Lattn_xspin:")
    a(f"s_mov_b32 s37, {tail.SPIN}")
    a("Lattn_xloop:")
    a(x_poll())
    a("s_waitcnt vmcnt(0)")
    a(f"v_readfirstlane_b32 s36, v{tail.POLL}")
    a("s_sub_u32 s37, s37, 1")
    a("s_cbranch_scc1 Lattn_xgot")
    a(f"s_cmp_lg_u32 s36, s{sTAG}")
    a("s_cbranch_scc1 Lattn_xloop")
    a("s_branch Lattn_xgot")


def redo():
    s = Stream()
    s("Lattn_redo:")
    s(f"v_xor_b32 v{KAD}, 64, v{KAD + 1}")
    s(f"v_xor_b32 v{KAD + 2}, 64, v{KAD + 3}")
    s("@drain")
    s("s_barrier")
    M = TMP + 16
    for qb in range(4):
        s(f"v_mov_b32 v{M + qb}, 0xff800000")
    s(f"s_mov_b32 s{sK}, 0")
    s(f"s_mov_b32 s{sPASS}, -1")
    s("Lattn_redo_loop:")
    for op in k_tile(0):
        emit_op(s, op)
    s("@drain")
    s("s_barrier")
    for kb in range(4):
        for sx in range(4):
            s(kread(0, kb, sx))
        for qb in range(4):
            for sx in range(4):
                d = vr(TMP + 4 * qb, 4)
                s(f"{M16} {d}, {ar(KF + 16 * (kb & 1) + 4 * sx, 4)}, {vr(Q + 16 * qb + 4 * sx, 4)}, {'0' if sx == 0 else d}")
        for qb in range(4):
            t = TMP + 4 * qb
            s(f"v_max3_f32 v{M + qb}, v{M + qb}, v{t}, v{t + 1}")
            s(f"v_max3_f32 v{M + qb}, v{M + qb}, v{t + 2}, v{t + 3}")
    s("s_barrier")
    s(f"s_cmp_lt_u32 s{sK}, 524288")
    s("s_cbranch_scc1 Lattn_redo_loop")
    cross_max_to_negm(s, M)
    s(f"s_mov_b32 s{sK}, 0")
    s(f"s_mov_b32 s{sV}, 0")
    for op in k_tile(0) + k_tile(1) + k_tile(2) + v_tile(0) + v_tile(1):
        emit_op(s, op)
    for r in list(range(O, O + 128)) + list(range(L, L + 16)):
        s(f"v_accvgpr_write_b32 a{r}, 0")
    s("@drain")
    s("s_barrier")
    for sx in range(4):
        s(kread(0, 0, sx))
    s(kread(0, 1, 0))
    s("@drain")
    s("s_branch Lattn_stage0")
    s.resolve()
    return [t for _, ls in s.split() for t in ls]


def merge_body(copies):
    out = []
    assert len({len(c) for c in copies}) == 1
    for lines in zip(*copies):
        if len(set(lines)) == 1:
            out.append(lines[0])
        else:
            ms = [re.fullmatch(r's_waitcnt (\w+)\((\d+)\)', l) for l in lines]
            assert all(ms) and len({m.group(1) for m in ms}) == 1, lines
            out.append(f"s_waitcnt {ms[0].group(1)}({min(int(m.group(2)) for m in ms)})")
    return out


def insn_sizes(lines):
    src = '.amdgcn_target "amdgcn-amd-amdhsa--gfx950"\n.text\n' + '\n'.join(lines) + '\n'
    with tempfile.TemporaryDirectory() as d:
        open(d + '/t.s', 'w').write(src)
        subprocess.run(['clang', '-x', 'assembler', '-target', 'amdgcn-amd-amdhsa', '-mcpu=gfx950', '-c', d + '/t.s', '-o', d + '/t.o'], check=True)
        dis = subprocess.run(['llvm-objdump', '-d', '--mcpu=gfx950', d + '/t.o'], check=True, capture_output=True, text=True).stdout
    sz = [4 * len(m.group(1).split()) for m in re.finditer(r'// [0-9A-F]{12}: ((?:[0-9A-F]{8} ?)+)', dis)]
    it = iter(sz)
    out = [0 if l.endswith(':') else next(it) for l in lines]
    assert next(it, None) is None
    return out


def page_tour(lines):
    i0 = lines.index('Lhead_tour:')
    if not OPT['tour']:
        return lines
    sz = insn_sizes(lines)
    end = lines.index('Lattn_redo:')
    out = []; pos = 4; page = 1; n = 0
    n1 = OPT['t1'] if 'Lhead_tour2:' in lines else 1000

    def enter(first):
        pre = ['    s_mov_b64 exec, 0']
        for w in range(3):
            pre += [f'    s_cmp_eq_u32 s3, {w}', f'    s_cbranch_scc1 Ltour{first + w}']
        return pre + [f'    s_branch Ltour{first + 3}']
    for i in range(i0 + 1, len(lines)):
        l = lines[i]
        if l == 'Lattn_loop:' and OPT['lal'] >= 0:
            while pos % 64 != OPT['lal']:
                out.append('    s_nop 0'); pos += 4
        want = False
        if i < end and pos >= 4096 * page and not l.endswith(':'):
            prev = lines[i - 1].split()[0]
            if prev.startswith('v_mfma') and not l.split()[0].startswith('s_') or pos - 4096 * page >= 40:
                want = True; page += 1
        if lines[i - 1][:-1] in ('Ltail_spin0', 'Ltail_spin1', 'Ltail_spin2', 'Ltail_final', 'Lattn_xspin'):
            want = True
        if want:
            out.append(f'Ltour{n}:'); out.append(n); pos += 4; n += 1
        if l == 'Lhead_tour2:':
            out += enter(n1) + ['Lmain2:', '    s_mov_b64 exec, -1']; pos += 36
            continue
        out.append(l); pos += sz[i]

    def nxt(x):
        if x < n1:
            return 'Ltour%d' % (x + 4) if x + 4 < min(n, n1) else 'Lmain'
        return 'Ltour%d' % (x + 4) if x + 4 < n else 'Lmain2'
    out = [f"    s_cbranch_execz {nxt(x)}" if isinstance(x, int) else x for x in out]
    return lines[:i0] + enter(0) + ['.p2align 12', 'Lmain:', '    s_mov_b64 exec, -1'] + out


def k_attn(diag=False):
    s = Stream()
    head.head(s, diag, sys.modules[__name__])
    stamp(s, diag, 1)
    qproj(s, diag)
    stamp(s, diag, 2)
    qfinish(s)
    prepass(s)
    s("@mark pre")
    s("Lattn_stage0:")
    s(f"s_mov_b32 s{sCNT}, 7")
    for k in range(33):
        s(f"@mark st{k}")
        stage(s, k)
    s("@mark post")
    normalize(s)
    s("@mark oproj")
    oproj(s)
    s("@mark tail")
    tail.post(s, diag, [ffn_write(n) for n in range(12)], emit_op)
    s.resolve()
    parts = dict(s.split())
    for k in range(1, 5):
        parts[f'body{k}'] = merge_body([parts[f'st{j}'] for j in range(k, 29, 4)])
    a = Asm()

    def put(name):
        for t in parts[name]:
            a(t)
    put('_head'); stamp(a, diag, 3); put('pre'); put('st0')
    stamp(a, diag, 4)
    a("Lattn_loop:")
    for k in range(1, 5):
        put(f'body{k}')
    a(f"s_sub_u32 s{sCNT}, s{sCNT}, 1")
    a(f"s_cmp_lg_u32 s{sCNT}, 0")
    a("s_cbranch_scc1 Lattn_loop")
    stamp(a, diag, 5)
    for k in range(29, 33):
        put(f'st{k}')
    stamp(a, diag, 6)
    put('post')
    if OPT['fine'] == 3:
        stamp(a, diag, 0)
    stamp(a, diag, 7)
    put('oproj')
    if diag:
        stamp(a, diag, 8)
        if OPT['fine'] != 5:
            stamp(a, diag, 9)
        a("s_memrealtime s[98:99]")
        a("s_waitcnt lgkmcnt(0)")
        for i in range(10):
            a(f"s_sub_u32 s7, s{60 + 2 * i}, s60")
            a(f"v_accvgpr_write_b32 a{224 + i}, s7")
        a("v_accvgpr_write_b32 a234, s96")
        a("v_accvgpr_write_b32 a235, s98")
    put('tail')
    tail.body(a, diag, [wd_dma(i) for i in range(1, 9)], emit_op)
    if diag:
        tail.dump_stamps(a, 8, WS_STAMP + 0x20000)
        a.srd(SRD_V, 50, 1024 * 64, WS_STAMP)
        for i in range(3):
            a(f"buffer_store_dwordx4 {ar(224 + 4 * i, 4)}, v2, {sr(SRD_V, 4)}, s36 offen offset:{16 * i}")
    a("s_endpgm")
    pair_cold(a)
    if OPT['s0'] and not OPT['nb']:
        tail.flag_spin(a, 0)
    tail.flag_spin(a, 1)
    tail.flag_spin(a, 2)
    for t in redo():
        a(t)
    a("Lattn_armwait:")
    a(f"s_mov_b32 s36, {tail.SPIN}")
    a("Lattn_armloop:")
    a(f"v_mov_b32 v{CNT}, 0")
    a(f"buffer_load_dword v{CNT}, v{CNT}, {sr(SRD_D, 4)}, 0 offen sc1")
    a("s_waitcnt vmcnt(0)")
    a(f"v_readfirstlane_b32 s37, v{CNT}")
    a("s_sub_u32 s36, s36, 1")
    a("s_cbranch_scc1 Lattn_armed")
    a("s_cmp_lt_u32 s37, 256")
    a("s_cbranch_scc1 Lattn_armloop")
    a("s_branch Lattn_armed")
    a("Lattn_end:")
    a("s_endpgm")
    a.L = page_tour(a.L)
    return a.text(), 512, dict(grid=256, block=256, lds=163840), s.stats
```

```python
from dsl import *
from tail import unpack, pack, rnd1, red, srd, BIG, SPIN

L_RED, L_MOD = 0, 1024
vC, vW, vX, vP, vM, vG, vQ2, vQ, vT = 64, 65, 66, 67, 68, 69, 70, 71, 72
CV, WV, XR = 80, 88, 108
AC, UT = 128, 136
X, D, C1, SA = 144, 168, 192, 216
PF = 240
vK, vV = 120, 121


def silu(s, r, t):
    d, q, e = t, t + 1, t + 2
    s(f"v_mul_f32 v{d}, 0xbfb8aa3b, v{r}")
    s(f"v_min_f32 v{d}, 0x42fc0000, v{d}")
    s(f"v_exp_f32 v{d}, v{d}")
    s(f"v_add_f32 v{d}, 1.0, v{d}")
    s(f"v_rcp_f32 v{q}, v{d}")
    s(f"v_mul_f32 v{e}, v{r}, v{q}")
    s(f"v_fma_f32 v{d}, -v{e}, v{d}, v{r}")
    s(f"v_fma_f32 v{r}, v{d}, v{q}, v{e}")


def interleave(s, fns):
    lists = []
    for f in fns:
        l = []
        f(l.append)
        lists.append(l)
    for i in range(max(map(len, lists))):
        for l in lists:
            if i < len(l):
                s(l[i])


def sum24(s, dst, t, f):
    for e in range(0, 24, 2):
        f(t if e & 2 else dst, e, e < 4)
    s(f"v_pk_add_f32 {vr(dst, 2)}, {vr(dst, 2)}, {vr(t, 2)}")
    s(f"v_add_f32 v{dst}, v{dst}, v{dst + 1}")


def head(s, diag, K):
    st = lambda i: OPT['fine'] == 1 and K.stamp(s, diag, i, True)
    s2 = lambda i: OPT['fine'] == 2 and K.stamp(s, diag, i, True)
    SC, SM, SX, SW = K.SRD_K, K.SRD_V, K.SRD_O, K.SRD_H
    s("s_cmp_ge_u32 s2, 256")
    s("s_cbranch_scc1 Lattn_end")
    if OPT['scr']:
        s("s_and_b32 s3, s2, 7")
        s("s_lshl_b32 s3, s3, 5")
        s("s_lshr_b32 s2, s2, 3")
        s("s_or_b32 s2, s2, s3")
    s(f"s_load_dwordx2 {sr(SC, 2)}, s[0:1], {KA['c']}")
    s(f"s_load_dwordx2 {sr(SM, 2)}, s[0:1], {KA['wmod']}")
    s(f"s_load_dwordx2 {sr(SX, 2)}, s[0:1], {KA['x']}")
    s(f"s_load_dwordx2 s[50:51], s[0:1], {KA['ws']}")
    s(f"s_load_dwordx8 s[52:59], s[0:1], {KA['k']}")
    s(f"s_load_dwordx4 s[80:83], s[0:1], {KA['wg']}")
    s(f"s_load_dwordx2 s[84:85], s[0:1], {KA['wd']}")
    s(f"s_load_dwordx2 {sr(K.SRD_D, 2)}, s[0:1], {KA['dbg']}")
    s(f"s_load_dwordx2 {sr(K.SRD_P, 2)}, s[0:1], {KA['wr']}")
    if diag:
        s("s_memrealtime s[96:97]")
    K.stamp(s, diag, 0)
    s("s_getpc_b64 s[32:33]")
    s("Lattn_pc:")
    s("s_mov_b32 s34, Lattn_end-Lattn_pc")
    s("s_mov_b32 s35, 0x20000")
    s("s_lshr_b32 s6, s2, 3")
    s("s_lshl_b32 s7, s6, 6")
    s("v_lshrrev_b32 v3, 6, v0")
    s("v_and_b32 v1, 63, v0")
    s("v_lshrrev_b32 v2, 2, v0")
    s("v_lshlrev_b32 v2, 11, v2")
    s("v_readfirstlane_b32 s3, v3")
    s(f"buffer_load_dword v{PF}, v2, s[32:35], s7 offen", 'PF')
    s("s_and_b32 s7, s2, 7")
    s("s_lshl_b32 s4, s7, 1")
    s("s_and_b32 s5, s6, 1")
    s("s_add_u32 s4, s4, s5")
    s("s_lshr_b32 s5, s2, 4")
    s("s_lshr_b32 s38, s6, 2")
    s("s_lshl_b32 s38, s38, 3")
    s("s_add_u32 s38, s38, s7")
    s("s_cmp_lt_u32 s38, 18")
    s(f"s_cselect_b32 s39, 0, {BIG}")
    s("s_lshl_b32 s38, s38, 2")
    s("s_and_b32 s36, s6, 3")
    s("s_add_u32 s38, s38, s36")
    s(f"s_mov_b32 s{SM + 2}, {SZ['wmod']}")
    s(f"s_mul_i32 s92, s6, {18 * 6912}")
    s("s_lshl_b32 s36, s7, 7")
    s("s_add_u32 s92, s92, s36")
    s("s_cmp_lt_u32 s7, 2")
    s("s_cselect_b32 s36, 53, 35")
    s("v_lshrrev_b32 v2, 2, v0")
    s("v_min_u32 v2, s36, v2")
    s("v_mul_u32_u24 v3, 57, v2")
    s("v_lshrrev_b32 v3, 10, v3")
    s(f"v_mul_i32_i24 v3, {1024 - 18 * 6912}, v3")
    s(f"v_mul_u32_u24 v2, 6912, v2")
    s(f"v_add_u32 v{vT}, v2, v3")
    s(f"s_mov_b32 s{SM + 3}, 0x20000")
    s(f"s_mov_b32 s{SC + 2}, {SZ['c']}")
    s(f"s_mov_b32 s{SC + 3}, 0x20000")
    s(f"s_mov_b32 s{SX + 2}, {SZ['x']}")
    s(f"s_mov_b32 s{SX + 3}, 0x20000")
    s(f"v_and_b32 v{vC}, 0xfe, v0")
    s(f"v_mul_u32_u24 v{vW}, 3456, v{vC}")
    s("v_and_b32 v2, 1, v0")
    s(f"v_lshl_add_u32 v{vW}, v2, 4, v{vW}")
    s("s_lshl_b32 s36, s38, 5")
    s("s_or_b32 s36, s36, s39")
    s("v_and_b32 v4, 31, v1")
    s("v_lshrrev_b32 v5, 5, v1")
    s("v_cmp_gt_u32 vcc, 24, v4")
    s(f"v_mov_b32 v6, {BIG}")
    s("s_lshl_b32 s7, s5, 4")
    s("s_add_u32 s7, s7, s4")
    s("s_lshl_b32 s7, s7, 2")
    s("s_add_u32 s7, s7, s3")
    s("v_cndmask_b32 v6, v6, 0, vcc")
    s("s_mul_i32 s49, s7, 2304")
    s("v_lshrrev_b32 v7, 2, v4")
    s("v_lshl_add_u32 v7, v7, 6, v6")
    s("v_and_b32 v2, 3, v4")
    s("v_lshl_add_u32 v7, v2, 3, v7")
    s("v_mul_u32_u24 v2, 1152, v5")
    s(f"v_add_u32 v{vX}, v7, v2")
    st(1)
    s("s_waitcnt lgkmcnt(0)")
    s2(1)
    s(f"s_load_dword s{K.sEP}, s[50:51], {WS_EPOCH}")
    s(f"buffer_load_dword v{PF + 1}, v{vT}, {sr(SM, 4)}, s92 offen", 'PF')
    for i in range(5):
        s(f"buffer_load_ushort v{CV + i}, v{vC}, {sr(SC, 4)}, 0 offen offset:{256 * i}")
    s2(2)

    def ldx():
        for i in range(3):
            for u in range(2):
                s(f"buffer_load_dwordx2 {vr(XR + 4 * i + 2 * u, 2)}, v{vX}, {sr(SX, 4)}, s49 offen offset:{384 * i + 32 * u}")
        srd(s, K.SRD_O, 58, SZ['wo'])
    if OPT['xl'] == 0:
        ldx()
    s2(3)
    for i in range(5):
        s(f"buffer_load_dwordx4 {vr(WV + 4 * i, 4)}, v{vW}, {sr(SM, 4)}, s36 offen")
        if i < 4:
            s(f"s_add_u32 s36, s36, {128 * 6912}")
    nA = OPT['nq1']
    srd(s, K.SRD_Q, 56, SZ['wq'])
    s(f"s_lshl_b32 s{K.sWQ}, s4, 9")
    for d, sh, rows, r0 in ((vQ, 2, 4 * nA, 0), (vQ2, 1, 4 * (9 - nA), 64 * nA)):
        s(f"s_mul_i32 s36, s5, {rows * 8192}")
        s(f"s_add_u32 s36, s36, {r0 * 8192}")
        s(f"v_lshrrev_b32 v2, {sh}, v0")
        s(f"v_min_u32 v2, {4 * rows - 1}, v2")
        s("v_lshrrev_b32 v3, 2, v2")
        s("v_and_b32 v2, 3, v2")
        s("v_lshl_add_u32 v2, v2, 7, s36")
        s(f"v_lshl_add_u32 v{d}, v3, 13, v2")
    s2(4)
    s(f"s_add_u32 s92, s49, {WS_H}")
    s("v_lshl_add_u32 v7, v5, 4, v6")
    s(f"v_lshl_add_u32 v{vP}, v4, 5, v7")
    s("v_min_u32 v4, 23, v4")
    s(f"v_lshlrev_b32 v{vM}, 4, v4")
    srd(s, SW, 50, WS_PART)
    s(f"s_mov_b32 s{K.SRD_D + 2}, 256")
    s(f"s_mov_b32 s{K.SRD_D + 3}, 0x20000")
    s("s_cmp_ge_u32 s38, 36")
    s("s_cselect_b32 s93, 1.0, 0")
    s("s_lshl_b32 s36, s38, 7")
    s(f"v_lshl_add_u32 v{vG}, v0, 3, s36")
    s(f"v_cmp_gt_u32 s[36:37], {16 if OPT['fl'] & 1 else 8}, v0")
    s(f"v_mov_b32 v2, {BIG}")
    s("v_mov_b32 v3, s39")
    s("v_cndmask_b32 v2, v2, v3, s[36:37]")
    s(f"v_or_b32 v{vG}, v{vG}, v2")
    if OPT['wr']:
        s(f"s_mov_b32 s{K.SRD_P + 2}, {SZ['wr']}")
        s(f"s_mov_b32 s{K.SRD_P + 3}, 0x20000")
        s("v_lshlrev_b32 v2, 7, v0")
        s("v_mov_b32 v3, s39")
        s(f"v_xor_b32 v3, {BIG}, v3")
        s("v_or_b32 v2, v2, v3")
        s(f"buffer_load_dword v{PF + 3}, v2, {sr(K.SRD_P, 4)}, 0 offen", 'PF')
    s("s_mul_i32 s36, s5, 3072")
    s("s_lshl_b32 s37, s5, 11")
    s(f"v_lshrrev_b32 v{vK}, 3, v0")
    s(f"v_min_u32 v{vK}, 23, v{vK}")
    s(f"v_lshl_add_u32 v{vK}, v{vK}, 7, s36")
    s(f"v_lshrrev_b32 v{vV}, 4, v0")
    s(f"v_lshl_add_u32 v{vV}, v{vV}, 7, s37")
    K.setup(s)
    if OPT['xl'] == 1:
        ldx()
    st(2)
    s2(5)
    for i in range(5):
        s(f"v_lshlrev_b32 v{CV + i}, 16, v{CV + i}")
    interleave(s, [(lambda e, i=i: (silu(e, CV + i, X + 4 * i), rnd1(e, CV + i))) for i in range(5)])
    if OPT['xl'] == 2:
        ldx()
    s2(6)
    if OPT['qt'] == 1:
        s(f"buffer_load_dword v{PF + 2}, v{vQ}, {sr(K.SRD_Q, 4)}, s{K.sWQ} offen", 'PF')
    if OPT['kt'] == -1:
        for op in touch_ops(K)[1:]:
            K.emit_op(s, op)
    for i in range(5):
        unpack(s, UT, WV + 4 * i, 4)
        c2 = (CV + i) & ~1
        o = (CV + i) & 1
        for e in range(0, 8, 2):
            if i == 0:
                s(f"v_pk_mul_f32 {vr(AC + e, 2)}, {vr(UT + e, 2)}, {vr(c2, 2)} op_sel:[0,{o}] op_sel_hi:[1,{o}]")
            else:
                s(f"v_pk_fma_f32 {vr(AC + e, 2)}, {vr(UT + e, 2)}, {vr(c2, 2)}, {vr(AC + e, 2)} op_sel:[0,{o},0] op_sel_hi:[1,{o},1]")
    s2(7)
    if OPT['qt'] == 0:
        s(f"buffer_load_dword v{PF + 2}, v{vQ}, {sr(K.SRD_Q, 4)}, s{K.sWQ} offen", 'PF')
    for e in range(4):
        s(f"v_permlane32_swap_b32 v{AC + e}, v{AC + 4 + e}")
    s(f"v_and_b32 v{vT}, 1, v1")
    for e in (0, 2):
        s(f"v_pk_add_f32 {vr(AC + e, 2)}, {vr(AC + e, 2)}, {vr(AC + 4 + e, 2)}")
    s(f"v_lshlrev_b32 v{vT}, 5, v{vT}")
    s(f"v_lshrrev_b32 v{vT + 1}, 4, v1")
    for e in range(2):
        s(f"v_permlane16_swap_b32 v{AC + e}, v{AC + 2 + e}")
    s(f"v_lshl_add_u32 v{vT}, v{vT + 1}, 3, v{vT}")
    s(f"v_pk_add_f32 {vr(AC, 2)}, {vr(AC, 2)}, {vr(AC + 2, 2)}")
    s("s_lshl_b32 s36, s3, 6")
    s(f"v_add_u32 v{vT}, s36, v{vT}")
    red(s, [AC, AC + 1], [], (2, 4, 8), False, False)
    s(f"ds_write_b64 v{vT}, {vr(AC, 2)} offset:{L_RED}")
    s(f"v_and_b32 v{vT + 1}, 7, v1")
    s(f"v_lshlrev_b32 v{vT + 1}, 3, v{vT + 1}")
    s("@lgkm 0")
    s("s_barrier")
    for w in range(4):
        s(f"ds_read_b64 {vr(AC + 2 * w, 2)}, v{vT + 1} offset:{L_RED + 64 * w}")
    s(f"s_add_u32 s{K.sTAG}, s{K.sEP}, 0x9e3779b9")
    s(f"v_mov_b32 v{UT + 1}, s{K.sTAG}")
    s(f"s_mov_b32 s37, {WS_GR}")
    s(f"v_pk_add_f32 {vr(AC, 2)}, {vr(AC, 2)}, {vr(AC + 2, 2)}")
    s(f"v_pk_add_f32 {vr(AC + 4, 2)}, {vr(AC + 4, 2)}, {vr(AC + 6, 2)}")
    s(f"v_pk_add_f32 {vr(AC, 2)}, {vr(AC, 2)}, {vr(AC + 4, 2)}")
    pack(s, UT, AC, 1)
    unpack(s, AC, UT, 1)
    s(f"v_add_f32 v{AC}, s93, v{AC}")
    s(f"v_add_f32 v{AC + 1}, s93, v{AC + 1}")
    pack(s, UT, AC, 1)
    s(f"buffer_store_dwordx2 {vr(UT, 2)}, v{vG}, {sr(SW, 4)}, s37 offen sc1")
    st(3)
    s2(8)
    if OPT['wl']:
        s("s_lshl_b32 s36, s5, 13")
        s(f"s_add_u32 s36, s36, {WS_HFLAG}")
        s("s_lshl_b32 s38, s4, 9")
        s("s_add_u32 s38, s38, s36")
        s("s_lshl_b32 s36, s3, 7")
        s("s_add_u32 s38, s38, s36")
        s("v_min_u32 v2, 1, v1")
        s("v_lshlrev_b32 v2, 31, v2")
        if OPT['wl'] == 1:
            s(f"buffer_store_dword v2, v2, {sr(SW, 4)}, s38 offen offset:4 sc1")
        else:
            s(f"buffer_load_dword v3, v2, {sr(SW, 4)}, s38 offen offset:4 sc1")
    G0, a0, a1, g0, g1 = WV, 122, 123, 124, 125
    s("s_mul_i32 s36, s3, 72")
    s(f"v_add_u32 v{a0}, s36, v1")
    s(f"v_and_b32 v{a1}, 7, v1")
    s("s_add_u32 s36, s36, 64")
    s(f"v_add_u32 v{a1}, s36, v{a1}")
    s(f"s_movk_i32 s36, {L_MOD}")
    for a_, d in ((a0, g0), (a1, g1)):
        s(f"v_and_b32 v{vT + 4}, 3, v{a_}")
        s(f"v_lshlrev_b32 v{vT + 4}, 4, v{vT + 4}")
        s(f"v_lshrrev_b32 v{a_}, 2, v{a_}")
        s(f"v_lshl_add_u32 v{d}, v{a_}, 7, v{vT + 4}")
        s(f"v_and_b32 v{vT + 5}, 1, v{a_}")
        s(f"v_lshl_add_u32 v{vT + 4}, v{vT + 5}, 3, v{vT + 4}")
        s(f"v_lshrrev_b32 v{a_}, 1, v{a_}")
        s(f"v_lshl_add_u32 v{a_}, v{a_}, 6, v{vT + 4}")
        s(f"v_add_u32 v{a_}, s36, v{a_}")

    def touch_a():
        s(f"buffer_load_dword v{PF + 2}, v{vQ}, {sr(K.SRD_Q, 4)}, s{K.sWQ} offen", 'PF')

    def poll_m():
        s(f"buffer_load_dwordx4 {vr(G0, 4)}, v{g0}, {sr(SW, 4)}, s37 offen {OPT['pm']}")
        s(f"buffer_load_dwordx4 {vr(G0 + 4, 4)}, v{g1}, {sr(SW, 4)}, s37 offen {OPT['pm']}")

    def check_m():
        for r in (1, 3, 5, 7):
            s(f"v_xor_b32 v{G0 + r}, s{K.sTAG}, v{G0 + r}")
        s(f"v_or3_b32 v{G0 + 1}, v{G0 + 1}, v{G0 + 3}, v{G0 + 5}")
        s(f"v_or_b32 v{G0 + 1}, v{G0 + 1}, v{G0 + 7}")
        s(f"v_cmp_ne_u32 vcc, 0, v{G0 + 1}")

    def early(n):
        if OPT['pp'] == n:
            poll_m()
            if OPT['qt'] == 4:
                touch_a()
    if OPT['tp'] in (0, 4):
        s("Lhead_tour:")
    unpack(s, X, XR, 12)
    early(0)
    if OPT['qt'] == 2:
        s(f"buffer_load_dword v{PF + 2}, v{vQ}, {sr(K.SRD_Q, 4)}, s{K.sWQ} offen", 'PF')
    m, v, t = vT, vT + 2, vT + 4

    def f_sum(acc, e, first):
        if e < 4:
            s(f"v_pk_add_f32 {vr(acc, 2)}, {vr(X + e, 2)}, {vr(X + e + 4, 2)}")
        elif e >= 8:
            s(f"v_pk_add_f32 {vr(acc, 2)}, {vr(acc, 2)}, {vr(X + e, 2)}")
    sum24(s, m, t, f_sum)
    red(s, [m], [t], (1, 2, 4, 8), True, False)
    s(f"v_mul_f32 v{m}, 0x3ae38e39, v{m}")
    early(1)
    for e in range(0, 24, 2):
        s(f"v_pk_add_f32 {vr(D + e, 2)}, {vr(X + e, 2)}, {vr(m, 2)} op_sel_hi:[1,0] neg_lo:[0,1] neg_hi:[0,1]")

    def f_sq(acc, e, first):
        if first:
            s(f"v_pk_mul_f32 {vr(acc, 2)}, {vr(D + e, 2)}, {vr(D + e, 2)}")
        else:
            s(f"v_pk_fma_f32 {vr(acc, 2)}, {vr(D + e, 2)}, {vr(D + e, 2)}, {vr(acc, 2)}")
    sum24(s, v, t, f_sq)
    s(f"v_cndmask_b32 v{v}, 0, v{v}, vcc")
    red(s, [v], [t], (1, 2, 4, 8), True, False)
    s(f"v_mul_f32 v{v}, 0x3ae38e39, v{v}")
    early(2)
    s(f"v_cvt_pk_bf16_f32 v{t}, v{m}, v{v}")
    s(f"v_and_b32 v{v}, 0xffff0000, v{t}")
    s(f"v_lshlrev_b32 v{m}, 16, v{t}")
    s(f"v_add_f32 v{v}, 0x3727c5ac, v{v}")
    rnd1(s, v)
    s(f"v_sqrt_f32 v{v}, v{v}")
    for e in range(0, 24, 2):
        s(f"v_pk_add_f32 {vr(D + e, 2)}, {vr(X + e, 2)}, {vr(m, 2)} op_sel_hi:[1,0] neg_lo:[0,1] neg_hi:[0,1]")
    rnd1(s, v)
    s(f"v_rcp_f32 v{v}, v{v}")
    pack(s, XR, D, 12)
    unpack(s, D, XR, 12)
    for e in range(0, 24, 2):
        s(f"v_pk_mul_f32 {vr(D + e, 2)}, {vr(D + e, 2)}, {vr(v, 2)} op_sel_hi:[1,0]")
    pack(s, XR, D, 12)
    unpack(s, D, XR, 12)
    if OPT['qt'] == 3:
        s(f"buffer_load_dword v{PF + 2}, v{vQ}, {sr(K.SRD_Q, 4)}, s{K.sWQ} offen", 'PF')
    for c in range(OPT['nq0']):
        for op in K.wq_tile(c, 0) + K.wq_tile(c, 1):
            K.emit_op(s, op)
    if OPT['tp'] == 2:
        s("Lhead_tour:")
    s(f"s_mov_b32 s38, {SPIN}")
    st(4)
    if OPT['pp'] >= 0:
        check_m()
        s("s_cbranch_vccz Lhead_gotm")
    s("Lhead_pollm:")
    s("@hide")
    poll_m()
    s("s_waitcnt vmcnt(0)")
    s("s_sub_u32 s38, s38, 1")
    s("s_cbranch_scc1 Lhead_gotm")
    check_m()
    s("s_cbranch_vccnz Lhead_pollm")
    s("@show")
    s("Lhead_gotm:")
    if OPT['qt'] == 5:
        touch_a()
    s(f"ds_write2_b32 v{a0}, v{G0}, v{G0 + 2} offset0:0 offset1:1")
    s(f"ds_write2_b32 v{a1}, v{G0 + 4}, v{G0 + 6} offset0:0 offset1:1")
    s("@lgkm 0")
    s("s_barrier")
    st(5)
    for i in range(3):
        s(f"ds_read_b128 {vr(X + 4 * i, 4)}, v{vM} offset:{L_MOD + 1152 + 384 * i}")
    for i in range(3):
        s(f"ds_read_b128 {vr(X + 12 + 4 * i, 4)}, v{vM} offset:{L_MOD + 384 * i}")
    unpack(s, C1, X, 12)
    for e in range(0, 24, 2):
        s(f"v_pk_mul_f32 {vr(D + e, 2)}, {vr(D + e, 2)}, {vr(C1 + e, 2)}")
    pack(s, XR, D, 12)
    unpack(s, SA, X + 12, 12)
    unpack(s, D, XR, 12)
    for i in range(3):
        for e in range(8 * i, 8 * i + 8, 2):
            s(f"v_pk_add_f32 {vr(D + e, 2)}, {vr(D + e, 2)}, {vr(SA + e, 2)}")
        pack(s, XR + 4 * i, D + 8 * i, 4)
        s(f"buffer_store_dwordx4 {vr(XR + 4 * i, 4)}, v{vP}, {sr(SW, 4)}, s92 offen offset:{768 * i} sc1", 'HS')
    if OPT['tp'] == 3:
        s("Lhead_tour:")
    if OPT['tp'] == 4:
        s("Lhead_tour2:")
    s("s_lshl_b32 s36, s5, 13")
    s(f"s_add_u32 s36, s36, {WS_HFLAG}")
    s("s_lshl_b32 s37, s4, 9")
    s("s_add_u32 s37, s37, s36")
    s("s_lshl_b32 s38, s3, 7")
    s("s_add_u32 s37, s37, s38")
    s("s_lshl_b32 s38, s3, 11")
    s("s_add_u32 s36, s36, s38")
    s(f"v_min_u32 v{vT}, 1, v1")
    s(f"v_lshlrev_b32 v{vT}, 31, v{vT}")
    s(f"v_and_b32 v{vT + 1}, 15, v1")
    s(f"v_lshlrev_b32 v{vT + 1}, 7, v{vT + 1}")
    s("v_cmp_gt_u32 vcc, 162, v0")
    for e in range(4):
        s(f"v_mov_b32 v{WV + e}, -1")
    s("s_mul_i32 s39, s2, 2592")
    s(f"s_add_u32 s39, s39, {WS_Y}")
    s(f"v_lshl_add_u32 v{vT + 2}, v0, 4, s39")
    s("s_lshl_b32 s39, s2, 7")
    s(f"s_add_u32 s39, s39, {WS_KEY}")
    s(f"v_mov_b32 v{vT + 3}, s39")
    s(f"v_cndmask_b32 v{vT + 2}, v{vT + 3}, v{vT + 2}, vcc")
    s("s_lshl_b32 s92, s5, 13")
    s(f"s_add_u32 s92, s92, {WS_FLAG}")
    s("s_add_u32 s92, s92, s38")
    s("s_lshl_b32 s38, s4, 7")
    s("s_add_u32 s92, s92, s38")
    s("s_getreg_b32 s38, hwreg(HW_REG_XCC_ID, 0, 4)")
    s(f"s_add_u32 s38, s38, s{K.sTAG}")
    s(f"v_mov_b32 v{vT + 4}, s38")
    for i in range(5):
        s(f"v_mov_b32 v{K.MC + i}, v{CV + i}")
    s(f"v_mov_b32 v{K.MW}, v{vW}")
    if OPT['fl'] & 2:
        s("v_and_b32 v126, 31, v1")
        s("v_lshlrev_b32 v126, 2, v126")
    s("@vm HS")
    s(f"buffer_store_dword v{UT + 1}, v{126 if OPT['fl'] & 2 else vT}, {sr(SW, 4)}, s37 offen sc1")
    st(6)
    if OPT['kt'] == -2:
        for op in touch_ops(K)[1:]:
            K.emit_op(s, op)
    for c in range(OPT['nq0'], OPT['nq2']):
        for op in K.wq_tile(c, 0) + K.wq_tile(c, 1):
            K.emit_op(s, op)
    if OPT['tp'] == 1:
        s("Lhead_tour:")
    s(f"s_mov_b32 s38, {SPIN}")
    st(7)
    s("Lhead_pollh:")
    s(f"buffer_load_dword v{vT + 3}, v{vT + 1}, {sr(SW, 4)}, s36 offen {OPT['ph']}")
    s("s_sub_u32 s38, s38, 1")
    s("s_cbranch_scc1 Lhead_goth")
    s("@drain")
    s(f"v_cmp_ne_u32 vcc, s{K.sTAG}, v{vT + 3}")
    s("s_cbranch_vccnz Lhead_pollh")
    s("Lhead_goth:")
    s("@drain")
    st(8)
    assert nA == 3
    for c in range(1):
        for op in K.h_loads(c):
            K.emit_op(s, op)


def touch_ops(K):
    ops = [f"buffer_load_dword v{vT + 5}, v{vQ2}, {sr(K.SRD_Q, 4)}, s{K.sWQ} offen"]
    if True:
        ops += [f"buffer_load_dword v{vT + 6}, v{vK}, {sr(K.SRD_K, 4)}, 0 offen",
                f"buffer_load_dword v{vT + 7}, v{vV}, {sr(K.SRD_V, 4)}, 0 offen"]
    return [([], t, 'PF', []) for t in ops]


def arm_ops(K):
    SW = K.SRD_H
    ops = [f"buffer_store_dword v{vT + 4}, v{vT}, {sr(SW, 4)}, s92 offen offset:12 sc1",
           f"buffer_store_dwordx4 {vr(WV, 4)}, v{vT + 2}, {sr(SW, 4)}, 0 offen sc1"]
    return [([], t, 'ARM', []) for t in ops]
```

```python
import re

TRANS = ('v_exp_f32', 'v_rcp_f32', 'v_rsq_f32', 'v_sqrt_f32', 'v_log_f32')


def regs(op):
    op = op.strip().lstrip('-')
    m = re.fullmatch(r'([va])(\d+)', op)
    if m:
        return {(m.group(1), int(m.group(2)))}
    m = re.fullmatch(r'([va])\[(\d+):(\d+)\]', op)
    if m:
        return {(m.group(1), i) for i in range(int(m.group(2)), int(m.group(3)) + 1)}
    return set()


class Ins:
    def __init__(self, text, tag=None):
        self.text = text
        self.tag = tag
        self.dst = set(); self.src = set(); self.srcC = set(); self.srcAB = set()
        t = text.split(None, 1)
        self.mn = mn = t[0]
        ops = [o.strip() for o in re.sub(r'(quad_perm|op_sel|op_sel_hi|neg_lo|neg_hi):\[[^\]]*\]', '', t[1]).split(',')] if len(t) > 1 else []
        ops = [o.split()[0] if o else o for o in ops]
        R = [regs(o) for o in ops]
        U = lambda xs: set().union(*xs) if xs else set()
        if mn.endswith(':') or mn.startswith('@'):
            self.k = 'meta'
        elif mn.startswith('v_mfma'):
            self.k = 'mfma'; self.dst = R[0]; self.srcAB = R[1] | R[2]; self.srcC = R[3]
        elif mn.startswith('v_smfmac'):
            self.k = 'mfma'; self.dst = R[0]; self.srcAB = R[1] | R[2] | R[3]; self.srcC = R[0]
        elif mn.startswith('ds_read') or mn.startswith('ds_bperm'):
            self.k = 'ds'; self.dst = R[0]; self.src = U(R[1:])
        elif mn.startswith('ds_'):
            self.k = 'ds'; self.src = U(R)
        elif mn.startswith('global_load'):
            self.k = 'vm'; self.dst = R[0]; self.src = R[1]
        elif mn.startswith('buffer_load'):
            self.k = 'vm'
            if text.rstrip().endswith(' lds') or ' lds ' in text:
                self.src = R[0]
            else:
                self.dst = R[0]; self.src = R[1]
        elif mn.startswith('buffer_'):
            self.k = 'vm'; self.src = U(R)
        elif mn.startswith('v_'):
            self.k = 'valu'
            self.dst = R[0]; self.src = U(R[1:])
            if 'swap' in mn:
                self.dst = R[0] | R[1]; self.src = R[0] | R[1]
            if 'fmac' in mn or 'dpp' in mn:
                self.src |= R[0]
        else:
            self.k = 'salu'
        if self.k == 'mfma':
            self.src = self.srcAB | self.srcC

    def states(self):
        if self.k == 'meta':
            return 0
        if self.mn == 's_nop':
            return int(self.text.split()[1]) + 1
        return 1


class Stream:
    def __init__(self):
        self.I = []

    def __call__(self, text, tag=None):
        for line in text.split('\n'):
            line = line.strip()
            if line:
                self.I.append(Ins(line, tag))

    def resolve(self):
        out = []
        ds = []; ds_done = 0
        vm = []; vm_done = 0
        pend_ds = {}; pend_vm = {}
        last_mfma_pos = None
        ds_at_mfma = 0; vm_at_mfma = 0
        self.stats = dict(lgkm=0, vm=0, nop=0)

        def wait(kind, n):
            assert n >= 0
            lim = 15 if kind == 'lgkmcnt' else 63
            return Ins(f"s_waitcnt {kind}({min(n, lim)})")

        hidden = False
        for ins in self.I:
            if ins.mn in ('@hide', '@show'):
                hidden = ins.mn == '@hide'
                continue
            if hidden:
                out.append(ins)
                continue
            if ins.mn == '@lgkm':
                n = int(ins.text.split()[1])
                out.append(wait('lgkmcnt', n)); ds_done = max(ds_done, len(ds) - n)
                continue
            if ins.mn == '@ds':
                need = max(i for i, x in enumerate(ds) if x.tag == ins.text.split()[1]) + 1
                if need > ds_done:
                    out.append(wait('lgkmcnt', len(ds) - need)); ds_done = need
                continue
            if ins.mn == '@vm':
                tags = ins.text.split()[1].split(',')
                idx = [i for i, x in enumerate(vm) if x.tag in tags]
                assert idx, tags
                need = max(idx) + 1
                force = len(ins.text.split()) > 2
                if need > vm_done or force:
                    assert len(vm) - need <= 63
                    out.append(wait('vmcnt', len(vm) - need)); vm_done = max(need, vm_done)
                continue
            if ins.mn == '@drain':
                out.append(Ins("s_waitcnt vmcnt(0) lgkmcnt(0)")); ds_done = len(ds); vm_done = len(vm)
                continue
            if ins.k == 'meta':
                out.append(ins)
                if ins.mn.endswith(':'):
                    last_mfma_pos = None
                continue
            touched = ins.src | ins.dst
            for kind, q, pend in (('lgkmcnt', ds, pend_ds), ('vmcnt', vm, pend_vm)):
                need = max([pend[r] + 1 for r in touched if r in pend], default=0)
                done = ds_done if kind == 'lgkmcnt' else vm_done
                if need > done:
                    at = ds_at_mfma if kind == 'lgkmcnt' else vm_at_mfma
                    lim = 15 if kind == 'lgkmcnt' else 63
                    if ins.k == 'mfma' and last_mfma_pos is not None and need <= at:
                        n = min(at - need, lim)
                        out.insert(last_mfma_pos, wait(kind, n)); done = at - n
                    else:
                        n = min(len(q) - need, lim)
                        out.append(wait(kind, n)); done = len(q) - n
                    self.stats['lgkm' if kind == 'lgkmcnt' else 'vm'] += 1
                    if kind == 'lgkmcnt':
                        ds_done = done
                    else:
                        vm_done = done
            out.append(ins)
            if ins.k == 'ds':
                for r in ins.dst:
                    pend_ds[r] = len(ds)
                if ins.mn.startswith('ds_write'):
                    for r in ins.src:
                        if r[0] == 'a':
                            pend_ds[r] = len(ds)
                ds.append(ins)
            elif ins.k == 'vm':
                for r in ins.dst:
                    pend_vm[r] = len(vm)
                vm.append(ins)
                assert len(vm) - vm_done <= 63 + 16, 'too many VMEM in flight'
            if ins.k == 'mfma':
                last_mfma_pos = len(out); ds_at_mfma = len(ds); vm_at_mfma = len(vm)
        self.I = self.pad(out)
        return self

    def pad(self, seq):
        out = []
        for ins in seq:
            need = 0
            dist = 0
            for p in reversed(out):
                if dist >= 12:
                    break
                req = 0
                if p.k == 'mfma':
                    npass8 = '32x32' in p.mn
                    if ins.k == 'mfma':
                        if p.dst & ins.srcAB:
                            req = 12 if npass8 else 8
                        elif p.dst & ins.srcC and p.dst != ins.srcC:
                            req = 10 if npass8 else 6
                    elif ins.k in ('valu', 'ds', 'vm'):
                        if p.dst & (ins.src | ins.dst):
                            req = 12 if npass8 else 8
                        elif ins.k == 'valu' and p.srcC & ins.dst:
                            req = 7 if npass8 else 3
                elif p.k == 'valu':
                    if ins.k == 'mfma' and p.dst & ins.src:
                        req = 2
                    elif ins.k == 'valu' and p.dst & ins.src:
                        if 'permlane' in ins.mn or 'dpp' in ins.mn:
                            req = 2
                        elif 'readfirstlane' in ins.mn or 'readlane' in ins.mn:
                            req = 1
                        elif p.mn in TRANS and ins.mn not in TRANS:
                            req = 1
                        elif 'permlane' in p.mn:
                            req = 1
                elif p.k == 'vm' and p.mn.startswith('buffer_store'):
                    if p.src & ins.dst:
                        req = 2
                elif p.k == 'salu' and re.search(r'\sm0,', p.text) and ins.k == 'vm' and ' lds' in ins.text:
                    req = 1
                need = max(need, req - dist)
                dist += p.states()
            if need > 0:
                out.append(Ins(f"s_nop {need - 1}")); self.stats['nop'] += 1
            out.append(ins)
        return out

    def split(self):
        parts = []; cur = ('_head', [])
        for ins in self.I:
            if ins.mn == '@mark':
                parts.append(cur); cur = (ins.text.split()[1], [])
            else:
                cur[1].append(ins.text)
        parts.append(cur)
        return parts
```

```python
from dsl import *
from sched import Stream

M16 = 'v_mfma_f32_16x16x32_bf16'
BIG = 0x80000000
SPIN = 1 << 14
SW, SP, SX, SO, SR, SY = 24, 28, 12, 16, 20, 8
sLU, sLU2 = 38, 39
sQ, sB0, sB1 = 56, 58, 49
sOCT, sIDX, sROLE, sA, sB, sC, sT0, sT1, sN = 40, 41, 42, 43, 44, 45, 46, 47, 48
sFL, sPL, sK0, sK1 = 92, 39, 92, 93
pWS = 50
vP, vXC, vX, vM, vR, vTOK, vF, vPL, vZ, POLL = 2, 3, 4, 5, 6, 7, 8, 9, 10, 11
vPD, vXC2, vX2, vM2, vR2 = 54, 55, 58, 59, 60
RAW = ((36, 40, 92), (160, 164, 168), (172, 208, 212), (64, 68, 72), (76, 80, 84), (216, 220, 88))
X1, GA, C1, SB, WR, GB = 12, 96, 120, 144, 168, 192
SELD, SELE, SELO = 240, 244, 248
A, H, PKX, PKH, PKO = 64, 216, 36, 64, 144
tM, tV, tT, tU = 48, 50, 52, 62
PB = {'D': 0, '0': 16, '1': 32, '2': 48, '3': 64}
HB, WF, DF = 120, 0, 72
L_WG, L_WU, L_WU2, L_WD, L_XCH, L_KEY, L_SEL = 98304, 135168, 40960, 49152, 32768, 36864, 36928


def unpack(s, dst, src, n):
    for i in range(n):
        s(f"v_lshlrev_b32 v{dst + 2 * i}, 16, v{src + i}")
        s(f"v_and_b32 v{dst + 2 * i + 1}, 0xffff0000, v{src + i}")


def pack(s, dst, src, n):
    for i in range(n):
        s(f"v_cvt_pk_bf16_f32 v{dst + i}, v{src + 2 * i}, v{src + 2 * i + 1}")


def rnd1(s, r):
    s(f"v_cvt_pk_bf16_f32 v{r}, v{r}, v{r}")
    s(f"v_and_b32 v{r}, 0xffff0000, v{r}")


def red(s, regs, tmps, rors, x16, x32, op='v_add_f32'):
    for ro in rors:
        for r in regs:
            s(f"{op}_dpp v{r}, v{r}, v{r} row_ror:{ro} row_mask:0xf bank_mask:0xf")
    for sw, on in (('v_permlane16_swap_b32', x16), ('v_permlane32_swap_b32', x32)):
        if on:
            for r, t in zip(regs, tmps):
                s(f"v_mov_b32 v{t}, v{r}")
            for r, t in zip(regs, tmps):
                s(f"{sw} v{r}, v{t}")
            for r, t in zip(regs, tmps):
                s(f"{op} v{r}, v{r}, v{t}")


def top2_lane(s, K, n, k1, k2):
    s(f"v_max_u32 v{k1}, v{K}, v{K + 1}")
    s(f"v_min_u32 v{k2}, v{K}, v{K + 1}")
    for i in range(2, n):
        s(f"v_med3_u32 v{k2}, v{k1}, v{k2}, v{K + i}")
        s(f"v_max_u32 v{k1}, v{k1}, v{K + i}")


def top2_wave(s, k1, k2, p1, p2, t):
    def merge():
        s(f"v_min_u32 v{t}, v{k1}, v{p1}")
        s(f"v_max_u32 v{k1}, v{k1}, v{p1}")
        s(f"v_max3_u32 v{k2}, v{t}, v{k2}, v{p2}")
    for ro in (1, 2, 4, 8):
        s(f"v_mov_b32_dpp v{p1}, v{k1} row_ror:{ro} row_mask:0xf bank_mask:0xf")
        s(f"v_mov_b32_dpp v{p2}, v{k2} row_ror:{ro} row_mask:0xf bank_mask:0xf")
        merge()
    for sw in ('v_permlane16_swap_b32', 'v_permlane32_swap_b32'):
        s(f"v_mov_b32 v{p1}, v{k1}")
        s(f"v_mov_b32 v{p2}, v{k2}")
        s(f"{sw} v{k1}, v{p1}")
        s(f"{sw} v{k2}, v{p2}")
        merge()


def srd(s, *args):
    a = Asm(); a.srd(*args); s(a.text())


def fin(s):
    s.resolve()
    return [t for _, ls in s.split() for t in ls]


def stamp(s, diag, i, fine=False):
    if diag and (fine == (OPT['fine'] == 4) or i in (0, 7)):
        s(f"s_memrealtime {sr(60 + 2 * i, 2)}")


def prepare():
    L = []
    s = L.append
    t0, t1, t2, t3 = 240, 241, 242, 243
    s(f"s_lshl_b32 s{sOCT}, s5, 4")
    s(f"s_add_u32 s{sOCT}, s{sOCT}, s4")
    s(f"v_and_b32 v{t0}, 31, v1")
    s(f"v_lshrrev_b32 v{t1}, 5, v1")
    s(f"v_cmp_gt_u32 vcc, 8, v{t0}")
    s(f"v_mov_b32 v{t2}, {BIG}")
    s(f"s_lshl_b32 s{sA}, s{sOCT}, 3")
    s(f"s_lshl_b32 s{sB}, s3, 1")
    s(f"s_add_u32 s{sA}, s{sA}, s{sB}")
    s(f"v_cndmask_b32 v{t2}, v{t2}, 0, vcc")
    s(f"v_add_u32 v{vTOK}, s{sA}, v{t1}")
    s(f"v_lshlrev_b32 v{vM}, 4, v{t0}")
    s(f"v_lshlrev_b32 v{t3}, 4, v{t1}")
    s(f"v_lshl_add_u32 v{vP}, v{t0}, 5, v{t3}")
    s(f"v_lshrrev_b32 v{t3}, 4, v{t0}")
    s(f"v_mul_u32_u24 v{t3}, 1536, v{t3}")
    s(f"v_add_u32 v{vP}, v{vP}, v{t3}")
    s(f"s_mul_i32 s{sB}, s{sA}, {PAIR // 2}")
    s(f"v_lshrrev_b32 v{t3}, 2, v{t0}")
    s(f"v_lshlrev_b32 v{t3}, 6, v{t3}")
    s(f"v_and_b32 v{t1}, 3, v{t0}")
    s(f"v_lshl_add_u32 v{vXC}, v{t1}, 3, v{t3}")
    s(f"v_mul_u32_u24 v{t3}, 1152, v{vTOK}")
    s(f"v_add_u32 v{vX}, v{t3}, v{vXC}")
    s(f"v_lshl_add_u32 v{vR}, v{t3}, 1, v{vM}")
    for d, r in ((vXC2, vXC), (vX2, vX), (vM2, vM), (vR2, vR)):
        s(f"v_or_b32 v{d}, v{r}, v{t2}")
    s(f"v_lshrrev_b32 v{t3}, 4, v1")
    s(f"v_lshlrev_b32 v{t3}, 8, v{t3}")
    s(f"v_and_b32 v{t1}, 7, v1")
    s(f"v_lshl_add_u32 v{t3}, v{t1}, 5, v{t3}")
    s(f"v_and_b32 v{t1}, 8, v1")
    s(f"v_lshl_add_u32 v{vPD}, v{t1}, 1, v{t3}")
    s(f"s_lshr_b32 s{sIDX}, s2, 3")
    for d, n in ((SX, 'x'), (SO, 'out')):
        s(f"s_mov_b32 s{d + 2}, {SZ[n]}")
        s(f"s_mov_b32 s{d + 3}, 0x20000")
    s((f"s_add_u32 s{SY}, s{pWS}, {WS_Y}", f"s_addc_u32 s{SY + 1}, s{pWS + 1}, 0"))
    s(f"s_mov_b32 s{SY + 2}, {Y_BYTES}")
    s(f"s_mov_b32 s{SY + 3}, 0x20000")
    s(f"s_lshl_b32 s{sPL}, s5, 13")
    s(f"s_add_u32 s{sPL}, s{sPL}, {WS_FLAG}")
    s(f"s_lshr_b32 s{sC}, s4, 2")
    s(f"s_lshl_b32 s{sC}, s{sC}, 11")
    s(f"s_add_u32 s{sPL}, s{sPL}, s{sC}")
    s(f"v_and_b32 v{vPL}, 15, v1")
    s(f"v_lshlrev_b32 v{vPL}, 7, v{vPL}")
    s(190)
    s(f"v_lshrrev_b32 v{t0}, 4, v1")
    s(f"v_and_b32 v{t0}, 2, v{t0}")
    s(f"v_bfe_u32 v{t1}, v1, 2, 2")
    s(f"v_cmp_eq_u32 s[54:55], v{t0}, v{t1}")
    s(f"v_or_b32 v{t0}, 1, v{t0}")
    s(f"v_cmp_eq_u32 s[36:37], v{t0}, v{t1}")
    s(f"v_and_b32 v{t0}, 1, v1")
    s(f"v_lshlrev_b32 v{t0}, 4, v{t0}")
    s(f"v_mov_b32 v{t1}, 0x3f80")
    s(f"v_lshlrev_b32 v{t0}, v{t0}, v{t1}")
    s(f"v_bfe_i32 v{t1}, v1, 1, 1")
    s(f"v_and_b32 v{SELD + 3}, v{t0}, v{t1}")
    s(f"v_xor_b32 v{SELD + 2}, v{t0}, v{SELD + 3}")
    for d, mk in ((SELE, 's[54:55]'), (SELO, 's[36:37]')):
        s(f"v_cndmask_b32 v{d + 2}, 0, v{SELD + 2}, {mk}")
        s(f"v_cndmask_b32 v{d + 3}, 0, v{SELD + 3}, {mk}")
    for r in (0, 1, 4, 5, 8, 9, 12, 13):
        s(f"v_mov_b32 v{SELD + r}, 0")
    s(404)
    s(f"s_and_b32 s{sROLE}, s2, 7")
    s(f"s_mov_b64 {sr(SR, 2)}, s[52:53]")
    s(f"s_mov_b32 s{SR + 2}, {SZ['wr']}")
    s(f"s_mov_b32 s{SR + 3}, 0x20000")

    def mod(dst, which):
        return [([f"s_mov_b32 s{sC}, {WS_MODP + 1152 * which}"] if i == 0 else [],
                 f"buffer_load_dwordx4 {vr(dst[i], 4)}, v{vM2 if i == 2 else vM}, {sr(SW, 4)}, s{sC} offen offset:{512 * i} sc1", 'R', []) for i in range(3)]

    def row(dst, voff, srd_):
        return [([], f"buffer_load_dwordx2 {vr(dst[i] + 2 * u, 2)}, v{voff[i == 2]}, {sr(srd_, 4)}, 0 offen offset:{512 * i + 32 * u}", 'R', [])
                for i in range(3) for u in range(2)]
    xr = row(RAW[0], (vX, vX2), SX)
    return L, xr[:4], mod(RAW[1], 2) + mod(RAW[2], 4), xr[4:] + mod(RAW[3], 3) + row(RAW[4], (vXC, vXC2), SR) + mod(RAW[5], 5)


def pointer_loads():
    return [f"s_load_dwordx2 {sr(SX, 2)}, s[0:1], {KA['x']}", f"s_load_dwordx2 {sr(SO, 2)}, s[0:1], {KA['out']}",
            f"s_load_dwordx2 s[52:53], s[0:1], {KA['wr']}"]


def flag_store():
    return [f"s_add_u32 s{sFL}, s{sFL}, {OPT['fs']}", f"buffer_store_dword v{vZ}, v{vF}, {sr(SW, 4)}, s{sFL} offen sc1"]


def flag_poll():
    return [f"s_add_u32 s{sPL}, s{sPL}, {OPT['fs']}", f"buffer_load_dword v{POLL}, v{vPL}, {sr(SW, 4)}, s{sPL} offen {OPT['pf']}"]


def flag_check(n):
    return [f"v_cmp_ne_u32 s[54:55], s95, v{POLL}", "s_cmp_lg_u64 s[54:55], 0", f"s_cbranch_scc1 Ltail_spin{n}", f"Ltail_got{n}:"]


def flag_try():
    return [f"v_cmp_ne_u32 s[54:55], s95, v{POLL}", "s_cmp_lg_u64 s[54:55], 0",
            f"s_cselect_b32 s{sB0}, {BIG}, s{sB}", f"s_cselect_b32 s{sB1}, s{sB}, {BIG}"]


def flag_spin(a, n):
    a(f"Ltail_spin{n}:")
    if n == 1 and OPT['p3']:
        a("s_waitcnt vmcnt(0)")
        a(flag_store()[1])
    a(f"s_mov_b32 s{sN}, {SPIN}")
    a(f"Ltail_spinl{n}:")
    a(flag_poll()[1])
    a("s_waitcnt vmcnt(0)")
    a(f"v_cmp_ne_u32 s[54:55], s95, v{POLL}")
    a(f"s_sub_u32 s{sN}, s{sN}, 1")
    a(f"s_cbranch_scc1 Ltail_got{n}")
    a("s_cmp_lg_u64 s[54:55], 0")
    a(f"s_cbranch_scc1 Ltail_spinl{n}")
    a(f"s_branch Ltail_got{n}")


def part_loads(groups, base=None, ro=0):
    ops = []
    for c in groups:
        for k in range(4):
            if c == 'D':
                pre, v, off = ([16384] if k == 0 else []), vPD, 1024 * k
            else:
                pre, v, off = [4096 * k], vP, 512 * int(c)
            ops.append(([f"s_add_u32 s{sQ}, s{base or sB}, {x}" for x in pre],
                        f"buffer_load_dwordx4 {ar(ro + PB[c] + 4 * k, 4)}, v{v}, {sr(SP, 4)}, s{sQ} offen offset:{off} sc1", 'PL', []))
    return ops


def post(s, diag, fwrites, emit_op):
    def acc(c, ro=0, first=True, last=True):
        i, sel = (2, SELD) if c == 'D' else (int(c) >> 1, (SELE, SELO)[int(c) & 1])
        for k in range(4):
            for u in range(2):
                d = vr(A + 8 * i + 4 * u, 4)
                s(f"{M16} {d}, {vr(sel + 2 - 2 * u, 4)}, {ar(ro + PB[c] + 4 * k, 4)}, {'0' if first and k == 0 and c in 'D02' else d}")
        if not last:
            return
        if c == 'D':
            for e in range(8):
                s(f"v_mov_b32_dpp v{A + 16 + e}, v{A + 16 + e} row_ror:8 row_mask:0x4 bank_mask:0xf")
        if c in 'D13':
            resid(i)

    def unp(dst, r):
        for i in range(3):
            unpack(s, dst + 8 * i, r[i], 4)

    def resid(i):
        for e in range(8 * i, 8 * i + 8, 2):
            s(f"v_pk_fma_f32 {vr(X1 + e, 2)}, {vr(GA + e, 2)}, {vr(A + e, 2)}, {vr(X1 + e, 2)}")
        pack(s, PKX + 4 * i, X1 + 8 * i, 4)
        unpack(s, X1 + 8 * i, PKX + 4 * i, 4)
        if not OPT['cand']:
            s(f"s_mov_b32 s{sC}, {WS_X1}")
            s(f"buffer_store_dwordx4 {vr(PKX + 4 * i, 4)}, v{vR2 if i == 2 else vR}, {sr(SW, 4)}, s{sC} offen offset:{512 * i} sc1")
        e = X1 + 8 * i
        if i == 2:
            s(f"v_pk_add_f32 {vr(m, 2)}, {vr(e, 2)}, {vr(e + 2, 2)}")
            s(f"v_pk_add_f32 {vr(v, 2)}, {vr(e + 4, 2)}, {vr(e + 6, 2)}")
        else:
            for x in range(4):
                r = (m, v)[x & 1]
                s(f"v_pk_add_f32 {vr(r, 2)}, {vr(r, 2)}, {vr(e + 2 * x, 2)}")
    m, v, t = tM, tV, tT
    stamp(s, diag, 0)
    if diag:
        s("s_memrealtime s[72:73]")
    S0, S1 = OPT['s0'], OPT['s1']
    S2 = 'D0123'[len(S0 + S1):]
    assert S0 + S1 + S2 == 'D0123'
    ops = (part_loads(S0, sB1, 80) if OPT['nb'] else []) + part_loads(S1)
    p3 = OPT['p3']
    s(flag_store()[0])
    if p3:
        for x in flag_check(1):
            s(x)
        for op in ops[:p3]:
            emit_op(s, op)
    for dst, r in zip((GA, C1, SB, WR), RAW[1:5]):
        unp(dst, r)
    s("@vm ST3")
    s(flag_store()[1])
    stamp(s, diag, 1, True)
    if not p3:
        for x in flag_check(1):
            s(x)
    for op in ops[p3:OPT['p2']]:
        emit_op(s, op)
    for x in fwrites:
        s(x)
    unp(X1, RAW[0])
    unp(GB, RAW[5])
    for x in flag_poll():
        s(x)
    for op in ops[OPT['p2']:]:
        emit_op(s, op)
    for c in S0:
        acc(c, 0, True, not OPT['nb'])
    stamp(s, diag, 2, True)
    for x in flag_check(2):
        s(x)
    stamp(s, diag, 1)
    stamp(s, diag, 3, True)
    for op in part_loads(S2):
        emit_op(s, op)
    stamp(s, diag, 4, True)
    if OPT['nb']:
        for c in S0:
            acc(c, 80, False)
    for c in S1 + S2:
        acc(c)
    stamp(s, diag, 2)
    stamp(s, diag, 5, True)
    s(f"v_pk_add_f32 {vr(m, 2)}, {vr(m, 2)}, {vr(v, 2)}")
    s(f"v_add_f32 v{m}, v{m}, v{m + 1}")
    red(s, [m], [t], (1, 2, 4, 8), True, False)
    s(f"v_mul_f32 v{m}, 0x3ae38e39, v{m}")
    for e in range(0, 24, 2):
        s(f"v_pk_add_f32 {vr(H + e, 2)}, {vr(X1 + e, 2)}, {vr(m, 2)} op_sel_hi:[1,0] neg_lo:[0,1] neg_hi:[0,1]")

    def dot(p, q, mask):
        for e in range(0, 8, 2):
            for r, o in ((v, 0), (t, 8), (tU, 16)):
                if e == 0:
                    s(f"v_pk_mul_f32 {vr(r, 2)}, {vr(p + o, 2)}, {vr(q + o, 2)}")
                else:
                    s(f"v_pk_fma_f32 {vr(r, 2)}, {vr(p + o + e, 2)}, {vr(q + o + e, 2)}, {vr(r, 2)}")
        s(f"v_pk_add_f32 {vr(v, 2)}, {vr(v, 2)}, {vr(t, 2)}")
        s(f"v_add_f32 v{tU}, v{tU}, v{tU + 1}")
        s(f"v_add_f32 v{v}, v{v}, v{v + 1}")
        if mask:
            s(f"v_cndmask_b32 v{tU}, 0, v{tU}, vcc")
        s(f"v_add_f32 v{v}, v{v}, v{tU}")
    dot(H, H, True)
    red(s, [v], [t], (1, 2, 4, 8), True, False)
    s(f"v_mul_f32 v{v}, 0x3ae38e39, v{v}")
    s(f"v_cvt_pk_bf16_f32 v{t}, v{m}, v{v}")
    s(f"v_and_b32 v{v}, 0xffff0000, v{t}")
    s(f"v_lshlrev_b32 v{t}, 16, v{t}")
    s(f"v_add_f32 v{v}, 0x3727c5ac, v{v}")
    s(f"v_sub_f32 v{m}, v{m}, v{t}")
    rnd1(s, v)
    s(f"v_sqrt_f32 v{v}, v{v}")
    rnd1(s, v)
    s(f"v_rcp_f32 v{v}, v{v}")
    s(f"s_mov_b32 s{sC}, {WS_H2}")
    s(f"v_mul_f32 v{m}, v{m}, v{v}")
    for e in range(0, 24, 2):
        s(f"v_pk_fma_f32 {vr(H + e, 2)}, {vr(H + e, 2)}, {vr(v, 2)}, {vr(m, 2)} op_sel_hi:[1,0,0]")
    for e in range(0, 24, 2):
        s(f"v_pk_fma_f32 {vr(H + e, 2)}, {vr(H + e, 2)}, {vr(C1 + e, 2)}, {vr(SB + e, 2)}")
    pack(s, PKH, H, 12)
    for i in range(0 if OPT['cand'] else 3):
        s(f"buffer_store_dwordx4 {vr(PKH + 4 * i, 4)}, v{vR2 if i == 2 else vR}, {sr(SW, 4)}, s{sC} offen offset:{512 * i} sc1")
    unpack(s, H, PKH, 12)
    dot(H, WR, False)
    s(f"v_lshlrev_b32 v{m}, 2, v{vTOK}")
    s(f"v_and_b32 v{m}, 28, v{m}")
    s(f"v_sub_u32 v{m + 1}, 2047, v{vTOK}")
    red(s, [v], [t], (1, 2, 4, 8), True, False)
    s(f"v_ashrrev_i32 v{t}, 31, v{v}")
    s(f"v_or_b32 v{t}, 0x80000000, v{t}")
    s(f"v_xor_b32 v{t}, v{t}, v{v}")
    s(f"v_and_b32 v{t}, 0xfffff800, v{t}")
    s(f"v_min_u32 v{t}, 0xfffff000, v{t}")
    s(f"v_or_b32 v{t}, v{t}, v{m + 1}")
    s("s_mov_b32 exec_lo, 1")
    s("s_mov_b32 exec_hi, 1")
    s(f"ds_write_b32 v{m}, v{t} offset:{L_KEY}")
    s("s_mov_b64 exec, -1")
    stamp(s, diag, 3)
    s("@lgkm 0")
    s("s_barrier")
    stamp(s, diag, 4)


def default_out():
    s = Stream()
    T = GB
    for e in range(0, 24, 2):
        s(f"v_pk_mul_f32 {vr(T + e, 2)}, {vr(T + e, 2)}, {vr(H + e, 2)}")
    pack(s, PKO, T, 12)
    unpack(s, T, PKO, 12)
    for e in range(0, 24, 2):
        s(f"v_pk_add_f32 {vr(T + e, 2)}, {vr(T + e, 2)}, {vr(X1 + e, 2)}")
    P2 = PKO + 12
    pack(s, P2, T, 12)
    s("v_and_b32 v30, 2, v1")
    s("v_cmp_ne_u32 vcc, 0, v30")
    s(f"v_mul_u32_u24 v30, 1152, v{vTOK}")
    s(f"v_add_u32 v{vX}, v30, v{vM}")
    s(f"v_add_u32 v{vX2}, v30, v{vM2}")
    for i in range(3):
        for h, qp in enumerate(("[0,2,0,2]", "[1,3,1,3]")):
            for e in range(2):
                s(f"v_mov_b32_dpp v{T + 4 * i + 2 * h + e}, v{P2 + 4 * i + 2 + e} quad_perm:{qp} row_mask:0xf bank_mask:0xf")
    for i in range(3):
        for h, qp in enumerate(("[0,2,0,2]", "[1,3,1,3]")):
            for e in range(2):
                s(f"v_cndmask_b32_dpp v{PKO + 4 * i + 2 * h + e}, v{P2 + 4 * i + e}, v{T + 4 * i + 2 * h + e}, vcc quad_perm:{qp} row_mask:0xf bank_mask:0xf")
    return fin(s)


KK, k1, k2, vKA, vKL = 128, 136, 137, 140, 141


def publish():
    s = Stream()
    s(f"v_mov_b32 v{vKL}, {L_KEY}")
    s(f"ds_read_b128 {vr(KK, 4)}, v{vKL}")
    s(f"ds_read_b128 {vr(KK + 4, 4)}, v{vKL} offset:16")
    s(f"s_lshl_b32 s{sC}, s2, 7")
    s(f"s_add_u32 s{sC}, s{sC}, {WS_KEY}")
    s("s_cmp_eq_u32 s3, 0")
    s(f"s_cselect_b32 s{sC}, s{sC}, {BIG}")
    top2_lane(s, KK, 8, k1, k2)
    s(f"buffer_store_dwordx2 {vr(k1, 2)}, v{vF}, {sr(SW, 4)}, s{sC} offen sc1")
    if OPT['cand']:
        s(f"v_and_b32 v138, 0x7ff, v{k1}")
        s(f"v_and_b32 v139, 0x7ff, v{k2}")
        s(f"v_cmp_eq_u32 vcc, v138, v{tM + 1}")
        s(f"v_cmp_eq_u32 s[36:37], v139, v{tM + 1}")
        s(f"v_mov_b32 v138, {BIG}")
        s("s_or_b64 vcc, vcc, s[36:37]")
        s(f"s_mov_b32 s{sC}, {WS_H2}")
        s("s_nop 0")
        s(f"v_cndmask_b32 v{vR}, v138, v{vR}, vcc")
        s(f"v_cndmask_b32 v{vR2}, v138, v{vR2}, vcc")
        for pk, o in ((PKH, 0),) if OPT['eo'] else ((PKH, 0), (PKX, 1152)):
            for i in range(3):
                s(f"buffer_store_dwordx4 {vr(pk + 4 * i, 4)}, v{vR2 if i == 2 else vR}, {sr(SW, 4)}, s{sC} offen offset:{o + 512 * i} sc1")
    return fin(s)


def route(diag):
    s = Stream()
    s(f"v_lshlrev_b32 v{vKA}, 7, v0")
    s(f"s_mov_b32 s{sC}, {WS_KEY}")
    s(f"s_lshl_b32 s36, s3, 3")
    s(f"v_mov_b32 v{vKL}, s36")
    s(f"s_mov_b32 s{sN}, {SPIN}")
    s("Ltail_pollk:")
    s(f"buffer_load_dwordx2 {vr(k1, 2)}, v{vKA}, {sr(SW, 4)}, s{sC} offen {OPT['pk']}")
    s(f"s_sub_u32 s{sN}, s{sN}, 1")
    s("s_cbranch_scc1 Ltail_gotk")
    s(f"v_max_u32 v138, v{k1}, v{k2}")
    s(f"v_cmp_eq_u32 vcc, -1, v138")
    s("s_cbranch_vccnz Ltail_pollk")
    s("Ltail_gotk:")
    s("s_waitcnt vmcnt(0)")
    if OPT['eo']:
        for t in x1_rows():
            s(t)
    top2_wave(s, k1, k2, 138, 139, 142)
    s(f"ds_write_b64 v{vKL}, {vr(k1, 2)} offset:{L_SEL}")
    s(f"v_mov_b32 v{vKL}, {L_SEL}")
    s("@lgkm 0")
    s("s_barrier")
    s(f"ds_read_b128 {vr(KK, 4)}, v{vKL}")
    s(f"ds_read_b128 {vr(KK + 4, 4)}, v{vKL} offset:16")
    s("s_or_b32 s36, s2, s3")
    s(f"s_cselect_b32 s{sC}, -4, {WS_EPOCH}")
    s("s_add_u32 s36, s94, 1")
    s("v_mov_b32 v138, s36")
    s(f"buffer_store_dword v138, v{vF}, {sr(SW, 4)}, s{sC} offen sc1")
    top2_lane(s, KK, 8, k1, k2)
    s(f"v_readfirstlane_b32 s{sK0}, v{k1}")
    s(f"v_readfirstlane_b32 s{sK1}, v{k2}")
    s(f"s_andn2_b32 s{sT0}, 0x7ff, s{sK0}")
    s(f"s_andn2_b32 s{sT1}, 0x7ff, s{sK1}")
    return fin(s)


def early_out():
    return [f"buffer_store_dwordx4 {vr(PKO + 4 * i, 4)}, v{vX2 if i == 2 else vX}, {sr(SO, 4)}, 0 offen offset:{512 * i} sc1" for i in range(3)]


def x1_rows():
    return [f"s_mov_b32 s36, {WS_X1}"] + [
        f"buffer_store_dwordx4 {vr(PKX + 4 * i, 4)}, v{vR2 if i == 2 else vR}, {sr(SW, 4)}, s36 offen offset:{512 * i} sc1" for i in range(3)]


def store_out(s):
    if OPT['eo']:
        return
    s(f"v_cmp_ne_u32 vcc, s{sT0}, v{vTOK}")
    s(f"v_cmp_ne_u32 s[36:37], s{sT1}, v{vTOK}")
    s(f"v_mov_b32 v31, {BIG}")
    s("s_and_b64 vcc, vcc, s[36:37]")
    s("s_nop 1")
    s(f"v_cndmask_b32 v30, v31, v{vX2}, vcc")
    s(f"v_cndmask_b32 v31, v31, v{vX}, vcc")
    for i in range(3):
        s(f"buffer_store_dwordx4 {vr(PKO + 4 * i, 4)}, v{30 if i == 2 else 31}, {sr(SO, 4)}, 0 offen offset:{512 * i} {OPT['op']}")


def ffn_frags():
    s = Stream()
    s(f"s_mov_b32 s{sLU}, {L_WU}")
    s(f"s_mov_b32 s{sLU2}, {L_WU2 - 14 * 2048}")
    s("v_lshrrev_b32 v9, 2, v1")
    s("v_and_b32 v10, 3, v1")
    s("v_lshlrev_b32 v10, 3, v10")
    s(f"s_and_b32 s{sC}, s3, 1")
    s(f"s_lshl_b32 s{sC}, s{sC}, 5")
    s("v_lshl_add_u32 v11, v9, 6, v10")
    s(f"v_add_u32 v11, s{sC}, v11")
    s("s_cmp_lt_u32 s3, 2")
    s(f"s_cselect_b32 s{sB}, {L_WG}, s{sLU}")
    s(f"s_cselect_b32 s{sC}, {L_WG}, s{sLU2}")
    s(f"v_add_u32 v12, s{sC}, v11")
    s(f"v_add_u32 v11, s{sB}, v11")
    for k in range(18):
        for u in range(2):
            s(f"ds_read_b64_tr_b16 {ar(WF + 4 * k + 2 * u, 2)}, v{11 if k < 14 else 12} offset:{2048 * k + 1024 * u}")
    s("v_mul_u32_u24 v12, 1152, v9")
    s(f"s_lshl_b32 s{sB}, s3, 7")
    s(f"s_add_u32 s{sB}, s{sB}, {L_WD}")
    s(f"v_add3_u32 v12, v12, v10, s{sB}")
    s("v_lshlrev_b32 v13, 4, v1")
    s(f"v_add_u32 v13, {L_XCH}, v13")
    s(f"s_lshl_b32 s{sB}, s3, 10")
    s(f"v_add_u32 v14, s{sB}, v13")
    s("v_and_b32 v13, 0xffffff1f, v13")
    s("v_bfe_u32 v15, v1, 2, 2")
    for g in range(4):
        s(f"v_cmp_eq_u32 s[{52 + 2 * g}:{53 + 2 * g}], {g}, v15")
    s(f"s_mul_i32 s{sA}, s{sROLE}, 18")
    s(f"s_add_u32 s{sA}, s{sA}, s{sIDX}")
    s(f"s_lshl_b32 s{sA}, s{sA}, 9")
    s(f"s_mul_i32 s{sB}, s3, 73728")
    s(f"s_add_u32 s{sA}, s{sA}, s{sB}")
    s("v_lshlrev_b32 v15, 3, v1")
    return fin(s)


def ffn(diag):
    s = Stream()
    s(f"s_mul_i32 s{sB}, s{sT0}, 2304")
    s(f"s_mul_i32 s{sC}, s{sT1}, 2304")
    s(f"s_sub_u32 s{sC}, s{sC}, s{sB}")
    s("v_and_b32 v8, 1, v1")
    s(f"v_mul_lo_u32 v8, v8, s{sC}")
    s("v_and_b32 v9, 48, v1")
    s(f"v_add3_u32 v8, v8, v9, s{sB}")
    s(f"s_mov_b32 s{sC}, {WS_H2}")
    s(f"s_mov_b32 s{sN}, {SPIN}")
    s("Ltail_pollh:")
    s("s_mov_b32 exec_lo, 0x30003")
    s("s_mov_b32 exec_hi, 0x30003")
    for k in range(18):
        s(f"buffer_load_dwordx4 {ar(HB + 4 * k, 4)}, v8, {sr(SW, 4)}, s{sC} offen offset:{64 * k} sc1")
    s("s_mov_b64 exec, -1")
    if OPT['so'] == 1:
        store_out(s)
    for z in range(3):
        for g in range(4):
            for u in range(2):
                s(f"ds_read_b64_tr_b16 {ar(DF + 16 * z + 4 * g + 2 * u, 2)}, v12 offset:{18432 * u + 512 * z + 32 * g}")
    for k in range(18):
        d = vr(16 + 4 * (k & 1), 4)
        s(f"{M16} {d}, {ar(WF + 4 * k, 4)}, {ar(HB + 4 * k, 4)}, {'0' if k < 2 else d}")
    s(f"s_sub_u32 s{sN}, s{sN}, 1")
    s("v_pk_add_f32 v[16:17], v[16:17], v[20:21]")
    s("v_pk_add_f32 v[18:19], v[18:19], v[22:23]")
    s("s_cbranch_scc1 Ltail_goth")
    s("v_cmp_u_f32 vcc, v16, v16")
    s("s_and_b32 s36, vcc_lo, 3")
    s("s_cbranch_scc1 Ltail_pollh")
    s("Ltail_goth:")
    stamp(s, diag, 6)
    s("ds_write_b128 v14, v[16:19]")
    s("@lgkm 0")
    s("s_barrier")
    G, Uu, E = 16, 24, 32
    for w in range(4):
        s(f"ds_read_b128 {vr(G + 4 * w, 4)}, v13 offset:{1024 * w}")
    s(f"s_mov_b32 s36, 0xbfb8aa3b")
    s(f"s_mov_b32 s37, 0xbfb8aa3b")
    pack(s, E, G, 4)
    unpack(s, G, E, 4)
    for e in range(0, 8, 2):
        s(f"v_pk_mul_f32 {vr(E + e, 2)}, {vr(G + e, 2)}, s[36:37]")
    for e in range(8):
        s(f"v_exp_f32 v{E + e}, v{E + e}")
    pack(s, 60, Uu, 4)
    for e in range(0, 8, 2):
        s(f"v_pk_add_f32 {vr(E + e, 2)}, {vr(E + e, 2)}, 1.0 op_sel_hi:[1,0]")
    for e in range(8):
        s(f"v_rcp_f32 v{E + e}, v{E + e}")
    unpack(s, Uu, 60, 4)
    for e in range(0, 8, 2):
        s(f"v_pk_mul_f32 {vr(G + e, 2)}, {vr(G + e, 2)}, {vr(E + e, 2)}")
    pack(s, E, G, 4)
    unpack(s, G, E, 4)
    for e in range(0, 8, 2):
        s(f"v_pk_mul_f32 {vr(G + e, 2)}, {vr(G + e, 2)}, {vr(Uu + e, 2)}")
    pack(s, E, G, 4)
    for g in range(4):
        for e in range(4):
            s(f"v_cndmask_b32 v{64 + 4 * g + e}, 0, v{E + e}, s[{52 + 2 * g}:{53 + 2 * g}]")
    for z in range(3):
        for g in range(4):
            d = vr(16 + 4 * z, 4)
            s(f"{M16} {d}, {vr(64 + 4 * g, 4)}, {ar(DF + 16 * z + 4 * g, 4)}, {'0' if g == 0 else d}")
    for z in range(3):
        for e in range(2):
            s(f"v_min_u32 v{16 + 4 * z + e}, -2, v{16 + 4 * z + e}")
        s(f"buffer_store_dwordx2 {vr(16 + 4 * z, 2)}, v15, {sr(SY, 4)}, s{sA} offen sc1")
        if z < 2:
            s(f"s_add_u32 s{sA}, s{sA}, {4 * 73728}")
    if OPT['so'] == 0 and not OPT['fw']:
        store_out(s)
    return fin(s)


def final(diag):
    s = Stream()
    s(f"s_mul_i32 s{sA}, s{sROLE}, 9")
    s(f"s_add_u32 s{sA}, s{sA}, s{sIDX}")
    if not OPT['fw']:
        s(f"s_sub_u32 s{sA}, s{sA}, 18")
    s("v_bfe_u32 v8, v1, 2, 1")
    s("v_cmp_eq_u32 vcc, 1, v8")
    s(f"v_mov_b32 v9, s{sT0}")
    s(f"v_mov_b32 v10, s{sT1}")
    s("v_and_b32 v11, 3, v1")
    s("v_cndmask_b32 v9, v9, v10, vcc")
    s(f"s_lshr_b32 s{sB}, s{sA}, 2")
    s(f"s_lshl_b32 s{sB}, s{sB}, 6")
    s(f"s_and_b32 s{sC}, s{sA}, 1")
    s(f"s_lshl_b32 s{sC}, s{sC}, 5")
    s(f"s_add_u32 s{sB}, s{sB}, s{sC}")
    s(f"s_and_b32 s{sC}, s{sA}, 2")
    s(f"s_lshl_b32 s{sC}, s{sC}, 2")
    s(f"s_add_u32 s{sB}, s{sB}, s{sC}")
    s("v_lshrrev_b32 v12, 1, v11")
    s(f"v_lshl_add_u32 v12, v12, 4, s{sB}")
    s("v_and_b32 v13, 1, v11")
    s("v_lshl_add_u32 v12, v13, 2, v12")
    s("v_mul_u32_u24 v13, 1152, v9")
    s("v_lshl_add_u32 v14, v13, 1, v12")
    s(f"v_add_u32 v15, {WS_H2}, v14")
    s(f"s_mov_b32 s{sC}, {WS_MODP + 5 * 1152}")
    s(f"buffer_load_dword v18, v12, {sr(SW, 4)}, s{sC} offen sc1")
    s(f"v_mov_b32 v19, s{sK0}")
    s(f"v_mov_b32 v10, s{sK1}")
    s("v_cndmask_b32 v19, v19, v10, vcc")
    s("v_and_b32 v19, 0xfffff800, v19")
    s("v_or_b32 v19, 0x400, v19")
    s("v_ashrrev_i32 v10, 31, v19")
    s("v_not_b32 v10, v10")
    s("v_or_b32 v10, 0x80000000, v10")
    s("v_xor_b32 v19, v19, v10")
    s(f"s_lshl_b32 s{sC}, s{sA}, 4")
    s(f"v_lshl_add_u32 v13, v11, 2, v13")
    s(f"v_add_u32 v13, s{sC}, v13")
    s("v_lshrrev_b32 v14, 2, v1")
    s("v_lshlrev_b32 v14, 9, v14")
    s("v_lshl_add_u32 v14, v11, 4, v14")
    s(f"s_lshr_b32 s{sB}, s{sA}, 3")
    s(f"s_mul_i32 s{sB}, s{sB}, 73728")
    s(f"s_and_b32 s{sC}, s{sA}, 7")
    s(f"s_lshl_b32 s{sC}, s{sC}, 6")
    s(f"s_add_u32 s{sB}, s{sB}, s{sC}")
    if OPT['so'] != 2:
        store_out(s)
    s("v_cmp_eq_u32 s[38:39], 1, v8")
    rnd1(s, 19)
    s("v_mul_f32 v19, 0xbfb8aa3b, v19")
    s("v_exp_f32 v19, v19")
    unpack(s, 24, 18, 1)
    s("v_add_f32 v19, 1.0, v19")
    s("v_rcp_f32 v19, v19")
    s(f"s_mov_b32 s{sN}, {SPIN}")
    rnd1(s, 19)
    Y = 64
    if OPT['ys']:
        s(f"s_add_u32 s{sC}, s{sB}, {8192 * 8}")
        if OPT['ys'] == 2:
            s("s_mov_b64 exec, 0xffff")
        s("Ltail_polly0:")
        s(f"buffer_load_dwordx4 {vr(Y, 4)}, v14, {sr(SY, 4)}, s{sC} offen {OPT['py']}")
        s(f"s_sub_u32 s{sN}, s{sN}, 1")
        s("s_cbranch_scc1 Ltail_polly1")
        s(f"v_cmp_eq_u32 vcc, -1, v{Y}")
        s("s_cbranch_vccnz Ltail_polly0")
        s("Ltail_polly1:")
        s("s_mov_b64 exec, -1")
        s(f"s_mov_b32 s{sN}, {SPIN}")
        s("@drain")
    s("Ltail_polly:")
    for i in range(9):
        s(f"s_add_u32 s{sC}, s{sB}, {8192 * i}")
        s(f"buffer_load_dwordx4 {vr(Y + 4 * i, 4)}, v14, {sr(SY, 4)}, s{sC} offen {OPT['py']}")
    s(f"s_mov_b32 s{sC}, {WS_X1 - WS_H2}")
    s(f"buffer_load_dword v16, v15, {sr(SW, 4)}, s{sC} offen sc1")
    s(f"buffer_load_dword v17, v15, {sr(SW, 4)}, 0 offen sc1")
    s(f"s_sub_u32 s{sN}, s{sN}, 1")
    s("s_cbranch_scc1 Ltail_goty")
    s(f"v_max3_u32 v26, v{Y}, v{Y + 1}, v{Y + 2}")
    for i in range(3, 35, 2):
        s(f"v_max3_u32 v26, v26, v{Y + i}, v{Y + i + 1}")
    s(f"v_max_u32 v26, v26, v{Y + 35}")
    s(f"v_max3_u32 v26, v26, v16, v17")
    s("v_cmp_eq_u32 vcc, -1, v26")
    s("s_cbranch_vccnz Ltail_polly")
    s("Ltail_goty:")
    s("@drain")
    if OPT['so'] == 2:
        store_out(s)
    stamp(s, diag, 6)
    unpack(s, 20, 16, 2)
    for i in range(1, 9):
        for e in (0, 2):
            s(f"v_pk_add_f32 {vr(Y + e, 2)}, {vr(Y + e, 2)}, {vr(Y + 4 * i + e, 2)}")
    red(s, [Y, Y + 1, Y + 2, Y + 3], [Y + 4, Y + 5, Y + 6, Y + 7], (4, 8), True, True)
    s(f"v_cndmask_b32 v26, v{Y}, v{Y + 1}, s[38:39]")
    s(f"v_cndmask_b32 v27, v{Y + 2}, v{Y + 3}, s[38:39]")

    def r2():
        pack(s, 28, 26, 1); unpack(s, 26, 28, 1)
    r2()
    s("v_mul_f32 v26, v26, v19")
    s("v_mul_f32 v27, v27, v19")
    r2()
    s("v_pk_add_f32 v[26:27], v[26:27], v[22:23]")
    r2()
    s("v_pk_mul_f32 v[26:27], v[26:27], v[24:25]")
    r2()
    s("v_pk_add_f32 v[26:27], v[26:27], v[20:21]")
    pack(s, 28, 26, 1)
    s("s_mov_b64 exec, 0xff")
    s(f"buffer_store_dword v28, v13, {sr(SO, 4)}, 0 offen {OPT['fp']}")
    return fin(s)


def body(a, diag, fdma, emit_op):
    for t in publish():
        a(t)
    d = Stream()
    for op in fdma:
        emit_op(d, op)
    d = fin(d)
    w = OPT['wdp']
    for t in (d if w == 3 else []) + default_out():
        a(t)
    if OPT['eo']:
        for t in early_out():
            a(t)
        a(f"s_cmp_ge_u32 s{sIDX}, 18")
        a("s_cbranch_scc1 Ltail_idle")
    for t in (d if w == 2 else []) + ffn_frags() + route(diag):
        a(t)
    stamp(a, diag, 5)
    a(f"s_cmp_ge_u32 s{sIDX}, 18")
    a("s_cbranch_scc1 Ltail_noffn")
    for t in ffn(diag):
        a(t)
    if OPT['fw']:
        a(f"s_cmp_lt_u32 s{sIDX}, 9")
        a("s_cselect_b32 s36, s3, 0")
        a(f"s_cmp_eq_u32 s36, {OPT['fw']}")
        a("s_cbranch_scc1 Ltail_final")
        a("Ltail_noffn:")
    else:
        a("s_branch Ltail_done")
        a("Ltail_noffn:")
        a(f"s_cmp_lt_u32 s{sIDX}, 27")
        a("s_cselect_b32 s36, s3, 1")
        a("s_cmp_eq_u32 s36, 0")
        a("s_cbranch_scc1 Ltail_final")
    s = Stream(); store_out(s)
    for t in fin(s):
        a(t)
    a("s_branch Ltail_done")
    if OPT['eo']:
        a("Ltail_idle:")
        a("s_waitcnt vmcnt(0)")
        for t in x1_rows():
            a(t)
        a("s_branch Ltail_done")
    a("Ltail_final:")
    for t in final(diag):
        a(t)
    a("Ltail_done:")


def dump_stamps(a, n, region):
    a("s_waitcnt vmcnt(0)")
    stamp(a, True, n - 1)
    a("s_waitcnt lgkmcnt(0)")
    a("s_mov_b64 exec, -1")
    a.srd(SX, pWS, 1024 * 64, region)
    a("s_lshl_b32 s36, s2, 2")
    a("s_add_u32 s36, s36, s3")
    a("s_lshl_b32 s36, s36, 6")
    a("v_mov_b32 v2, 0")
    for i in range(n):
        a(f"v_mov_b32 v3, s{60 + 2 * i}")
        a(f"buffer_store_dword v3, v2, {sr(SX, 4)}, s36 offen offset:{4 * i}")
```

```python
from dsl import *
from tail import unpack, pack, rnd1, red, srd, BIG, SPIN

L_RED, L_MOD = 0, 1024
vC, vW, vX, vP, vM, vG, vQ2, vQ, vT = 64, 65, 66, 67, 68, 69, 70, 71, 72
CV, WV, XR = 80, 88, 108
AC, UT = 128, 136
X, D, C1, SA = 144, 168, 192, 216
PF = 240
vK, vV = 120, 121


def silu(s, r, t):
    d, q, e = t, t + 1, t + 2
    s(f"v_mul_f32 v{d}, 0xbfb8aa3b, v{r}")
    s(f"v_min_f32 v{d}, 0x42fc0000, v{d}")
    s(f"v_exp_f32 v{d}, v{d}")
    s(f"v_add_f32 v{d}, 1.0, v{d}")
    s(f"v_rcp_f32 v{q}, v{d}")
    s(f"v_mul_f32 v{e}, v{r}, v{q}")
    s(f"v_fma_f32 v{d}, -v{e}, v{d}, v{r}")
    s(f"v_fma_f32 v{r}, v{d}, v{q}, v{e}")


def interleave(s, fns):
    lists = []
    for f in fns:
        l = []
        f(l.append)
        lists.append(l)
    for i in range(max(map(len, lists))):
        for l in lists:
            if i < len(l):
                s(l[i])


def sum24(s, dst, t, f):
    for e in range(0, 24, 2):
        f(t if e & 2 else dst, e, e < 4)
    s(f"v_pk_add_f32 {vr(dst, 2)}, {vr(dst, 2)}, {vr(t, 2)}")
    s(f"v_add_f32 v{dst}, v{dst}, v{dst + 1}")


def head(s, diag, K):
    st = lambda i: OPT['fine'] == 1 and K.stamp(s, diag, i, True)
    s2 = lambda i: OPT['fine'] == 2 and K.stamp(s, diag, i, True)
    SC, SM, SX, SW = K.SRD_K, K.SRD_V, K.SRD_O, K.SRD_H
    s("s_cmp_ge_u32 s2, 256")
    s("s_cbranch_scc1 Lattn_end")
    if OPT['scr']:
        s("s_and_b32 s3, s2, 7")
        s("s_lshl_b32 s3, s3, 5")
        s("s_lshr_b32 s2, s2, 3")
        s("s_or_b32 s2, s2, s3")
    s(f"s_load_dwordx2 {sr(SC, 2)}, s[0:1], {KA['c']}")
    s(f"s_load_dwordx2 {sr(SM, 2)}, s[0:1], {KA['wmod']}")
    s(f"s_load_dwordx2 {sr(SX, 2)}, s[0:1], {KA['x']}")
    s(f"s_load_dwordx2 s[50:51], s[0:1], {KA['ws']}")
    s(f"s_load_dwordx8 s[52:59], s[0:1], {KA['k']}")
    s(f"s_load_dwordx4 s[80:83], s[0:1], {KA['wg']}")
    s(f"s_load_dwordx2 s[84:85], s[0:1], {KA['wd']}")
    s(f"s_load_dwordx2 {sr(K.SRD_D, 2)}, s[0:1], {KA['dbg']}")
    s(f"s_load_dwordx2 {sr(K.SRD_P, 2)}, s[0:1], {KA['wr']}")
    if diag:
        s("s_memrealtime s[96:97]")
    K.stamp(s, diag, 0)
    s("s_getpc_b64 s[32:33]")
    s("Lattn_pc:")
    s("s_mov_b32 s34, Lattn_end-Lattn_pc")
    s("s_mov_b32 s35, 0x20000")
    s("s_lshr_b32 s6, s2, 3")
    s("s_lshl_b32 s7, s6, 6")
    s("v_lshrrev_b32 v3, 6, v0")
    s("v_and_b32 v1, 63, v0")
    s("v_lshrrev_b32 v2, 2, v0")
    s("v_lshlrev_b32 v2, 11, v2")
    s("v_readfirstlane_b32 s3, v3")
    s(f"buffer_load_dword v{PF}, v2, s[32:35], s7 offen", 'PF')
    s("s_and_b32 s7, s2, 7")
    s("s_lshl_b32 s4, s7, 1")
    s("s_and_b32 s5, s6, 1")
    s("s_add_u32 s4, s4, s5")
    s("s_lshr_b32 s5, s2, 4")
    s("s_lshr_b32 s38, s6, 2")
    s("s_lshl_b32 s38, s38, 3")
    s("s_add_u32 s38, s38, s7")
    s("s_cmp_lt_u32 s38, 18")
    s(f"s_cselect_b32 s39, 0, {BIG}")
    s("s_lshl_b32 s38, s38, 2")
    s("s_and_b32 s36, s6, 3")
    s("s_add_u32 s38, s38, s36")
    s(f"s_mov_b32 s{SM + 2}, {SZ['wmod']}")
    s(f"s_mul_i32 s92, s6, {18 * 6912}")
    s("s_lshl_b32 s36, s7, 7")
    s("s_add_u32 s92, s92, s36")
    s("s_cmp_lt_u32 s7, 2")
    s("s_cselect_b32 s36, 53, 35")
    s("v_lshrrev_b32 v2, 2, v0")
    s("v_min_u32 v2, s36, v2")
    s("v_mul_u32_u24 v3, 57, v2")
    s("v_lshrrev_b32 v3, 10, v3")
    s(f"v_mul_i32_i24 v3, {1024 - 18 * 6912}, v3")
    s(f"v_mul_u32_u24 v2, 6912, v2")
    s(f"v_add_u32 v{vT}, v2, v3")
    s(f"s_mov_b32 s{SM + 3}, 0x20000")
    s(f"s_mov_b32 s{SC + 2}, {SZ['c']}")
    s(f"s_mov_b32 s{SC + 3}, 0x20000")
    s(f"s_mov_b32 s{SX + 2}, {SZ['x']}")
    s(f"s_mov_b32 s{SX + 3}, 0x20000")
    s(f"v_and_b32 v{vC}, 0xfe, v0")
    s(f"v_mul_u32_u24 v{vW}, 3456, v{vC}")
    s("v_and_b32 v2, 1, v0")
    s(f"v_lshl_add_u32 v{vW}, v2, 4, v{vW}")
    s("s_lshl_b32 s36, s38, 5")
    s("s_or_b32 s36, s36, s39")
    s("v_and_b32 v4, 31, v1")
    s("v_lshrrev_b32 v5, 5, v1")
    s("v_cmp_gt_u32 vcc, 24, v4")
    s(f"v_mov_b32 v6, {BIG}")
    s("s_lshl_b32 s7, s5, 4")
    s("s_add_u32 s7, s7, s4")
    s("s_lshl_b32 s7, s7, 2")
    s("s_add_u32 s7, s7, s3")
    s("v_cndmask_b32 v6, v6, 0, vcc")
    s("s_mul_i32 s49, s7, 2304")
    s("v_lshrrev_b32 v7, 2, v4")
    s("v_lshl_add_u32 v7, v7, 6, v6")
    s("v_and_b32 v2, 3, v4")
    s("v_lshl_add_u32 v7, v2, 3, v7")
    s("v_mul_u32_u24 v2, 1152, v5")
    s(f"v_add_u32 v{vX}, v7, v2")
    if OPT['tw']:
        mx = [1, 3, 3, 2, 2, 7, 0, 2, 2, 2, 0, 1, 1, 0, 7, 7]
        tab = sum(m << (4 * i) for i, m in enumerate(mx))
        s("s_lshl_b32 s40, s6, 2")
        s("s_add_u32 s40, s40, s3")
        s("s_and_b32 s41, s40, 15")
        s("s_lshr_b32 s40, s40, 4")
        s(f"s_mov_b32 s44, {tab & 0xffffffff}")
        s(f"s_mov_b32 s45, {tab >> 32}")
        s("s_lshl_b32 s42, s41, 2")
        s("s_lshr_b64 s[44:45], s[44:45], s42")
        s("s_and_b32 s44, s44, 15")
        s("s_min_u32 s40, s40, s44")
        s("s_cmp_eq_u32 s41, 5")
        s("s_cselect_b32 s42, 16, 0")
        s("s_cselect_b32 s41, 14, s41")
        s("s_cmp_eq_u32 s41, 15")
        s("s_cselect_b32 s42, 8, s42")
        s("s_cselect_b32 s41, 14, s41")
        s("s_add_u32 s40, s40, s42")
        s("s_lshl_b32 s40, s40, 21")
        s("s_lshl_b32 s41, s41, 3")
        s("s_load_dwordx2 s[46:47], s[0:1], s41")
    st(1)
    s("s_waitcnt lgkmcnt(0)")
    if OPT['tw']:
        s(f"s_load_dword s{K.sTAG}, s[46:47], s40")
    s2(1)
    s(f"s_load_dword s{K.sEP}, s[50:51], {WS_EPOCH}")
    s(f"buffer_load_dword v{PF + 1}, v{vT}, {sr(SM, 4)}, s92 offen", 'PF')
    for i in range(5):
        s(f"buffer_load_ushort v{CV + i}, v{vC}, {sr(SC, 4)}, 0 offen offset:{256 * i}")
    s2(2)

    def ldx():
        for i in range(3):
            for u in range(2):
                s(f"buffer_load_dwordx2 {vr(XR + 4 * i + 2 * u, 2)}, v{vX}, {sr(SX, 4)}, s49 offen offset:{384 * i + 32 * u}")
        srd(s, K.SRD_O, 58, SZ['wo'])
    if OPT['xl'] == 0:
        ldx()
    s2(3)
    for i in range(5):
        s(f"buffer_load_dwordx4 {vr(WV + 4 * i, 4)}, v{vW}, {sr(SM, 4)}, s36 offen")
        if i < 4:
            s(f"s_add_u32 s36, s36, {128 * 6912}")
    nA = OPT['nq1']
    srd(s, K.SRD_Q, 56, SZ['wq'])
    s(f"s_lshl_b32 s{K.sWQ}, s4, 9")
    for d, sh, rows, r0 in ((vQ, 2, 4 * nA, 0), (vQ2, 1, 4 * (9 - nA), 64 * nA)):
        s(f"s_mul_i32 s36, s5, {rows * 8192}")
        s(f"s_add_u32 s36, s36, {r0 * 8192}")
        s(f"v_lshrrev_b32 v2, {sh}, v0")
        s(f"v_min_u32 v2, {4 * rows - 1}, v2")
        s("v_lshrrev_b32 v3, 2, v2")
        s("v_and_b32 v2, 3, v2")
        s("v_lshl_add_u32 v2, v2, 7, s36")
        s(f"v_lshl_add_u32 v{d}, v3, 13, v2")
    s2(4)
    s(f"s_add_u32 s92, s49, {WS_H}")
    s("v_lshl_add_u32 v7, v5, 4, v6")
    s(f"v_lshl_add_u32 v{vP}, v4, 5, v7")
    s("v_min_u32 v4, 23, v4")
    s(f"v_lshlrev_b32 v{vM}, 4, v4")
    srd(s, SW, 50, WS_PART)
    s(f"s_mov_b32 s{K.SRD_D + 2}, 256")
    s(f"s_mov_b32 s{K.SRD_D + 3}, 0x20000")
    s("s_cmp_ge_u32 s38, 36")
    s("s_cselect_b32 s93, 1.0, 0")
    s("s_lshl_b32 s36, s38, 7")
    s(f"v_lshl_add_u32 v{vG}, v0, 3, s36")
    s(f"v_cmp_gt_u32 s[36:37], {16 if OPT['fl'] & 1 else 8}, v0")
    s(f"v_mov_b32 v2, {BIG}")
    s("v_mov_b32 v3, s39")
    s("v_cndmask_b32 v2, v2, v3, s[36:37]")
    s(f"v_or_b32 v{vG}, v{vG}, v2")
    if OPT['wr']:
        s(f"s_mov_b32 s{K.SRD_P + 2}, {SZ['wr']}")
        s(f"s_mov_b32 s{K.SRD_P + 3}, 0x20000")
        s("v_lshlrev_b32 v2, 7, v0")
        s("v_mov_b32 v3, s39")
        s(f"v_xor_b32 v3, {BIG}, v3")
        s("v_or_b32 v2, v2, v3")
        s(f"buffer_load_dword v{PF + 3}, v2, {sr(K.SRD_P, 4)}, 0 offen", 'PF')
    s("s_mul_i32 s36, s5, 3072")
    s("s_lshl_b32 s37, s5, 11")
    s(f"v_lshrrev_b32 v{vK}, 3, v0")
    s(f"v_min_u32 v{vK}, 23, v{vK}")
    s(f"v_lshl_add_u32 v{vK}, v{vK}, 7, s36")
    s(f"v_lshrrev_b32 v{vV}, 4, v0")
    s(f"v_lshl_add_u32 v{vV}, v{vV}, 7, s37")
    K.setup(s)
    if OPT['xl'] == 1:
        ldx()
    st(2)
    s2(5)
    for i in range(5):
        s(f"v_lshlrev_b32 v{CV + i}, 16, v{CV + i}")
    interleave(s, [(lambda e, i=i: (silu(e, CV + i, X + 4 * i), rnd1(e, CV + i))) for i in range(5)])
    if OPT['xl'] == 2:
        ldx()
    s2(6)
    if OPT['qt'] == 1:
        s(f"buffer_load_dword v{PF + 2}, v{vQ}, {sr(K.SRD_Q, 4)}, s{K.sWQ} offen", 'PF')
    if OPT['kt'] == -1:
        for op in touch_ops(K)[1:]:
            K.emit_op(s, op)
    for i in range(5):
        unpack(s, UT, WV + 4 * i, 4)
        c2 = (CV + i) & ~1
        o = (CV + i) & 1
        for e in range(0, 8, 2):
            if i == 0:
                s(f"v_pk_mul_f32 {vr(AC + e, 2)}, {vr(UT + e, 2)}, {vr(c2, 2)} op_sel:[0,{o}] op_sel_hi:[1,{o}]")
            else:
                s(f"v_pk_fma_f32 {vr(AC + e, 2)}, {vr(UT + e, 2)}, {vr(c2, 2)}, {vr(AC + e, 2)} op_sel:[0,{o},0] op_sel_hi:[1,{o},1]")
    s2(7)
    if OPT['qt'] == 0:
        s(f"buffer_load_dword v{PF + 2}, v{vQ}, {sr(K.SRD_Q, 4)}, s{K.sWQ} offen", 'PF')
    for e in range(4):
        s(f"v_permlane32_swap_b32 v{AC + e}, v{AC + 4 + e}")
    s(f"v_and_b32 v{vT}, 1, v1")
    for e in (0, 2):
        s(f"v_pk_add_f32 {vr(AC + e, 2)}, {vr(AC + e, 2)}, {vr(AC + 4 + e, 2)}")
    s(f"v_lshlrev_b32 v{vT}, 5, v{vT}")
    s(f"v_lshrrev_b32 v{vT + 1}, 4, v1")
    for e in range(2):
        s(f"v_permlane16_swap_b32 v{AC + e}, v{AC + 2 + e}")
    s(f"v_lshl_add_u32 v{vT}, v{vT + 1}, 3, v{vT}")
    s(f"v_pk_add_f32 {vr(AC, 2)}, {vr(AC, 2)}, {vr(AC + 2, 2)}")
    s("s_lshl_b32 s36, s3, 6")
    s(f"v_add_u32 v{vT}, s36, v{vT}")
    red(s, [AC, AC + 1], [], (2, 4, 8), False, False)
    s(f"ds_write_b64 v{vT}, {vr(AC, 2)} offset:{L_RED}")
    s(f"v_and_b32 v{vT + 1}, 7, v1")
    s(f"v_lshlrev_b32 v{vT + 1}, 3, v{vT + 1}")
    s("@lgkm 0")
    s("s_barrier")
    for w in range(4):
        s(f"ds_read_b64 {vr(AC + 2 * w, 2)}, v{vT + 1} offset:{L_RED + 64 * w}")
    s(f"s_add_u32 s{K.sTAG}, s{K.sEP}, 0x9e3779b9")
    s(f"v_mov_b32 v{UT + 1}, s{K.sTAG}")
    s(f"s_mov_b32 s37, {WS_GR}")
    s(f"v_pk_add_f32 {vr(AC, 2)}, {vr(AC, 2)}, {vr(AC + 2, 2)}")
    s(f"v_pk_add_f32 {vr(AC + 4, 2)}, {vr(AC + 4, 2)}, {vr(AC + 6, 2)}")
    s(f"v_pk_add_f32 {vr(AC, 2)}, {vr(AC, 2)}, {vr(AC + 4, 2)}")
    pack(s, UT, AC, 1)
    unpack(s, AC, UT, 1)
    s(f"v_add_f32 v{AC}, s93, v{AC}")
    s(f"v_add_f32 v{AC + 1}, s93, v{AC + 1}")
    pack(s, UT, AC, 1)
    s(f"buffer_store_dwordx2 {vr(UT, 2)}, v{vG}, {sr(SW, 4)}, s37 offen sc1")
    st(3)
    s2(8)
    if OPT['wl']:
        s("s_lshl_b32 s36, s5, 13")
        s(f"s_add_u32 s36, s36, {WS_HFLAG}")
        s("s_lshl_b32 s38, s4, 9")
        s("s_add_u32 s38, s38, s36")
        s("s_lshl_b32 s36, s3, 7")
        s("s_add_u32 s38, s38, s36")
        s("v_min_u32 v2, 1, v1")
        s("v_lshlrev_b32 v2, 31, v2")
        if OPT['wl'] == 1:
            s(f"buffer_store_dword v2, v2, {sr(SW, 4)}, s38 offen offset:4 sc1")
        else:
            s(f"buffer_load_dword v3, v2, {sr(SW, 4)}, s38 offen offset:4 sc1")
    G0, a0, a1, g0, g1 = WV, 122, 123, 124, 125
    s("s_mul_i32 s36, s3, 72")
    s(f"v_add_u32 v{a0}, s36, v1")
    s(f"v_and_b32 v{a1}, 7, v1")
    s("s_add_u32 s36, s36, 64")
    s(f"v_add_u32 v{a1}, s36, v{a1}")
    s(f"s_movk_i32 s36, {L_MOD}")
    for a_, d in ((a0, g0), (a1, g1)):
        s(f"v_and_b32 v{vT + 4}, 3, v{a_}")
        s(f"v_lshlrev_b32 v{vT + 4}, 4, v{vT + 4}")
        s(f"v_lshrrev_b32 v{a_}, 2, v{a_}")
        s(f"v_lshl_add_u32 v{d}, v{a_}, 7, v{vT + 4}")
        s(f"v_and_b32 v{vT + 5}, 1, v{a_}")
        s(f"v_lshl_add_u32 v{vT + 4}, v{vT + 5}, 3, v{vT + 4}")
        s(f"v_lshrrev_b32 v{a_}, 1, v{a_}")
        s(f"v_lshl_add_u32 v{a_}, v{a_}, 6, v{vT + 4}")
        s(f"v_add_u32 v{a_}, s36, v{a_}")

    def touch_a():
        s(f"buffer_load_dword v{PF + 2}, v{vQ}, {sr(K.SRD_Q, 4)}, s{K.sWQ} offen", 'PF')

    def poll_m():
        s(f"buffer_load_dwordx4 {vr(G0, 4)}, v{g0}, {sr(SW, 4)}, s37 offen {OPT['pm']}")
        s(f"buffer_load_dwordx4 {vr(G0 + 4, 4)}, v{g1}, {sr(SW, 4)}, s37 offen {OPT['pm']}")

    def check_m():
        for r in (1, 3, 5, 7):
            s(f"v_xor_b32 v{G0 + r}, s{K.sTAG}, v{G0 + r}")
        s(f"v_or3_b32 v{G0 + 1}, v{G0 + 1}, v{G0 + 3}, v{G0 + 5}")
        s(f"v_or_b32 v{G0 + 1}, v{G0 + 1}, v{G0 + 7}")
        s(f"v_cmp_ne_u32 vcc, 0, v{G0 + 1}")

    def early(n):
        if OPT['pp'] == n:
            poll_m()
            if OPT['qt'] == 4:
                touch_a()
    if OPT['tp'] in (0, 4):
        s("Lhead_tour:")
    unpack(s, X, XR, 12)
    early(0)
    if OPT['qt'] == 2:
        s(f"buffer_load_dword v{PF + 2}, v{vQ}, {sr(K.SRD_Q, 4)}, s{K.sWQ} offen", 'PF')
    m, v, t = vT, vT + 2, vT + 4

    def f_sum(acc, e, first):
        if e < 4:
            s(f"v_pk_add_f32 {vr(acc, 2)}, {vr(X + e, 2)}, {vr(X + e + 4, 2)}")
        elif e >= 8:
            s(f"v_pk_add_f32 {vr(acc, 2)}, {vr(acc, 2)}, {vr(X + e, 2)}")
    sum24(s, m, t, f_sum)
    red(s, [m], [t], (1, 2, 4, 8), True, False)
    s(f"v_mul_f32 v{m}, 0x3ae38e39, v{m}")
    early(1)
    for e in range(0, 24, 2):
        s(f"v_pk_add_f32 {vr(D + e, 2)}, {vr(X + e, 2)}, {vr(m, 2)} op_sel_hi:[1,0] neg_lo:[0,1] neg_hi:[0,1]")

    def f_sq(acc, e, first):
        if first:
            s(f"v_pk_mul_f32 {vr(acc, 2)}, {vr(D + e, 2)}, {vr(D + e, 2)}")
        else:
            s(f"v_pk_fma_f32 {vr(acc, 2)}, {vr(D + e, 2)}, {vr(D + e, 2)}, {vr(acc, 2)}")
    sum24(s, v, t, f_sq)
    s(f"v_cndmask_b32 v{v}, 0, v{v}, vcc")
    red(s, [v], [t], (1, 2, 4, 8), True, False)
    s(f"v_mul_f32 v{v}, 0x3ae38e39, v{v}")
    early(2)
    s(f"v_cvt_pk_bf16_f32 v{t}, v{m}, v{v}")
    s(f"v_and_b32 v{v}, 0xffff0000, v{t}")
    s(f"v_lshlrev_b32 v{m}, 16, v{t}")
    s(f"v_add_f32 v{v}, 0x3727c5ac, v{v}")
    rnd1(s, v)
    s(f"v_sqrt_f32 v{v}, v{v}")
    for e in range(0, 24, 2):
        s(f"v_pk_add_f32 {vr(D + e, 2)}, {vr(X + e, 2)}, {vr(m, 2)} op_sel_hi:[1,0] neg_lo:[0,1] neg_hi:[0,1]")
    rnd1(s, v)
    s(f"v_rcp_f32 v{v}, v{v}")
    pack(s, XR, D, 12)
    unpack(s, D, XR, 12)
    for e in range(0, 24, 2):
        s(f"v_pk_mul_f32 {vr(D + e, 2)}, {vr(D + e, 2)}, {vr(v, 2)} op_sel_hi:[1,0]")
    pack(s, XR, D, 12)
    unpack(s, D, XR, 12)
    if OPT['qt'] == 3:
        s(f"buffer_load_dword v{PF + 2}, v{vQ}, {sr(K.SRD_Q, 4)}, s{K.sWQ} offen", 'PF')
    for c in range(OPT['nq0']):
        for op in K.wq_tile(c, 0) + K.wq_tile(c, 1):
            K.emit_op(s, op)
    if OPT['tp'] == 2:
        s("Lhead_tour:")
    s(f"s_mov_b32 s38, {SPIN}")
    st(4)
    if OPT['pp'] >= 0:
        check_m()
        s("s_cbranch_vccz Lhead_gotm")
    s("Lhead_pollm:")
    s("@hide")
    poll_m()
    s("s_waitcnt vmcnt(0)")
    s("s_sub_u32 s38, s38, 1")
    s("s_cbranch_scc1 Lhead_gotm")
    check_m()
    s("s_cbranch_vccnz Lhead_pollm")
    s("@show")
    s("Lhead_gotm:")
    if OPT['qt'] == 5:
        touch_a()
    s(f"ds_write2_b32 v{a0}, v{G0}, v{G0 + 2} offset0:0 offset1:1")
    s(f"ds_write2_b32 v{a1}, v{G0 + 4}, v{G0 + 6} offset0:0 offset1:1")
    s("@lgkm 0")
    s("s_barrier")
    st(5)
    for i in range(3):
        s(f"ds_read_b128 {vr(X + 4 * i, 4)}, v{vM} offset:{L_MOD + 1152 + 384 * i}")
    for i in range(3):
        s(f"ds_read_b128 {vr(X + 12 + 4 * i, 4)}, v{vM} offset:{L_MOD + 384 * i}")
    unpack(s, C1, X, 12)
    for e in range(0, 24, 2):
        s(f"v_pk_mul_f32 {vr(D + e, 2)}, {vr(D + e, 2)}, {vr(C1 + e, 2)}")
    pack(s, XR, D, 12)
    unpack(s, SA, X + 12, 12)
    unpack(s, D, XR, 12)
    for i in range(3):
        for e in range(8 * i, 8 * i + 8, 2):
            s(f"v_pk_add_f32 {vr(D + e, 2)}, {vr(D + e, 2)}, {vr(SA + e, 2)}")
        pack(s, XR + 4 * i, D + 8 * i, 4)
        s(f"buffer_store_dwordx4 {vr(XR + 4 * i, 4)}, v{vP}, {sr(SW, 4)}, s92 offen offset:{768 * i} sc1", 'HS')
    if OPT['tp'] == 3:
        s("Lhead_tour:")
    if OPT['tp'] == 4:
        s("Lhead_tour2:")
    s("s_lshl_b32 s36, s5, 13")
    s(f"s_add_u32 s36, s36, {WS_HFLAG}")
    s("s_lshl_b32 s37, s4, 9")
    s("s_add_u32 s37, s37, s36")
    s("s_lshl_b32 s38, s3, 7")
    s("s_add_u32 s37, s37, s38")
    s("s_lshl_b32 s38, s3, 11")
    s("s_add_u32 s36, s36, s38")
    s(f"v_min_u32 v{vT}, 1, v1")
    s(f"v_lshlrev_b32 v{vT}, 31, v{vT}")
    s(f"v_and_b32 v{vT + 1}, 15, v1")
    s(f"v_lshlrev_b32 v{vT + 1}, 7, v{vT + 1}")
    s("v_cmp_gt_u32 vcc, 162, v0")
    for e in range(4):
        s(f"v_mov_b32 v{WV + e}, -1")
    s("s_mul_i32 s39, s2, 2592")
    s(f"s_add_u32 s39, s39, {WS_Y}")
    s(f"v_lshl_add_u32 v{vT + 2}, v0, 4, s39")
    s("s_lshl_b32 s39, s2, 7")
    s(f"s_add_u32 s39, s39, {WS_KEY}")
    s(f"v_mov_b32 v{vT + 3}, s39")
    s(f"v_cndmask_b32 v{vT + 2}, v{vT + 3}, v{vT + 2}, vcc")
    s("s_lshl_b32 s92, s5, 13")
    s(f"s_add_u32 s92, s92, {WS_FLAG}")
    s("s_add_u32 s92, s92, s38")
    s("s_lshl_b32 s38, s4, 7")
    s("s_add_u32 s92, s92, s38")
    s("s_getreg_b32 s38, hwreg(HW_REG_XCC_ID, 0, 4)")
    s(f"s_add_u32 s38, s38, s{K.sTAG}")
    s(f"v_mov_b32 v{vT + 4}, s38")
    for i in range(5):
        s(f"v_mov_b32 v{K.MC + i}, v{CV + i}")
    s(f"v_mov_b32 v{K.MW}, v{vW}")
    if OPT['fl'] & 2:
        s("v_and_b32 v126, 31, v1")
        s("v_lshlrev_b32 v126, 2, v126")
    s("@vm HS")
    s(f"buffer_store_dword v{UT + 1}, v{126 if OPT['fl'] & 2 else vT}, {sr(SW, 4)}, s37 offen sc1")
    st(6)
    if OPT['kt'] == -2:
        for op in touch_ops(K)[1:]:
            K.emit_op(s, op)
    for c in range(OPT['nq0'], OPT['nq2']):
        for op in K.wq_tile(c, 0) + K.wq_tile(c, 1):
            K.emit_op(s, op)
    if OPT['tp'] == 1:
        s("Lhead_tour:")
    s(f"s_mov_b32 s38, {SPIN}")
    st(7)
    s("Lhead_pollh:")
    s(f"buffer_load_dword v{vT + 3}, v{vT + 1}, {sr(SW, 4)}, s36 offen {OPT['ph']}")
    s("s_sub_u32 s38, s38, 1")
    s("s_cbranch_scc1 Lhead_goth")
    s("@drain")
    s(f"v_cmp_ne_u32 vcc, s{K.sTAG}, v{vT + 3}")
    s("s_cbranch_vccnz Lhead_pollh")
    s("Lhead_goth:")
    s("@drain")
    st(8)
    assert nA == 3
    for c in range(1):
        for op in K.h_loads(c):
            K.emit_op(s, op)


def touch_ops(K):
    ops = [f"buffer_load_dword v{vT + 5}, v{vQ2}, {sr(K.SRD_Q, 4)}, s{K.sWQ} offen"]
    if True:
        ops += [f"buffer_load_dword v{vT + 6}, v{vK}, {sr(K.SRD_K, 4)}, 0 offen",
                f"buffer_load_dword v{vT + 7}, v{vV}, {sr(K.SRD_V, 4)}, 0 offen"]
    return [([], t, 'PF', []) for t in ops]


def arm_ops(K):
    SW = K.SRD_H
    ops = [f"buffer_store_dword v{vT + 4}, v{vT}, {sr(SW, 4)}, s92 offen offset:12 sc1",
           f"buffer_store_dwordx4 {vr(WV, 4)}, v{vT + 2}, {sr(SW, 4)}, 0 offen sc1"]
    return [([], t, 'ARM', []) for t in ops]
```

```python
import re, sys, subprocess, tempfile
from dsl import *
from sched import Stream
import tail, head

M16 = 'v_mfma_f32_16x16x32_bf16'
KAD = 8
TA = (12, 20, 28)
DK, DV, DQ, DO = 36, 40, 42, 46
IDX, HV, ONES, STV = 50, 51, 52, 56
RL = 58
Q = 64
ACC = 128
P = 128
NEGM = 192
S = 208
TMP = 216
OBT = (128, 144, 192, 176)
OACC = 192
PK = 224
O = 0
HF = 0
AF = (208, 160)
VF = 160
L = 192
KF = 208
sK, sV, sW, sCNT, sWQ, sWO, sH, sPART, sPASS, sT = 40, 41, 42, 43, 44, 45, 46, 47, 48, 49
SRD_K, SRD_V, SRD_Q, SRD_O, SRD_H, SRD_P, SRD_C = 8, 12, 16, 20, 24, 28, 32
SRD_T, sTCH, sTCH2, TV, TV2 = (32, 80, 84), 39, 38, 57, 62
sFG, sFD, sF = 58, 59, 57
FV, FV2, FW = 254, 255, 51
sWOa, sWOb, sPD, sPR, sOX, sXF, sSAME = 7, 46, 56, 93, 55, 54, 53
sTO, sFM = 52, 6
sAR, AD, AV = 53, 248, 232
SRD_M, sMW = 16, 44
MC, MW, MR, MU, MA = 2, 7, 240, 244, 224
XV, XID = 252, 253
OAC, BUF = 64, 64
sH1 = 43
SRD_D, sEP, sTAG = 88, 94, 95
CNT = 63
QSCALE = 0x3e0293ee
THR = 0x63800000
MOFF = 0xc1c00000
FLAG_LDS = 131072


def tr(dst, base, db, off):
    w = base >> 16
    return f"ds_read_b64_tr_b16 {ar(dst, 2)}, v{TA[w] + db} offset:{(base & 0xffff) + off}"


def dma(voff, srd, soff, p):
    o = f" offset:{1024 * p}" if p else ""
    if srd in (SRD_K, SRD_V) and OPT['kv']:
        o += ' ' + OPT['kv']
    return f"buffer_load_dwordx4 v{voff}, {sr(srd, 4)}, s{soff} offen{o} lds"


def m0(base):
    return f"s_add_u32 m0, s{sW}, {base}"


def tile_ops(kind, base, tag, soff_expr=None):
    ops = []
    for p in range(4):
        pre = []
        if p == 0:
            if soff_expr:
                pre.append(soff_expr)
            pre.append(m0(base))
        if kind == 'K':
            t = dma(DK + p, SRD_K, sK, p)
        elif kind == 'V':
            t = dma(DV + (p & 1), SRD_V, sV, p)
        elif kind == 'Q':
            t = dma(DQ + p, SRD_Q, sT, p)
        else:
            t = dma(DO + p, SRD_O, sT, p)
        post = []
        if p == 3 and kind == 'K':
            post.append(f"s_add_u32 s{sK}, s{sK}, 16384")
        if p == 3 and kind == 'V':
            post.append(f"s_add_u32 s{sV}, s{sV}, 16384")
        ops.append((pre, t, tag, post))
    return ops


def k_tile(k):
    return tile_ops('K', (k % 4) * 16384, f'K{k}')


def v_tile(k):
    return tile_ops('V', 65536 + (k % 4) * 16384, f'V{k}')


def qreg(c):
    return ((c + 1) % 5) * 32768


def qpos(p):
    if p < 5 or not OPT['ab']:
        return [(0, p), (1, p)]
    return [((p - 5) >> 1, 5 + 2 * ((p - 5) & 1) + t) for t in range(2)]


def wq_tile(p, tau):
    hh, c = qpos(p)[tau]
    return tile_ops('Q', qreg(p) + 16384 * tau, f'WQ{p}', f"s_add_u32 s{sT}, s{sWQ}, {c * 64 * 8192 + 256 * hh}")


def oreg(c):
    return (0, 2, 1, 3)[c % 4] * 32768


POS = [(0, None), (0, 0), (0, 1), (1, 0), (1, 1), (0, 2), (1, 2), (0, 3), (1, 3)]


def wo_tile(p, tau):
    src, c = POS[p]
    base, col = (sWO, 1024) if c is None else ((sWOa, sWOb)[src], 256 * c)
    return tile_ops('O', oreg(p) + 16384 * tau, f'WO{p}', f"s_add_u32 s{sT}, s{base}, {64 * tau * 1152 + col}")


def h_loads(c):
    ops = []
    for tt in range(2):
        for ks in range(2):
            ops.append(([], f"buffer_load_dwordx4 {ar(HF + 16 * c + 8 * ks + 4 * tt, 4)}, v{HV}, {sr(SRD_H, 4)}, s{sH1 if tt else sH} offen offset:{128 * (2 * c + ks)} sc1", f'H{c}', []))
    return ops


def emit_op(s, op):
    pre, t, tag, post = op
    for x in pre:
        s(x)
    s(t, tag)
    for x in post:
        s(x)


class Gaps:
    def __init__(self):
        self.m = []

    def add(self, text):
        self.m.append(dict(m=text, salu=[], ds=[], vm=[], valu=[], tail=[]))
        return len(self.m) - 1

    def put(self, i, kind, text, tag=None):
        self.m[i][kind].append((text, tag))

    def put_op(self, i, op):
        pre, t, tag, post = op
        for j, x in enumerate(pre):
            self.put(i - len(pre) + j, 'salu', x)
        self.put(i, 'vm', t, tag)
        for x in post:
            self.put(min(i + 1, len(self.m) - 1), 'salu' if i + 1 < len(self.m) else 'tail', x)

    def emit(self, s):
        for i, g in enumerate(self.m[:-1]):
            if OPT['clr'] and g['m'] and g['vm'] and g['ds']:
                self.m[i + 1]['ds'] = g['ds'] + self.m[i + 1]['ds']
                g['ds'] = []
        for g in self.m:
            if g['m']:
                s(g['m'])
            for kind in ('salu', 'ds', 'vm', 'valu', 'tail'):
                for text, tag in g[kind]:
                    s(text, tag)


def stamp(s, diag, i, fine=False):
    if diag and ((OPT['fine'] != 0) == fine or i in (0, 9)):
        s(f"s_memtime {sr(60 + 2 * i, 2)}")


def setup(s):
    s(f"s_lshl_b32 s{sW}, s3, 12")
    s("v_lshrrev_b32 v2, 4, v1")
    s("v_and_b32 v3, 15, v1")
    s("v_lshrrev_b32 v5, 1, v3")
    s("v_mul_u32_u24 v5, 2304, v5")
    s("v_lshl_add_u32 v5, v2, 5, v5")
    s("v_and_b32 v6, 1, v3")
    s(f"v_lshl_add_u32 v{HV}, v6, 4, v5")
    s("s_lshl_b32 s6, s5, 2")
    s("s_add_u32 s6, s6, s3")
    s(f"s_mul_i32 s{sH}, s6, 36864")
    s(f"s_add_u32 s{sH}, s{sH}, {WS_H}")
    s(f"s_add_u32 s{sH1}, s{sH}, 18432")
    s(f"s_mul_i32 s{sWO}, s4, {256 * 1152}")
    s("s_lshl_b32 s7, s3, 4")
    s("v_add_u32 v4, s7, v2")
    s("v_lshlrev_b32 v5, 1, v2")
    s("v_xor_b32 v5, v5, v3")
    s("v_xor_b32 v6, 8, v5")
    s("v_lshlrev_b32 v7, 13, v4")
    s(f"v_lshl_add_u32 v{DQ}, v5, 4, v7")
    s(f"v_lshl_add_u32 v{DQ + 1}, v6, 4, v7")
    s(f"v_add_u32 v{DQ + 2}, {2 * (32768 - 1024)}, v{DQ}")
    s(f"v_add_u32 v{DQ + 3}, {3 * (32768 - 1024)}, v{DQ + 1}")
    s(f"v_add_u32 v{DQ + 1}, {32768 - 1024}, v{DQ + 1}")
    s("s_lshl_b32 s7, s4, 19")
    s(f"s_add_u32 s{SRD_K}, s52, s7")
    s(f"s_addc_u32 s{SRD_K + 1}, s53, 0")
    s(f"s_mov_b32 s{SRD_K + 2}, 524288")
    s(f"s_mov_b32 s{SRD_K + 3}, 0x20000")
    s(f"s_add_u32 s{SRD_V}, s54, s7")
    s(f"s_addc_u32 s{SRD_V + 1}, s55, 0")
    s(f"s_mov_b32 s{SRD_V + 2}, 524288")
    s(f"s_mov_b32 s{SRD_V + 3}, 0x20000")
    a = Asm()
    a.srd(SRD_P, 50, PART_BYTES, WS_PART)
    s(a.text())
    s("v_lshlrev_b32 v7, 8, v4")
    s(f"v_lshl_add_u32 v{DV}, v5, 4, v7")
    s(f"v_lshl_add_u32 v{DV + 1}, v6, 4, v7")
    s(f"v_xor_b32 v{TMP + 8}, v3, v2")
    s(f"v_lshl_add_u32 v{DK}, v{TMP + 8}, 4, v7")
    for p in range(1, 4):
        s(f"v_xor_b32 v{DK + p}, {64 * p}, v{DK}")
    for e, ch in ((0, 5), (1, 6)):
        s(f"v_lshrrev_b32 v7, 3, v{ch}")
        s("v_lshl_add_u32 v7, v7, 7, v4")
        s("v_mul_u32_u24 v7, 1152, v7")
        s(f"v_and_b32 v{TMP + 9}, 7, v{ch}")
        s(f"v_lshl_add_u32 v{DO + e}, v{TMP + 9}, 4, v7")
    s(f"v_add_u32 v{DO + 2}, {2 * (4608 - 1024)}, v{DO}")
    s(f"v_add_u32 v{DO + 3}, {3 * (4608 - 1024)}, v{DO + 1}")
    s(f"v_add_u32 v{DO + 1}, {4608 - 1024}, v{DO + 1}")
    s("v_lshlrev_b32 v7, 8, v3")
    s(f"v_lshl_add_u32 v{KAD}, v{TMP + 8}, 4, v7")
    for k in range(1, 4):
        s(f"v_xor_b32 v{KAD + k}, {64 * k}, v{KAD}")
    s("v_lshrrev_b32 v5, 2, v1")
    s("v_and_b32 v6, 7, v5")
    s("v_lshlrev_b32 v6, 5, v6")
    s("v_lshl_add_u32 v6, v5, 8, v6")
    s("v_and_b32 v7, 3, v1")
    s(f"v_lshl_add_u32 v{TA[0]}, v7, 3, v6")
    for db in range(1, 8):
        s(f"v_xor_b32 v{TA[0] + db}, {32 * db}, v{TA[0]}")
    for w in (1, 2):
        for db in range(8):
            s(f"v_add_u32 v{TA[w] + db}, {65536 * w}, v{TA[0] + db}")
    if OPT['l2']:
        s("v_cmp_gt_u32 s[36:37], 2, v3")
        s("v_mov_b32 v5, 0x3f803f80")
        s("s_nop 0")
        for i in range(4):
            s(f"v_cndmask_b32 v{ONES + i}, 0, v5, s[36:37]")
    else:
        for i in range(4):
            s(f"v_mov_b32 v{ONES + i}, 0x3f803f80")
    s("v_and_b32 v5, 1, v1")
    s("v_mul_u32_u24 v5, 0xaaaa, v5")
    s("v_add_u32 v5, 0x4444, v5")
    s(f"v_lshl_add_u32 v{IDX}, v5, 16, v5")
    s("v_lshrrev_b32 v5, 1, v3")
    s(f"v_mul_u32_u24 v5, {PAIR}, v5")
    s("v_lshl_add_u32 v5, v2, 5, v5")
    s("v_and_b32 v6, 1, v3")
    s(f"v_lshl_add_u32 v{STV}, v6, 4, v5")
    s(f"s_mul_i32 s{sPART}, s6, {16 * PAIR}")
    a = Asm()
    a.srd(SRD_T[0], 82, SZ['wu'])
    a.srd(SRD_T[1], 80, SZ['wg'])
    a.srd(SRD_T[2], 84, SZ['wd'])
    s(a.text())
    s("s_lshr_b32 s7, s2, 3")
    s("s_mul_i32 s7, s7, 18")
    s("s_add_u32 s7, s7, s3")
    s("s_and_b32 s36, s2, 7")
    s("s_mul_i32 s37, s36, 576")
    s("s_add_u32 s37, s37, s7")
    s("s_mul_i32 s37, s37, 1152")
    s("s_mul_i32 s7, s7, 9216")
    s("s_mul_i32 s36, s36, 1152")
    s("s_add_u32 s7, s7, s36")
    s("v_min_u32 v5, 17, v1")
    s(f"v_lshl_add_u32 v{TV}, v5, 6, s7")
    s(f"v_lshl_add_u32 v{TV2}, v5, 6, s37")
    s(f"s_mov_b32 s{sK}, 0")
    s(f"s_mov_b32 s{sV}, 0")
    s(f"s_mov_b32 s{sPASS}, 0")


def qproj(s, diag):
    def rd(n, r):
        c, d = divmod(n, 16)
        ks, u = r >> 1, r & 1
        return tr(VF + 8 * (n % 4) + 4 * ks + 2 * u, qreg(c) + 16384 * (d >> 3), d & 7, 8192 * ks + 4096 * u)
    if OPT['fine'] == 5:
        s("s_memtime s[60:61]")
    s("@vm WQ0")
    s("s_barrier")
    for n in range(3):
        for r in range(4):
            s(rd(n, r))
    for op in h_loads(1):
        emit_op(s, op)
    G = Gaps()
    for n in range(144):
        hh, c = qpos(n >> 4)[(n >> 3) & 1]
        d = 8 * hh + (n & 7)
        for tt in range(2):
            for ks in range(2):
                acc = vr(ACC + 8 * d + 4 * tt, 4)
                cin = '0' if (c == 0 and ks == 0) else acc
                i = G.add(f"{M16} {acc}, {ar(VF + 8 * (n % 4) + 4 * ks, 4)}, {ar(HF + 16 * c + 8 * ks + 4 * tt, 4)}, {cin}")
                if n + 3 < 144:
                    G.put(i, 'ds', rd(n + 3, 2 * tt + ks))
    last = -9
    hq = [op for c in range(3, 9) for op in h_loads(c)]
    for c in range(9):
        b = 64 * c
        if c < 8:
            G.put(b + 51, 'tail', f"@vm WQ{c + 1}")
            G.put(b + 51, 'tail', "s_barrier")
        start = -9
        me = sys.modules[__name__]
        tch = head.touch_ops(me)
        if c == 0:
            start = 3
            ops = (wq_tile(2, 0) + wq_tile(2, 1) if OPT['nq2'] == 2 else []) + h_loads(2) + (tch if OPT['kt'] == 0 else tch[:1])
        elif c <= 6:
            start = max(-9, OPT['qs'] - OPT['qd'] * (c - 1))
            ops = wq_tile(c + 2, 0) + wq_tile(c + 2, 1)
            n_h = int(OPT['hd'][c - 1]) if OPT['ab'] else 4
            ops += [hq.pop(0) for _ in range(n_h)]
            if c == OPT['kt']:
                ops += tch[1:]
            if c == 6:
                ops += head.arm_ops(me)
        elif c == 7:
            ops = k_tile(0) + k_tile(1)
        else:
            ops = k_tile(2) + v_tile(0) + v_tile(1)
        step = 4 if len(ops) < 16 else 3
        for j, op in enumerate(ops):
            assert b + start + step * j > last + 2
            G.put_op(b + start + step * j, op)
        last = b + start + step * (len(ops) - 1)
    assert not hq
    rest = []
    if OPT['ab']:
        G.put(64 * 6 + 30, 'salu', f"s_mov_b32 s36, {QSCALE}")
        g = 0
        for sx in range(4):
            g = max(g, 64 * 6 + 32 + 8 * sx + 11)
            for x in q_pack(0, sx, False):
                while g < 576 and (G.m[g]['vm'] or G.m[g - 1]['vm'] or len(G.m[g]['valu']) + len(G.m[g]['ds']) + (568 <= g <= 572) >= 2):
                    g += 1
                if g < 576:
                    G.put(g, 'valu', x)
                else:
                    rest.append(x)
    if OPT['fine'] == 5:
        for c in range(8):
            G.put(64 * c + 1, 'tail', f"s_memtime {sr(62 + 2 * c, 2)}")
        G.put(575, 'tail', "s_memtime s[78:79]")
    G.put(64 * 8 + 55, 'tail', "@vm K0")
    G.put(64 * 8 + 55, 'tail', "s_barrier")
    for k in range(4):
        G.put(64 * 8 + 56 + k, 'ds', kread(0, 0, k))
    G.put(64 * 8 + 60, 'ds', kread(0, 1, 0))
    G.put(64 * 8 + 62, 'salu', f"s_load_dwordx2 {sr(SRD_M, 2)}, s[0:1], {KA['wmod']}")
    G.emit(s)
    for x in rest:
        s(x)


def kread(k, kb, sidx):
    return f"ds_read_b128 {ar(KF + 16 * (kb & 1) + 4 * sidx, 4)}, v{KAD + sidx} offset:{(k % 4) * 16384 + 4096 * kb}"


def q_pack(hh, sx, pk):
    o = []
    for tt in range(2):
        for y in range(2):
            a0 = ACC + 8 * (8 * hh + 2 * sx + y) + 4 * tt
            if pk:
                o += [f"v_pk_mul_f32 {vr(a0 + 2 * e, 2)}, {vr(a0 + 2 * e, 2)}, s[36:37]" for e in range(2)]
            else:
                o += [f"v_mul_f32 v{a0 + e}, s36, v{a0 + e}" for e in range(4)]
    if pk:
        o.append(None)
    for tt in range(2):
        q = Q + 16 * (2 * hh + tt) + 4 * sx
        for y in range(2):
            a0 = ACC + 8 * (8 * hh + 2 * sx + y) + 4 * tt
            o += [f"v_cvt_pk_bf16_f32 v{q + 2 * y + e}, v{a0 + 2 * e}, v{a0 + 2 * e + 1}" for e in range(2)]
    if pk:
        o.append(None)
    for sw in ('v_permlane32_swap_b32', 'v_permlane16_swap_b32'):
        for tt in range(2):
            q = Q + 16 * (2 * hh + tt) + 4 * sx
            o += [f"{sw} v{q + e}, v{q + 2 + e}" for e in range(2)]
    return o


def qfinish(s):
    s(f"s_mov_b32 s36, {QSCALE}")
    s(f"s_mov_b32 s37, {QSCALE}")
    for e in range(4):
        s(f"v_mov_b32 v{RL + e}, 0")
    z = [f"v_mfma_f32_32x32x16_bf16 {ar(r, 16)}, {vr(RL, 4)}, {vr(RL, 4)}, 0" for r in list(range(O, O + 128, 16)) + [L]]
    for hh in range(1 if OPT['ab'] else 0, 2):
        for sx in range(4):
            for x in q_pack(hh, sx, True):
                if x is not None:
                    s(x)
                elif z:
                    s(z.pop(0))
    return z


def cross_max_to_negm(s, M, off='0'):
    for sw in ('v_permlane16_swap_b32', 'v_permlane32_swap_b32'):
        for qb in range(4):
            s(f"v_mov_b32 v{M + 4 + qb}, v{M + qb}")
        for qb in range(4):
            s(f"{sw} v{M + qb}, v{M + 4 + qb}")
        for qb in range(4):
            s(f"v_max_f32 v{M + qb}, v{M + qb}, v{M + 4 + qb}")
    for qb in range(4):
        for i in range(4):
            s(f"v_sub_f32 v{NEGM + 4 * qb + i}, {off}, v{M + qb}")


def prepass(s, z):
    s("@lgkm 0")
    for qb in range(4):
        for sx in range(4):
            d = vr(TMP + 4 * qb, 4)
            s(f"{M16} {d}, {ar(KF + 4 * sx, 4)}, {vr(Q + 16 * qb + 4 * sx, 4)}, {'0' if sx == 0 else d}")
    for x in z:
        s(x)
    M = TMP + 16
    for qb in range(4):
        t = TMP + 4 * qb
        s(f"v_max3_f32 v{M + qb}, v{t}, v{t + 1}, v{t + 2}")
        s(f"v_max_f32 v{M + qb}, v{M + qb}, v{t + 3}")
    cross_max_to_negm(s, M, MOFF)


def interval_ops(k):
    a = k_tile(k + 2) if k + 2 <= 31 else None
    b = v_tile(k + 1) if k + 1 <= 31 else None
    if k == 30:
        a = wo_tile(0, 0)
    if k == 31:
        a, b = wo_tile(0, 1), wo_tile(1, 0)
    if k == 32:
        a, b = wo_tile(1, 1), wo_tile(2, 0)
    return a + b


def rowsum(k, q2):
    return f"v_smfmac_f32_16x16x64_bf16 {ar(L + 4 * q2, 4)}, {vr(ONES, 4)}, {vr(P + 32 * ((k - 1) & 1) + 8 * q2, 8)}, v{IDX}"


def ob(tt, ks):
    return OBT[ks & 3] + 4 * (2 * (ks >> 2) + tt)


def norm_tile(n):
    db, qb = divmod(n, 4)
    hh, tt, t, y = qb >> 1, qb & 1, db >> 1, db & 1
    tmp = S + 4 * (n & 1)
    ops = [(f"v_accvgpr_read_b32 v{tmp + e}, a{O + 4 * n + e}", None) for e in range(4)]
    ops += [(f"v_pk_mul_f32 {vr(tmp + 2 * e, 2)}, {vr(tmp + 2 * e, 2)}, {vr((RL + qb) & ~1, 2)} op_sel:[0,{qb & 1}] op_sel_hi:[1,{qb & 1}]", None) for e in range(2)]
    d = ob(tt, 4 * hh + t) + 2 * y
    ops += [(f"v_cvt_pk_bf16_f32 v{d + e}, v{tmp + 2 * e}, v{tmp + 2 * e + 1}", None) for e in range(2)]
    if y:
        pre, st, tag, _ = o_store(8 * tt + 4 * hh + t)
        ops += [(pre[0], None), (st, tag)]
    return ops


def stage(s, k):
    G = Gaps()
    qk, pv = k <= 31, k >= 1
    gi = {}
    for i in range(16):
        kb, qb = i >> 2, i & 3
        for sx in range(4):
            d = vr(S + 4 * (i & 1), 4)
            t = f"{M16} {d}, {ar(KF + 16 * (kb & 1) + 4 * sx, 4)}, {vr(Q + 16 * qb + 4 * sx, 4)}, {vr(NEGM + 4 * qb, 4) if sx == 0 else d}"
            if k == 32 and i == 0 and sx < 3:
                gi[i, sx] = G.add(rowsum(k, sx))
                continue
            gi[i, sx] = G.add(t if qk else None)
        db = i >> 1
        for x in range(4):
            q2, t = 2 * (i & 1) + (x >> 1), x & 1
            d = ar(O + 16 * db + 4 * q2, 4)
            tx = f"{M16} {d}, {ar(VF + 8 * (db % 4) + 4 * t, 4)}, {vr(P + 32 * ((k - 1) & 1) + 8 * q2 + 4 * t, 4)}, {d}"
            gi[i, 4 + x] = G.add(tx if pv else None)
        lq = ({1: 0, 3: 1, 5: 2, 7: 3} if OPT['sg'] else {2: 0, 4: 1, 6: 2, 8: 3}) if qk else {0: 3}
        if pv and i in lq:
            q2 = lq[i]
            gi[i, 8] = G.add(rowsum(k, q2))
    for i in range(16):
        Gx = 16 * k + i
        T = Gx - 1
        if 0 <= T < 512:
            tk, ti = divmod(T, 16)
            kb, qb = ti >> 2, ti & 3
            sb = S + 4 * (ti & 1)
            for e in range(4):
                G.put(gi[i, e], 'valu', f"v_exp_f32 v{sb + e}, v{sb + e}")
            pd = P + 32 * (tk & 1) + 8 * qb + 2 * kb
            G.put(gi[i, 4], 'valu', f"v_cvt_pk_bf16_f32 v{pd}, v{sb}, v{sb + 1}")
            G.put(gi[i, 6], 'valu', f"v_cvt_pk_bf16_f32 v{pd + 1}, v{sb + 2}, v{sb + 3}")
        B, sx = divmod(Gx + 5, 4)
        if B < 128:
            G.put(gi[i, 6], 'ds', kread(B >> 2, B & 3, sx))
        D, t = divmod(Gx + 3 - 16, 2)
        if 0 <= D < 256:
            vk, db = divmod(D, 8)
            for u in range(2):
                G.put(gi[i, 4 + u], 'ds', tr(VF + 8 * (db % 4) + 4 * t + 2 * u, 65536 + (vk % 4) * 16384, db, 8192 * t + 4096 * u))
        if OPT['lw'] == 0:
            if qk and (pv or i == 15) and i % 2 == 1:
                G.put(gi[i, 7], 'salu', "@lgkm 3")
        elif qk and (pv or i == 14) and i % 2 == 0:
            G.put(gi[i, 0], 'salu', "@lgkm 3")
    if k >= 1:
        for j, op in enumerate(interval_ops(k)):
            if j >= 3:
                place(G, gi, 2 * (j - 3) + 1, op)
    if k <= 31:
        for j, op in enumerate(interval_ops(k + 1)[:3]):
            place(G, gi, 11 + 2 * j, op)
    if 1 <= k <= 28:
        if OPT['x'] & 128:
            pass
        elif k % 4 == 1:
            G.put(gi[2, 2], 'salu', f"s_mov_b32 m0, s{sFM}")
            G.put(gi[2, 7], 'vm', dma(FV, SRD_T[0], sF, 0).replace(' lds', ' ' + OPT['fnt'] + ' lds'), 'T')
            G.put(gi[4, 1], 'salu', f"s_add_u32 s{sFM}, s{sFM}, 4096")
            G.put(gi[4, 2], 'salu', f"s_add_u32 s{sF}, s{sF}, {64 * 9216}")
        elif k % 4:
            d = k % 4 == 3
            G.put(gi[12, 7], 'vm', f"buffer_load_dword v{TMP + k % 4}, v{TV2 if d else TV}, {sr(SRD_T[k % 4 - 1], 4)}, s{sTCH2 if d else sTCH} offen", 'T')
        else:
            G.put(gi[13, 1], 'salu', f"s_sub_u32 s{sTCH}, s{sTCH}, {4 * 9216}")
            G.put(gi[13, 2], 'salu', f"s_sub_u32 s{sTCH2}, s{sTCH2}, {4 * 1152}")
    if k == 0:
        G.put(gi[6, 7], 'salu', f"s_mov_b32 s{sTCH}, {24 * 9216}")
        G.put(gi[6, 7], 'salu', f"s_mov_b32 s{sTCH2}, {24 * 1152}")
    if k == 0:
        G.put(gi[15, 2], 'salu', f"s_mul_i32 s37, s5, 18432")
        G.put(gi[15, 3], 'salu', f"s_add_u32 s37, s37, s{sWO}")
        for x in (f"v_min_u32 v{TMP + 20}, 143, v0", f"v_lshl_add_u32 v{TMP + 20}, v{TMP + 20}, 7, s37",
                  f"v_mul_u32_u24 v{TMP + 19}, 24, v0", f"v_lshrrev_b32 v{TMP + 19}, 8, v{TMP + 19}",
                  f"v_lshl_add_u32 v{TMP + 19}, v{TMP + 19}, 7, s37"):
            G.put(gi[15, 5], 'valu', x)
    if k % 4 == 3 and k <= 28:
        G.put(gi[14, 7], 'vm', f"buffer_load_dword v{TMP + 5}, v{TMP + 19}, {sr(SRD_O, 4)}, 0 offen", 'T')
        G.put(gi[15, 5], 'valu', f"v_add_u32 v{TMP + 19}, {20 * 128}, v{TMP + 19}")
    if k == OPT['wot']:
        G.put(gi[6, 7], 'vm', f"buffer_load_dword v{TMP + 5}, v{TMP + 20}, {sr(SRD_O, 4)}, 0 offen", 'T')
    if k == 0:
        G.put(gi[14, 5], 'valu', f"v_min_u32 v{TMP + 21}, 19, v1")
        G.put(gi[14, 5], 'valu', f"v_lshl_add_u32 v{TMP + 21}, v{TMP + 21}, 7, s36")
        G.put(gi[14, 5], 'valu', f"v_lshl_add_u32 v{TMP + 22}, v1, 7, s36")
        G.put(gi[14, 3], 'salu', f"s_mov_b32 s{sTO}, s{sOX}")
        for x in (f"s_mov_b32 s{sF}, s{sFG}", f"s_lshl_b32 s{sFM}, s3, 10", f"s_add_u32 s{sFM}, s{sFM}, {tail.L_WU}",
                  "s_lshr_b32 s37, s2, 3", f"s_mul_i32 s37, s37, {-14 * 9216}", f"s_add_u32 s37, s37, {448 * 9216}"):
            G.put(gi[13, 5], 'salu', x)
        G.put(gi[14, 7], 'vm', f"buffer_load_dword v{TMP + 1}, v{TV}, {sr(SRD_T[0], 4)}, s37 offen", 'T')
    if OPT['oxt'] & 1 and k % 4 == 0 and 1 <= k <= 28:
        G.put(gi[12, 7], 'vm', f"buffer_load_dword v{TMP}, v{TMP + 21}, {sr(SRD_P, 4)}, s{sTO} offen", 'T')
        G.put(gi[13, 3], 'salu', f"s_add_u32 s{sTO}, s{sTO}, {18 * 128}")
    if OPT['oxt'] & 2:
        for j, (kk, i) in enumerate({0: ((29, 12), (31, 12)), 1: ((29, 12), (30, 12)), 2: ((29, 2), (29, 12)), 3: ((29, 2), (30, 6))}[OPT['rt']]):
            if k == kk:
                G.put(gi[i, 3], 'salu', f"s_add_u32 s37, s{sOX}, {8192 * j}")
                G.put(gi[i, 7], 'vm', f"buffer_load_dword v{TMP + 23 - 5 * j}, v{TMP + 22}, {sr(SRD_P, 4)}, s37 offen", 'T')
    need = []
    if k + 1 <= 31:
        need.append(f'K{k + 1}')
    if k <= 31:
        need.append(f'V{k}')
    if k == 32:
        need.append('WO0')
    if k == 0:
        o, v = ffn_setup()
        for j, x in enumerate(o + v):
            for y in (x if isinstance(x, tuple) else (x,)):
                if j < len(o):
                    G.put(gi[j // 4, j % 4], 'salu', y)
                else:
                    G.put(gi[13, 4], 'valu', y)
    if 29 <= k <= 31:
        for j, i in enumerate((0, 4, 8, 14)):
            n = 4 * (k - 29) + j
            if not OPT['x'] & 256:
                pre, t, tag, _ = ffn_load(n)
                G.put(gi[i, 3], 'salu', pre[0])
                G.put(gi[i, 7], 'vm', t, tag)
    if k == 30:
        G.put(gi[0, 5], 'valu', f"v_mov_b32 v{CNT}, 0")
        G.put(gi[2, 7], 'vm', f"buffer_load_dword v{XID}, v{CNT}, {sr(SRD_H, 4)}, s{sXF} offen offset:12 sc1", 'T')
    late_mod(G, gi, k)
    if k == 32:
        lfinish(G, gi)
    G.put(gi[10, 7], 'tail', f"@vm {','.join(need)} force")
    G.put(gi[10, 7], 'tail', "s_barrier")
    if k == 32:
        G.put(gi[11, 6], 'ds', f"ds_read_b128 {vr(TMP + 8, 4)}, v{TMP + 12}")
        for j, op in enumerate(wo_tile(2, 1) + wo_tile(3, 0)):
            i, sl = divmod(j, 2)
            G.put_op(gi[12 + i, 5 + 2 * sl], op)
    G.emit(s)


def place(G, gi, i, op):
    pre, t, tag, post = op
    for j, x in enumerate(pre):
        G.put(gi[i, 1 + j], 'salu', x)
    G.put(gi.get((i, 8), gi[i, 7]) if OPT['sg'] == 2 else gi[i, 7], 'vm', t, tag)
    for x in post:
        G.put(gi[i + 1, 1], 'salu', x)


def lfinish(G, gi):
    ops = []
    for qb in range(4):
        ops.append(f"v_accvgpr_read_b32 v{TMP + 2 * qb}, a{L + 4 * qb}")
        ops.append(f"v_accvgpr_read_b32 v{TMP + 2 * qb + 1}, a{L + 4 * qb + 1}")
    for qb in range(4):
        ops.append(f"v_add_f32 v{RL + qb}, v{TMP + 2 * qb}, v{TMP + 2 * qb + 1}")
    if OPT['l2']:
        for sw in ('v_permlane16_swap_b32', 'v_permlane32_swap_b32'):
            for qb in range(4):
                ops.append(f"v_mov_b32 v{TMP + qb}, v{RL + qb}")
            for qb in range(4):
                ops.append(f"{sw} v{RL + qb}, v{TMP + qb}")
    ops.append(f"v_add_f32 v{TMP}, v{RL}, v{RL + 1}")
    ops.append(f"v_add_f32 v{TMP + 1}, v{RL + 2}, v{RL + 3}")
    ops.append(f"v_add_f32 v{TMP}, v{TMP}, v{TMP + 1}")
    ops.append(f"v_cmp_ngt_f32 vcc, {THR}, v{TMP}")
    for qb in range(4):
        ops.append(f"v_rcp_f32 v{RL + qb}, v{RL + qb}")
    ops.append(f"v_mov_b32 v{TMP + 12}, {FLAG_LDS}")
    ops.append("s_or_b32 s36, vcc_lo, vcc_hi")
    ops.append(f"v_mov_b32 v{TMP + 2}, s36")
    ops.append(f"s_lshl_b32 s38, s3, 2")
    ops.append(f"v_add_u32 v{TMP + 3}, s38, v{TMP + 12}")
    ops.append(f"ds_write_b32 v{TMP + 3}, v{TMP + 2}")
    assert not OPT['l2']
    slots = [gi[i, sl] for i in (1, 2, 3) for sl in (4, 5, 5, 6, 6, 7, 7)][1:] + [gi[i, sl] for i in (4, 5, 6) for sl in (4, 5)]
    for n in range(OPT['ne']):
        for o, tag in norm_tile(n):
            G.put(gi[16 - OPT['ne'] // 2 + (n >> 1), 6 + (n & 1)], 'valu', o, tag)
    assert len(ops) <= len(slots), (len(ops), len(slots))
    for o, g in zip(ops, slots):
        G.put(g, 'valu', o, 'FLAG')
    G.put(gi[10, 7], 'tail', "@ds FLAG")


def oread(n, r):
    c, nb = divmod(n, 4)
    ks, u = r >> 1, r & 1
    hh, t = ks >> 2, ks & 3
    return tr(AF[n & 1] + 4 * ks + 2 * u, oreg(c) + 16384 * (t >> 1), 4 * hh + nb, 8192 * (t & 1) + 4096 * u)


def normalize(s):
    s(f"v_or3_b32 v{TMP + 8}, v{TMP + 8}, v{TMP + 9}, v{TMP + 10}")
    s(f"v_or_b32 v{TMP + 8}, v{TMP + 8}, v{TMP + 11}")
    s(f"v_readfirstlane_b32 s36, v{TMP + 8}")
    s(f"v_readfirstlane_b32 s38, v{XID}")
    s(f"v_min_u32 v{tail.vF}, 1, v1")
    s(f"v_lshlrev_b32 v{tail.vF}, 31, v{tail.vF}")
    s(f"v_mov_b32 v{tail.vZ}, s{sTAG}")
    s(f"s_getreg_b32 s39, hwreg(HW_REG_XCC_ID, 0, 4)")
    s(f"s_add_u32 s39, s39, s{sTAG}")
    s("s_cmp_eq_u32 s38, s39")
    s(f"s_cselect_b32 s{sSAME}, {0 if OPT['x'] & 4 else 1}, 0")
    for r in range(16):
        s(oread(0, r))
    s(f"s_andn2_b32 s36, s36, s{sPASS}")
    s("s_cbranch_scc1 Lattn_redo")
    for n in range(OPT['ne'], 32):
        for o, tag in norm_tile(n):
            s(o, tag)


FP = [('g', i) for i in range(9)] + [('u', 7), ('u', 8), ('d', 0)]


def freg(n):
    return 128 + 4 * n if n < 8 else 240 + 4 * (n - 8)


def wd_dma(i):
    return ([f"s_add_u32 s{sF}, s{sFD}, {i * 4096}", f"s_add_u32 m0, s{sFM}, {tail.L_WD + 4096 * i - tail.L_WU - 7 * 4096}"],
            dma(FV2, SRD_T[2], sF, 0), 'F', [])


def ffn_load(n):
    m, i = FP[n]
    if m == 'd':
        srd_, v, so = SRD_T[2], FV2, f"s{sFD}, {i * 4096}"
    else:
        srd_, v, so = SRD_T[1 if m == 'g' else 0], FV, f"s{sFG}, {i * 64 * 9216}"
    return ([f"s_add_u32 s{sF}, {so}"], f"buffer_load_dwordx4 {ar(freg(n), 4)}, v{v}, {sr(srd_, 4)}, s{sF} offen", 'F', [])


def ffn_write(n):
    m, i = FP[n]
    if m == 'g':
        v, off = FW, 4096 * i
    elif m == 'u':
        v, off = (FW, tail.L_WU - tail.L_WG + 4096 * i) if i < 7 else (FV2, tail.L_WU2 + 4096 * (i - 7))
    else:
        v, off = FV2, tail.L_WD + 4096 * i
    return f"ds_write_b128 v{v}, {ar(freg(n), 4)} offset:{off}"


def mod_block(d, bad):
    return [f"s_lshr_b32 s{d}, s2, 5", f"s_lshl_b32 s{d}, s{d}, 3", f"s_and_b32 s{bad}, s2, 7", f"s_add_u32 s{d}, s{d}, s{bad}",
            f"s_lshl_b32 s{d}, s{d}, 2", f"s_bfe_u32 s{bad}, s2, 0x20003", f"s_add_u32 s{d}, s{d}, s{bad}", f"s_add_u32 s{d}, s{d}, 72",
            (f"s_cmp_lt_u32 s{d}, 216", f"s_cselect_b32 s{bad}, 0, {tail.BIG}")]


def late_mod(G, gi, k):
    def fill(ops, i0, i1, kind='valu'):
        slots = []
        for i in range(i0, i1):
            if kind == 'salu':
                slots += [gi[i, x] for x in (0, 1, 2, 3) if not G.m[gi[i, x]]['salu']]
                continue
            if not G.m[gi[i, 5]]['valu']:
                slots.append(gi[i, 5])
            if i % 2 == 0 and i != 10 and not G.m[gi[i, 7]]['vm']:
                slots += [gi[i, 7]] * 2
        assert len(slots) >= len(ops), (k, len(slots), len(ops))
        for g, x in zip(slots, ops):
            for y in (x if isinstance(x, tuple) else (x,)):
                G.put(g, kind, y)
    t0, t1, t2 = MU, MU + 1, MU + 2
    if 1 <= k <= 28:
        if k % 4 == 1 and not OPT['x'] & 16:
            G.put(gi[14, 7], 'vm', f"buffer_load_dwordx4 {vr(MR, 4)}, v{MW}, {sr(SRD_M, 4)}, s{sMW} offen", 'T')
            G.put(gi[15, 3], 'salu', f"s_add_u32 s{sMW}, s{sMW}, {128 * 6912}")
        if k % 4 == 2 and not OPT['x'] & 32:
            G.put(gi[14, 7], 'vm', f"buffer_store_dwordx4 {vr(AD, 4)}, v{AV}, {sr(SRD_H, 4)}, s{sAR} offen sc1", 'T')
            G.put(gi[15, 3], 'salu', f"s_add_u32 s{sAR}, s{sAR}, 656")
        if k % 4 == 0 and not OPT['x'] & 64:
            ops = []
            for e in range(4):
                a, b = MU + 2 * (e & 1), MU + 2 * (e & 1) + 1
                ops += [f"v_lshlrev_b32 v{a}, 16, v{MR + e}", f"v_and_b32 v{b}, 0xffff0000, v{MR + e}",
                        f"v_fmac_f32 v{MA + 2 * e}, v{MC}, v{a}", f"v_fmac_f32 v{MA + 2 * e + 1}, v{MC}, v{b}"]
            ops += [f"v_mov_b32 v{MC + i}, v{MC + i + 1}" for i in range(4)]
            fill(ops, 0, 16)
    if k == 29:
        ops = [f"v_permlane32_swap_b32 v{MA + e}, v{MA + 4 + e}" for e in range(4)]
        ops += [f"v_add_f32 v{MA + e}, v{MA + e}, v{MA + 4 + e}" for e in range(4)]
        ops += [f"v_and_b32 v{t0}, 1, v1"]
        ops += [f"v_permlane16_swap_b32 v{MA + e}, v{MA + 2 + e}" for e in range(2)]
        ops += [f"v_lshlrev_b32 v{t0}, 5, v{t0}"]
        ops += [f"v_add_f32 v{MA + e}, v{MA + e}, v{MA + 2 + e}" for e in range(2)]
        ops += [f"v_lshrrev_b32 v{t1}, 4, v1", f"v_lshl_add_u32 v{t0}, v{t1}, 3, v{t0}"]
        fill(ops, 0, 16)
        fill(["s_lshl_b32 s38, s3, 6", f"s_add_u32 s38, s38, {FLAG_LDS + 64}"], 0, 2, 'salu')
    if k == 30:
        ops = []
        for ro in (2, 4, 8):
            ops += [f"v_add_f32_dpp v{MA + e}, v{MA + e}, v{MA + e} row_ror:{ro} row_mask:0xf bank_mask:0xf" for e in range(2)]
        ops += [f"v_add_u32 v{t0}, s38, v{t0}", f"v_and_b32 v{t1}, 7, v1"]
        fill(ops, 1, 8)
        G.put(gi.get((8, 8), gi[8, 5]), 'ds', f"ds_write_b64 v{t0}, {vr(MA, 2)}", 'MW')
        G.put(gi[10, 7], 'tail', "@ds MW")
        fill([f"v_lshlrev_b32 v{t1}, 3, v{t1}", f"v_add_u32 v{t1}, {FLAG_LDS + 64}, v{t1}"], 8, 10)
        for w in range(4):
            G.put(gi[11 + w, 5], 'ds', f"ds_read_b64 {vr(MA + 2 * w, 2)}, v{t1} offset:{64 * w}")
        fill(mod_block(39, 43) + [f"s_or_b32 s43, s43, s{sPASS}", f"s_and_b32 s43, s43, {tail.BIG}", "s_sub_u32 s36, s39, 144",
                                  ("s_cmp_lt_u32 s36, 36", "s_cselect_b32 s36, 1.0, 0"), f"s_lshr_b32 s{sMW}, s39, 1", f"s_lshl_b32 s{sMW}, s{sMW}, 6",
                                  "s_and_b32 s39, s39, 1", "s_lshl_b32 s39, s39, 3", f"s_add_u32 s39, s39, s{sMW}",
                                  f"s_add_u32 s39, s39, {WS_MODP}", "s_or_b32 s39, s39, s43"], 2, 16, 'salu')
    if k == 31:
        ops = [f"v_add_f32 v{MA + e}, v{MA + e}, v{MA + 4 + e}" for e in range(4)]
        ops += [f"v_add_f32 v{MA + e}, v{MA + e}, v{MA + 2 + e}" for e in range(2)]
        ops += [f"v_cvt_pk_bf16_f32 v{t2}, v{MA}, v{MA + 1}", f"v_lshlrev_b32 v{MA}, 16, v{t2}", f"v_and_b32 v{MA + 1}, 0xffff0000, v{t2}",
                f"v_add_f32 v{MA}, s36, v{MA}", f"v_add_f32 v{MA + 1}, s36, v{MA + 1}", f"v_cvt_pk_bf16_f32 v{t2}, v{MA}, v{MA + 1}",
                f"v_lshrrev_b32 v{t0}, 1, v0", f"v_lshlrev_b32 v{t0}, 4, v{t0}", f"v_and_b32 v{t1}, 1, v0", f"v_lshl_add_u32 v{t0}, v{t1}, 2, v{t0}",
                f"v_lshrrev_b32 v{t1}, 3, v0", f"v_min_u32 v{t1}, 1, v{t1}", f"v_lshl_or_b32 v{t0}, v{t1}, 31, v{t0}"]
        fill(ops, 0, 16)
    if k == 32:
        G.put(gi[0, 7], 'vm', f"buffer_store_dword v{t2}, v{t0}, {sr(SRD_H, 4)}, s39 offen sc1", 'MS')
        for j, x in enumerate((f"v_min_u32 v{MR}, 1, v0", f"v_lshlrev_b32 v{MR}, 31, v{MR}", f"v_mov_b32 v{MR + 1}, 1")):
            G.put(gi[7 + j, 4], 'valu', x)


def ffn_setup():
    o = ["s_lshr_b32 s6, s2, 3", "s_and_b32 s7, s2, 7", "s_mul_i32 s7, s7, 18", "s_add_u32 s7, s7, s6",
         f"s_lshl_b32 s{sFG}, s7, 6", f"s_mul_i32 s{sFD}, s7, 36864",
         ("s_cmp_lt_u32 s6, 18", f"s_cselect_b32 s7, 0, {tail.BIG}"),
         f"s_or_b32 s{sFG}, s{sFG}, s7", f"s_or_b32 s{sFD}, s{sFD}, s7"]
    v = [f"v_lshrrev_b32 v{FW}, 2, v0", f"v_mul_u32_u24 v{FW}, 9216, v{FW}", f"v_and_b32 v{FV}, 3, v0",
         f"v_lshl_add_u32 v{FV}, v{FV}, 4, v{FW}", f"v_lshlrev_b32 v{FV2}, 4, v0", f"v_add_u32 v{FW}, {tail.L_WG}, v{FV2}"]
    o += ["s_and_b32 s7, s4, 1", "s_lshl_b32 s6, s7, 7",
          "s_xor_b32 s36, s4, 1", f"s_mul_i32 s36, s36, {256 * 1152}", f"s_add_u32 s{sWOb}, s36, s6",
          "s_lshl_b32 s36, s4, 8", f"s_add_u32 s{sPD}, s{sPART}, s36",
          "s_lshr_b32 s36, s4, 1", "s_lshl_b32 s36, s36, 11", "s_lshl_b32 s7, s7, 8", "s_add_u32 s36, s36, s7",
          f"s_add_u32 s{sPR}, s{sPART}, s36",
          "s_lshr_b32 s36, s4, 1", "s_lshl_b32 s36, s36, 4", "s_add_u32 s36, s36, s5", "s_lshl_b32 s36, s36, 9", "s_add_u32 s36, s36, s7",
          "s_lshl_b32 s36, s36, 8", f"s_add_u32 s{sOX}, s36, {OX}",
          f"s_add_u32 s{sWOa}, s{sWO}, s6", f"s_xor_b32 s{sXF}, s{tail.sFL}, 128", "s_lshl_b32 s36, s3, 14"]
    v += [f"v_lshl_add_u32 v{XV}, v1, 4, s36"]
    o = mod_block(sMW, 37) + [f"s_lshl_b32 s{sMW}, s{sMW}, 5", f"s_or_b32 s{sMW}, s{sMW}, s37", f"s_mov_b32 s{SRD_M + 2}, {SZ['wmod']}"] + o
    v += [f"v_mov_b32 v{MA + e}, 0" for e in range(8)]
    o = [f"s_lshl_b32 s{sAR}, s5, 4", f"s_add_u32 s{sAR}, s{sAR}, s4", f"s_lshl_b32 s{sAR}, s{sAR}, 2", f"s_add_u32 s{sAR}, s{sAR}, s3",
         f"s_mul_i32 s{sAR}, s{sAR}, 4608", f"s_add_u32 s{sAR}, s{sAR}, {WS_H2}"] + o
    v += [f"v_mov_b32 v{AD + e}, -1" for e in range(4)] + [f"v_min_u32 v{AV}, 41, v1", f"v_lshlrev_b32 v{AV}, 4, v{AV}"]
    return o, v


def o_store(f):
    pre = [f"s_add_u32 s37, s{sOX}, {4096 * (f >> 2)}"]
    return (pre, f"buffer_store_dwordx4 {vr(ob(f >> 3, f & 7), 4)}, v{XV}, {sr(SRD_P, 4)}, s37 offen offset:{1024 * (f & 3)} {OPT['ox']}", 'OS', [])


def o_load(f):
    pre = [f"s_add_u32 s37, s{sOX}, {4096 * (f >> 2)}"] if f % 4 == 0 else []
    return (pre, f"buffer_load_dwordx4 {ar(BUF + 4 * f, 4)}, v{XV}, {sr(SRD_P, 4)}, s37 offen offset:{1024 * (f & 3)} {OPT['ol']}", 'OL', [])


def oproj(s):
    G = Gaps()

    def acc(n, tt):
        c = POS[n >> 2][1]
        return OAC + 32 * (1 if c is None else c & 1) + 8 * (n & 3) + 4 * tt
    for n in range(36):
        src, c = POS[n >> 2]
        for tt in range(2):
            for ks in range(8):
                d = vr(acc(n, tt), 4)
                b = ar(BUF + 32 * tt + 4 * ks, 4) if src else vr(ob(tt, ks), 4)
                i = G.add(f"{M16} {d}, {ar(AF[n & 1] + 4 * ks, 4)}, {b}, {'0' if ks == 0 and src == 0 else d}")
                if n + 1 < 36:
                    G.put(i, 'ds', oread(n + 1, 8 * tt + ks))
    for _ in range(8):
        G.add(None)
    for n in range(36):
        src, c = POS[n >> 2]
        if c is not None and src == 0:
            continue
        for tt in range(2):
            e0 = 16 * n + 8 * tt + 8 + 4
            a0 = acc(n, tt)
            pk = PK + 8 * ((n >> 1) & 1) + 4 * tt + 2 * (n & 1)
            G.put(e0, 'valu', f"v_cvt_pk_bf16_f32 v{pk}, v{a0}, v{a0 + 1}")
            G.put(e0 + 1, 'valu', f"v_cvt_pk_bf16_f32 v{pk + 1}, v{a0 + 2}, v{a0 + 3}")
            if n & 1:
                base, off = (sPD, 16384) if c is None else (sPR, 512 * c)
                G.put(e0 + 1, 'salu', f"s_add_u32 s38, s{base}, {tt * 8 * PAIR + off + ((n >> 1) & 1) * 128}")
                G.put(e0 + 2, 'vm', f"buffer_store_dwordx4 {vr(pk - 2, 4)}, v{STV}, {sr(SRD_P, 4)}, s38 offen {OPT['st']}", 'STD' if c is None else f'ST{c}')
    for c in range(8):
        b = 64 * c + 47
        G.put(b, 'tail', f"@vm WO{c + 1}")
        if c in (2, 7):
            G.put(b, 'tail', "@lgkm 0")
        G.put(b, 'tail', "s_barrier")
        if c == 0:
            ops = wo_tile(3, 1)
        elif c <= 5:
            ops = wo_tile(c + 3, 0) + wo_tile(c + 3, 1)
        else:
            ops = []
        for j, op in enumerate(ops):
            G.put_op(b + 9 + 8 * (j >> 1) + 2 * (j & 1), op)

    def spread(ops, lo, hi, step=2):
        free = [i for i in range(lo, hi) if i % step == step - 2 and not G.m[i]['vm'] and not G.m[i]['valu'] and not G.m[i + 1]['valu']]
        assert len(free) >= len(ops), (len(free), len(ops))
        for j, op in enumerate(ops):
            G.put_op(free[j * len(free) // len(ops)], op)
    fx, px, cx = OPT['fx'], OPT['px'], OPT['cx']
    assert fx < OPT['at'] < 176
    G.put(fx - 1, 'tail', "@vm OS")
    G.put(fx - 1, 'tail', f"s_cmp_eq_u32 s{sSAME}, 0")
    G.put(fx - 1, 'tail', "s_cbranch_scc1 Lattn_wb")
    G.put(fx - 1, 'tail', "Lattn_wbdone:")
    G.put(fx, 'vm', f"buffer_store_dword v{tail.vZ}, v{tail.vF}, {sr(SRD_H, 4)}, s{tail.sFL} offen offset:8 sc1")
    G.put(fx + 1, 'salu', f"s_xor_b32 s{sOX}, s{sOX}, 65536")
    spread([([], f"buffer_atomic_add v{MR + 1}, v{MR}, {sr(SRD_D, 4)}, 0 offen sc1", None, [])], OPT['at'], OPT['at'] + 12)
    spread([([], x_poll(), None, [])], px, px + 8)
    G.put(cx - 2, 'valu', f"v_readfirstlane_b32 s36, v{tail.POLL}")
    G.put(cx, 'tail', f"s_cmp_lg_u32 s36, s{sTAG}")
    G.put(cx, 'tail', "s_cbranch_scc1 Lattn_xspin")
    G.put(cx, 'tail', "Lattn_xgot:")
    spread([o_load(f) for f in range(16)], cx + 3, OPT['ex'])
    for j, x in enumerate(tail.pointer_loads()):
        G.put(fx + 3 + 2 * j, 'tail', x)
    L, ldx, ld0, ld1 = tail.prepare()
    g0 = 200

    def flag(f, groups):
        spread([([tail.flag_store()[0], "@vm ST" + groups[-1]], tail.flag_store()[1], None, [])], f, f + 12)

    def poll(p):
        assert p > g0
        spread([(tail.flag_poll()[:1], tail.flag_poll()[1], None, [])], p, p + 12)
    if OPT['s0']:
        flag(OPT['f0'], OPT['s0'])
        poll(OPT['p0'])
        c0 = OPT['c0']
        fc = tail.flag_try() if OPT['nb'] else tail.flag_check(0)
        assert c0 > 404 or not OPT['nb']
        G.put(c0 - 2, 'valu', fc[0])
        for x in fc[1:]:
            G.put(c0, 'tail', x)
        spread(tail.part_loads(OPT['s0'], tail.sB0 if OPT['nb'] else None), c0 + 2, c0 + 2 + 18 * len(OPT['s0']))
    flag(OPT['f1'], OPT['s1'])
    poll(OPT['p1'])
    ca = OPT['ca']
    assert ca > g0
    spread([([], f"buffer_load_dword v{CNT}, v{CNT}, {sr(SRD_D, 4)}, 0 offen sc1", None, [])], ca - 60, ca - 40)
    G.put(ca - 2, 'valu', f"v_readfirstlane_b32 s37, v{CNT}")
    for x in ("s_cmp_lt_u32 s37, 256", "s_cbranch_scc1 Lattn_armwait", "Lattn_armed:"):
        G.put(ca, 'tail', x)
    if OPT['wdp'] == 5:
        spread([wd_dma(i) for i in range(1, 9)], OPT['wd0'], OPT['wd0'] + 48, 4)
    spread(ldx, OPT['xp'], OPT['xp'] + 40)
    spread(ld0, ca + 2, ca + 44)
    spread(ld1, max(64 * 7 + 8, ca + 46), 536)
    g = max(72, OPT['at'] + 14)
    for x in L:
        if isinstance(x, int):
            assert x != 190 or g < g0
            g = max(g, x)
            continue
        x = x if isinstance(x, tuple) else (x,)
        kind = 'salu' if x[0].startswith('s_') else 'valu'
        while G.m[g][kind] or G.m[g]['vm'] or (kind == 'salu' and G.m[g]['valu']) or (kind == 'valu' and G.m[g - 1]['vm']):
            g += 1
        for y in x:
            G.put(g, kind, y)
        if 's[36:37]' in x[0] or 's[54:55]' in x[0]:
            assert g < min(OPT['ca'], OPT['c0']) - 4
    assert g < 64 * 7 + 6
    if OPT['fine'] == 3:
        for c in range(8):
            G.put(64 * c + 63, 'tail', f"s_memtime {sr(62 + 2 * c, 2)}")
    G.emit(s)


def x_poll():
    return f"buffer_load_dword v{tail.POLL}, v{tail.vF}, {sr(SRD_H, 4)}, s{sXF} offen offset:8 sc1"


def pair_cold(a):
    a("Lattn_wb:")
    a("buffer_wbl2 sc1")
    a("s_waitcnt vmcnt(0)")
    a("s_branch Lattn_wbdone")
    a("Lattn_xspin:")
    a(f"s_mov_b32 s37, {tail.SPIN}")
    a("Lattn_xloop:")
    a(x_poll())
    a("s_waitcnt vmcnt(0)")
    a(f"v_readfirstlane_b32 s36, v{tail.POLL}")
    a("s_sub_u32 s37, s37, 1")
    a("s_cbranch_scc1 Lattn_xgot")
    a(f"s_cmp_lg_u32 s36, s{sTAG}")
    a("s_cbranch_scc1 Lattn_xloop")
    a("s_branch Lattn_xgot")


def redo():
    s = Stream()
    s("Lattn_redo:")
    s(f"v_xor_b32 v{KAD}, 64, v{KAD + 1}")
    s(f"v_xor_b32 v{KAD + 2}, 64, v{KAD + 3}")
    s("@drain")
    s("s_barrier")
    M = TMP + 16
    for qb in range(4):
        s(f"v_mov_b32 v{M + qb}, 0xff800000")
    s(f"s_mov_b32 s{sK}, 0")
    s(f"s_mov_b32 s{sPASS}, -1")
    s("Lattn_redo_loop:")
    for op in k_tile(0):
        emit_op(s, op)
    s("@drain")
    s("s_barrier")
    for kb in range(4):
        for sx in range(4):
            s(kread(0, kb, sx))
        for qb in range(4):
            for sx in range(4):
                d = vr(TMP + 4 * qb, 4)
                s(f"{M16} {d}, {ar(KF + 16 * (kb & 1) + 4 * sx, 4)}, {vr(Q + 16 * qb + 4 * sx, 4)}, {'0' if sx == 0 else d}")
        for qb in range(4):
            t = TMP + 4 * qb
            s(f"v_max3_f32 v{M + qb}, v{M + qb}, v{t}, v{t + 1}")
            s(f"v_max3_f32 v{M + qb}, v{M + qb}, v{t + 2}, v{t + 3}")
    s("s_barrier")
    s(f"s_cmp_lt_u32 s{sK}, 524288")
    s("s_cbranch_scc1 Lattn_redo_loop")
    cross_max_to_negm(s, M)
    s(f"s_mov_b32 s{sK}, 0")
    s(f"s_mov_b32 s{sV}, 0")
    for op in k_tile(0) + k_tile(1) + k_tile(2) + v_tile(0) + v_tile(1):
        emit_op(s, op)
    for r in list(range(O, O + 128)) + list(range(L, L + 16)):
        s(f"v_accvgpr_write_b32 a{r}, 0")
    s("@drain")
    s("s_barrier")
    for sx in range(4):
        s(kread(0, 0, sx))
    s(kread(0, 1, 0))
    s("@drain")
    s("s_branch Lattn_stage0")
    s.resolve()
    return [t for _, ls in s.split() for t in ls]


def merge_body(copies):
    out = []
    assert len({len(c) for c in copies}) == 1
    for lines in zip(*copies):
        if len(set(lines)) == 1:
            out.append(lines[0])
        else:
            ms = [re.fullmatch(r's_waitcnt (\w+)\((\d+)\)', l) for l in lines]
            assert all(ms) and len({m.group(1) for m in ms}) == 1, lines
            out.append(f"s_waitcnt {ms[0].group(1)}({min(int(m.group(2)) for m in ms)})")
    return out


def insn_sizes(lines):
    src = '.amdgcn_target "amdgcn-amd-amdhsa--gfx950"\n.text\n' + '\n'.join(lines) + '\n'
    with tempfile.TemporaryDirectory() as d:
        open(d + '/t.s', 'w').write(src)
        subprocess.run(['clang', '-x', 'assembler', '-target', 'amdgcn-amd-amdhsa', '-mcpu=gfx950', '-c', d + '/t.s', '-o', d + '/t.o'], check=True)
        dis = subprocess.run(['llvm-objdump', '-d', '--mcpu=gfx950', d + '/t.o'], check=True, capture_output=True, text=True).stdout
    sz = [4 * len(m.group(1).split()) for m in re.finditer(r'// [0-9A-F]{12}: ((?:[0-9A-F]{8} ?)+)', dis)]
    it = iter(sz)
    out = [0 if l.endswith(':') else next(it) for l in lines]
    assert next(it, None) is None
    return out


def page_tour(lines):
    i0 = lines.index('Lhead_tour:')
    if not OPT['tour']:
        return lines
    sz = insn_sizes(lines)
    end = lines.index('Lattn_redo:')
    out = []; pos = 4; page = 1; n = 0
    n1 = OPT['t1'] if 'Lhead_tour2:' in lines else 1000

    def enter(first):
        pre = ['    s_mov_b64 exec, 0']
        for w in range(3):
            pre += [f'    s_cmp_eq_u32 s3, {w}', f'    s_cbranch_scc1 Ltour{first + w}']
        return pre + [f'    s_branch Ltour{first + 3}']
    for i in range(i0 + 1, len(lines)):
        l = lines[i]
        if l == 'Lattn_loop:':
            while pos % 32 != OPT['lal']:
                out.append('    s_nop 0'); pos += 4
        want = False
        if i < end and pos >= 4096 * page and not l.endswith(':'):
            prev = lines[i - 1].split()[0]
            if prev.startswith('v_mfma') and not l.split()[0].startswith('s_') or pos - 4096 * page >= 40:
                want = True; page += 1
        if lines[i - 1][:-1] in ('Ltail_spin0', 'Ltail_spin1', 'Ltail_spin2', 'Ltail_rest', 'Ltail_idle', 'Lattn_xspin'):
            want = True
        if want:
            out.append(f'Ltour{n}:'); out.append(n); pos += 4; n += 1
        if l == 'Lhead_tour2:':
            out += enter(n1) + ['Lmain2:', '    s_mov_b64 exec, -1']; pos += 36
            continue
        out.append(l); pos += sz[i]

    def nxt(x):
        if x < n1:
            return 'Ltour%d' % (x + 4) if x + 4 < min(n, n1) else 'Lmain'
        return 'Ltour%d' % (x + 4) if x + 4 < n else 'Lmain2'
    out = [f"    s_cbranch_execz {nxt(x)}" if isinstance(x, int) else x for x in out]
    return lines[:i0] + enter(0) + ['.p2align 12', 'Lmain:', '    s_mov_b64 exec, -1'] + out


def k_attn(diag=False):
    s = Stream()
    head.head(s, diag, sys.modules[__name__])
    stamp(s, diag, 1)
    qproj(s, diag)
    stamp(s, diag, 2)
    prepass(s, qfinish(s))
    s("@mark pre")
    s("Lattn_stage0:")
    s(f"s_mov_b32 s{sCNT}, 7")
    for k in range(33):
        s(f"@mark st{k}")
        stage(s, k)
    s("@mark post")
    normalize(s)
    s("@mark oproj")
    oproj(s)
    s("@mark tail")
    tail.post(s, diag, [ffn_write(n) for n in range(12)], emit_op)
    s.resolve()
    parts = dict(s.split())
    for k in range(1, 5):
        parts[f'body{k}'] = merge_body([parts[f'st{j}'] for j in range(k, 29, 4)])
    a = Asm()

    def put(name):
        for t in parts[name]:
            a(t)
    put('_head'); stamp(a, diag, 3); put('pre'); put('st0')
    stamp(a, diag, 4)
    a("Lattn_loop:")
    for k in range(1, 5):
        put(f'body{k}')
    a(f"s_sub_u32 s{sCNT}, s{sCNT}, 1")
    a(f"s_cmp_lg_u32 s{sCNT}, 0")
    a("s_cbranch_scc1 Lattn_loop")
    stamp(a, diag, 5)
    for k in range(29, 33):
        put(f'st{k}')
    stamp(a, diag, 6)
    put('post')
    if OPT['fine'] == 3:
        stamp(a, diag, 0)
    stamp(a, diag, 7)
    put('oproj')
    if diag:
        stamp(a, diag, 8)
        if OPT['fine'] != 5:
            stamp(a, diag, 9)
        a("s_memrealtime s[98:99]")
        a("s_waitcnt lgkmcnt(0)")
        for i in range(10):
            a(f"s_sub_u32 s7, s{60 + 2 * i}, s60")
            a(f"v_accvgpr_write_b32 a{224 + i}, s7")
        a("v_accvgpr_write_b32 a234, s96")
        a("v_accvgpr_write_b32 a235, s98")
    put('tail')
    tail.body(a, diag, [wd_dma(i) for i in range(1, 9)], emit_op)
    if diag:
        tail.dump_stamps(a, 8, WS_STAMP + 0x20000)
        a.srd(SRD_V, 50, 1024 * 64, WS_STAMP)
        for i in range(3):
            a(f"buffer_store_dwordx4 {ar(224 + 4 * i, 4)}, v2, {sr(SRD_V, 4)}, s36 offen offset:{16 * i}")
    a("s_endpgm")
    pair_cold(a)
    if OPT['s0'] and not OPT['nb']:
        tail.flag_spin(a, 0)
    tail.flag_spin(a, 1)
    tail.flag_spin(a, 2)
    for t in redo():
        a(t)
    a("Lattn_armwait:")
    a(f"s_mov_b32 s36, {tail.SPIN}")
    a("Lattn_armloop:")
    a(f"v_mov_b32 v{CNT}, 0")
    a(f"buffer_load_dword v{CNT}, v{CNT}, {sr(SRD_D, 4)}, 0 offen sc1")
    a("s_waitcnt vmcnt(0)")
    a(f"v_readfirstlane_b32 s37, v{CNT}")
    a("s_sub_u32 s36, s36, 1")
    a("s_cbranch_scc1 Lattn_armed")
    a("s_cmp_lt_u32 s37, 256")
    a("s_cbranch_scc1 Lattn_armloop")
    a("s_branch Lattn_armed")
    a("Lattn_end:")
    a("s_endpgm")
    a.L = page_tour(a.L)
    return a.text(), 512, dict(grid=256, block=256, lds=163840), s.stats
```

```python
from dsl import *
from tail import unpack, pack, rnd1, red, srd, BIG, SPIN

L_RED, L_MOD = 0, 1024
vC, vW, vX, vP, vM, vG, vQ2, vQ, vT = 64, 65, 66, 67, 68, 69, 70, 71, 72
CV, WV, XR = 80, 88, 108
AC, UT = 128, 136
X, D, C1, SA = 144, 168, 192, 216
PF = 240
vK, vV = 120, 121


def silu(s, r, t):
    d, q, e = t, t + 1, t + 2
    s(f"v_mul_f32 v{d}, 0xbfb8aa3b, v{r}")
    s(f"v_min_f32 v{d}, 0x42fc0000, v{d}")
    s(f"v_exp_f32 v{d}, v{d}")
    s(f"v_add_f32 v{d}, 1.0, v{d}")
    s(f"v_rcp_f32 v{q}, v{d}")
    s(f"v_mul_f32 v{e}, v{r}, v{q}")
    s(f"v_fma_f32 v{d}, -v{e}, v{d}, v{r}")
    s(f"v_fma_f32 v{r}, v{d}, v{q}, v{e}")


def interleave(s, fns):
    lists = []
    for f in fns:
        l = []
        f(l.append)
        lists.append(l)
    for i in range(max(map(len, lists))):
        for l in lists:
            if i < len(l):
                s(l[i])


def sum24(s, dst, t, f):
    for e in range(0, 24, 2):
        f(t if e & 2 else dst, e, e < 4)
    s(f"v_pk_add_f32 {vr(dst, 2)}, {vr(dst, 2)}, {vr(t, 2)}")
    s(f"v_add_f32 v{dst}, v{dst}, v{dst + 1}")


def head(s, diag, K):
    st = lambda i: OPT['fine'] == 1 and K.stamp(s, diag, i, True)
    s2 = lambda i: OPT['fine'] == 2 and K.stamp(s, diag, i, True)
    SC, SM, SX, SW = K.SRD_K, K.SRD_V, K.SRD_O, K.SRD_H
    s("s_cmp_ge_u32 s2, 256")
    s("s_cbranch_scc1 Lattn_end")
    if OPT['scr']:
        s("s_and_b32 s3, s2, 7")
        s("s_lshl_b32 s3, s3, 5")
        s("s_lshr_b32 s2, s2, 3")
        s("s_or_b32 s2, s2, s3")
    s(f"s_load_dwordx2 {sr(SC, 2)}, s[0:1], {KA['c']}")
    s(f"s_load_dwordx2 {sr(SM, 2)}, s[0:1], {KA['wmod']}")
    s(f"s_load_dwordx2 {sr(SX, 2)}, s[0:1], {KA['x']}")
    s(f"s_load_dwordx2 s[50:51], s[0:1], {KA['ws']}")
    s(f"s_load_dwordx8 s[52:59], s[0:1], {KA['k']}")
    s(f"s_load_dwordx4 s[80:83], s[0:1], {KA['wg']}")
    s(f"s_load_dwordx2 s[84:85], s[0:1], {KA['wd']}")
    s(f"s_load_dwordx2 {sr(K.SRD_D, 2)}, s[0:1], {KA['dbg']}")
    s(f"s_load_dwordx2 {sr(K.SRD_P, 2)}, s[0:1], {KA['wr']}")
    if diag:
        s("s_memrealtime s[96:97]")
    K.stamp(s, diag, 0)
    s("s_getpc_b64 s[32:33]")
    s("Lattn_pc:")
    s("s_mov_b32 s34, Lattn_end-Lattn_pc")
    s("s_mov_b32 s35, 0x20000")
    s("s_lshr_b32 s6, s2, 3")
    s("s_lshl_b32 s7, s6, 6")
    s("v_lshrrev_b32 v3, 6, v0")
    s("v_and_b32 v1, 63, v0")
    s("v_lshrrev_b32 v2, 2, v0")
    s("v_lshlrev_b32 v2, 11, v2")
    s("v_readfirstlane_b32 s3, v3")
    s(f"buffer_load_dword v{PF}, v2, s[32:35], s7 offen", 'PF')
    s("s_and_b32 s7, s2, 7")
    s("s_lshl_b32 s4, s7, 1")
    s("s_and_b32 s5, s6, 1")
    s("s_add_u32 s4, s4, s5")
    s("s_lshr_b32 s5, s2, 4")
    s("s_lshr_b32 s38, s6, 2")
    s("s_lshl_b32 s38, s38, 3")
    s("s_add_u32 s38, s38, s7")
    s("s_cmp_lt_u32 s38, 18")
    s(f"s_cselect_b32 s39, 0, {BIG}")
    s("s_lshl_b32 s38, s38, 2")
    s("s_and_b32 s36, s6, 3")
    s("s_add_u32 s38, s38, s36")
    s(f"s_mov_b32 s{SM + 2}, {SZ['wmod']}")
    s(f"s_mul_i32 s92, s6, {18 * 6912}")
    s("s_lshl_b32 s36, s7, 7")
    s("s_add_u32 s92, s92, s36")
    s("s_cmp_lt_u32 s7, 2")
    s("s_cselect_b32 s36, 53, 35")
    s("v_lshrrev_b32 v2, 2, v0")
    s("v_min_u32 v2, s36, v2")
    s("v_mul_u32_u24 v3, 57, v2")
    s("v_lshrrev_b32 v3, 10, v3")
    s(f"v_mul_i32_i24 v3, {1024 - 18 * 6912}, v3")
    s(f"v_mul_u32_u24 v2, 6912, v2")
    s(f"v_add_u32 v{vT}, v2, v3")
    s(f"s_mov_b32 s{SM + 3}, 0x20000")
    s(f"s_mov_b32 s{SC + 2}, {SZ['c']}")
    s(f"s_mov_b32 s{SC + 3}, 0x20000")
    s(f"s_mov_b32 s{SX + 2}, {SZ['x']}")
    s(f"s_mov_b32 s{SX + 3}, 0x20000")
    s(f"v_and_b32 v{vC}, 0xfe, v0")
    s(f"v_mul_u32_u24 v{vW}, 3456, v{vC}")
    s("v_and_b32 v2, 1, v0")
    s(f"v_lshl_add_u32 v{vW}, v2, 4, v{vW}")
    s("s_lshl_b32 s36, s38, 5")
    s("s_or_b32 s36, s36, s39")
    s("v_and_b32 v4, 31, v1")
    s("v_lshrrev_b32 v5, 5, v1")
    s("v_cmp_gt_u32 vcc, 24, v4")
    s(f"v_mov_b32 v6, {BIG}")
    s("s_lshl_b32 s7, s5, 4")
    s("s_add_u32 s7, s7, s4")
    s("s_lshl_b32 s7, s7, 2")
    s("s_add_u32 s7, s7, s3")
    s("v_cndmask_b32 v6, v6, 0, vcc")
    s("s_mul_i32 s49, s7, 2304")
    s("v_lshrrev_b32 v7, 2, v4")
    s("v_lshl_add_u32 v7, v7, 6, v6")
    s("v_and_b32 v2, 3, v4")
    s("v_lshl_add_u32 v7, v2, 3, v7")
    s("v_mul_u32_u24 v2, 1152, v5")
    s(f"v_add_u32 v{vX}, v7, v2")
    if OPT['tw']:
        mx = [1, 3, 3, 2, 2, 7, 0, 2, 2, 2, 0, 1, 1, 0, 7, 7]
        tab = sum(m << (4 * i) for i, m in enumerate(mx))
        s("s_lshl_b32 s40, s6, 2")
        s("s_add_u32 s40, s40, s3")
        s("s_and_b32 s41, s40, 15")
        s("s_lshr_b32 s40, s40, 4")
        s(f"s_mov_b32 s44, {tab & 0xffffffff}")
        s(f"s_mov_b32 s45, {tab >> 32}")
        s("s_lshl_b32 s42, s41, 2")
        s("s_lshr_b64 s[44:45], s[44:45], s42")
        s("s_and_b32 s44, s44, 15")
        s("s_min_u32 s40, s40, s44")
        s("s_cmp_eq_u32 s41, 5")
        s("s_cselect_b32 s42, 16, 0")
        s("s_cselect_b32 s41, 14, s41")
        s("s_cmp_eq_u32 s41, 15")
        s("s_cselect_b32 s42, 8, s42")
        s("s_cselect_b32 s41, 14, s41")
        s("s_add_u32 s40, s40, s42")
        s("s_lshl_b32 s40, s40, 21")
        s("s_lshl_b32 s41, s41, 3")
        s("s_load_dwordx2 s[46:47], s[0:1], s41")
    st(1)
    s("s_waitcnt lgkmcnt(0)")
    if OPT['tw']:
        s(f"s_load_dword s{K.sTAG}, s[46:47], s40")
    s2(1)
    s(f"s_load_dword s{K.sEP}, s[50:51], {WS_EPOCH}")
    if OPT['co'] == 0:
        s(f"buffer_load_dword v{PF + 1}, v{vT}, {sr(SM, 4)}, s92 offen", 'PF')
    for i in range(5):
        s(f"buffer_load_ushort v{CV + i}, v{vC}, {sr(SC, 4)}, 0 offen offset:{256 * i}")
    if OPT['co'] == 1:
        s(f"buffer_load_dword v{PF + 1}, v{vT}, {sr(SM, 4)}, s92 offen", 'PF')
    s2(2)

    def ldx():
        for i in range(3):
            for u in range(2):
                s(f"buffer_load_dwordx2 {vr(XR + 4 * i + 2 * u, 2)}, v{vX}, {sr(SX, 4)}, s49 offen offset:{384 * i + 32 * u}")
        srd(s, K.SRD_O, 58, SZ['wo'])
    if OPT['xl'] == 0:
        ldx()
    s2(3)
    for i in range(5):
        s(f"buffer_load_dwordx4 {vr(WV + 4 * i, 4)}, v{vW}, {sr(SM, 4)}, s36 offen")
        if i < 4:
            s(f"s_add_u32 s36, s36, {128 * 6912}")
    nA = OPT['nq1']
    srd(s, K.SRD_Q, 56, SZ['wq'])
    s(f"s_lshl_b32 s{K.sWQ}, s4, 9")
    for d, sh, rows, r0 in ((vQ, 2, 4 * nA, 0), (vQ2, 1, 4 * (9 - nA), 64 * nA)):
        s(f"s_mul_i32 s36, s5, {rows * 8192}")
        s(f"s_add_u32 s36, s36, {r0 * 8192}")
        s(f"v_lshrrev_b32 v2, {sh}, v0")
        s(f"v_min_u32 v2, {4 * rows - 1}, v2")
        s("v_lshrrev_b32 v3, 2, v2")
        s("v_and_b32 v2, 3, v2")
        s("v_lshl_add_u32 v2, v2, 7, s36")
        s(f"v_lshl_add_u32 v{d}, v3, 13, v2")
    s2(4)
    s(f"s_add_u32 s92, s49, {WS_H}")
    s("v_lshl_add_u32 v7, v5, 4, v6")
    s(f"v_lshl_add_u32 v{vP}, v4, 5, v7")
    s("v_min_u32 v4, 23, v4")
    s(f"v_lshlrev_b32 v{vM}, 4, v4")
    srd(s, SW, 50, WS_PART)
    s(f"s_mov_b32 s{K.SRD_D + 2}, 256")
    s(f"s_mov_b32 s{K.SRD_D + 3}, 0x20000")
    s("s_cmp_ge_u32 s38, 36")
    s("s_cselect_b32 s93, 1.0, 0")
    s("s_lshl_b32 s36, s38, 7")
    s(f"v_lshl_add_u32 v{vG}, v0, 3, s36")
    s(f"v_cmp_gt_u32 s[36:37], {16 if OPT['fl'] & 1 else 8}, v0")
    s(f"v_mov_b32 v2, {BIG}")
    s("v_mov_b32 v3, s39")
    s("v_cndmask_b32 v2, v2, v3, s[36:37]")
    s(f"v_or_b32 v{vG}, v{vG}, v2")
    if OPT['wr']:
        s(f"s_mov_b32 s{K.SRD_P + 2}, {SZ['wr']}")
        s(f"s_mov_b32 s{K.SRD_P + 3}, 0x20000")
        s("v_lshlrev_b32 v2, 7, v0")
        s("v_mov_b32 v3, s39")
        s(f"v_xor_b32 v3, {BIG}, v3")
        s("v_or_b32 v2, v2, v3")
        s(f"buffer_load_dword v{PF + 3}, v2, {sr(K.SRD_P, 4)}, 0 offen", 'PF')
    s("s_mul_i32 s36, s5, 3072")
    s("s_lshl_b32 s37, s5, 11")
    s(f"v_lshrrev_b32 v{vK}, 3, v0")
    s(f"v_min_u32 v{vK}, 23, v{vK}")
    s(f"v_lshl_add_u32 v{vK}, v{vK}, 7, s36")
    s(f"v_lshrrev_b32 v{vV}, 4, v0")
    s(f"v_lshl_add_u32 v{vV}, v{vV}, 7, s37")
    K.setup(s)
    if OPT['xl'] == 1:
        ldx()
    st(2)
    s2(5)
    for i in range(5):
        s(f"v_lshlrev_b32 v{CV + i}, 16, v{CV + i}")
    interleave(s, [(lambda e, i=i: (silu(e, CV + i, X + 4 * i), rnd1(e, CV + i))) for i in range(5)])
    if OPT['xl'] == 2:
        ldx()
    s2(6)
    if OPT['qt'] == 1:
        s(f"buffer_load_dword v{PF + 2}, v{vQ}, {sr(K.SRD_Q, 4)}, s{K.sWQ} offen", 'PF')
    if OPT['kt'] == -1:
        for op in touch_ops(K)[1:]:
            K.emit_op(s, op)
    for i in range(5):
        unpack(s, UT, WV + 4 * i, 4)
        if OPT['xl'] == 3 + i:
            ldx()
        c2 = (CV + i) & ~1
        o = (CV + i) & 1
        for e in range(0, 8, 2):
            if i == 0:
                s(f"v_pk_mul_f32 {vr(AC + e, 2)}, {vr(UT + e, 2)}, {vr(c2, 2)} op_sel:[0,{o}] op_sel_hi:[1,{o}]")
            else:
                s(f"v_pk_fma_f32 {vr(AC + e, 2)}, {vr(UT + e, 2)}, {vr(c2, 2)}, {vr(AC + e, 2)} op_sel:[0,{o},0] op_sel_hi:[1,{o},1]")
    s2(7)
    if OPT['qt'] == 0:
        s(f"buffer_load_dword v{PF + 2}, v{vQ}, {sr(K.SRD_Q, 4)}, s{K.sWQ} offen", 'PF')
    for e in range(4):
        s(f"v_permlane32_swap_b32 v{AC + e}, v{AC + 4 + e}")
    s(f"v_and_b32 v{vT}, 1, v1")
    for e in (0, 2):
        s(f"v_pk_add_f32 {vr(AC + e, 2)}, {vr(AC + e, 2)}, {vr(AC + 4 + e, 2)}")
    s(f"v_lshlrev_b32 v{vT}, 5, v{vT}")
    s(f"v_lshrrev_b32 v{vT + 1}, 4, v1")
    for e in range(2):
        s(f"v_permlane16_swap_b32 v{AC + e}, v{AC + 2 + e}")
    s(f"v_lshl_add_u32 v{vT}, v{vT + 1}, 3, v{vT}")
    s(f"v_pk_add_f32 {vr(AC, 2)}, {vr(AC, 2)}, {vr(AC + 2, 2)}")
    s("s_lshl_b32 s36, s3, 6")
    s(f"v_add_u32 v{vT}, s36, v{vT}")
    red(s, [AC, AC + 1], [], (2, 4, 8), False, False)
    s(f"ds_write_b64 v{vT}, {vr(AC, 2)} offset:{L_RED}")
    s(f"v_and_b32 v{vT + 1}, 7, v1")
    s(f"v_lshlrev_b32 v{vT + 1}, 3, v{vT + 1}")
    s("@lgkm 0")
    s("s_barrier")
    for w in range(4):
        s(f"ds_read_b64 {vr(AC + 2 * w, 2)}, v{vT + 1} offset:{L_RED + 64 * w}")
    s(f"s_add_u32 s{K.sTAG}, s{K.sEP}, 0x9e3779b9")
    s(f"v_mov_b32 v{UT + 1}, s{K.sTAG}")
    s(f"s_mov_b32 s37, {WS_GR}")
    s(f"v_pk_add_f32 {vr(AC, 2)}, {vr(AC, 2)}, {vr(AC + 2, 2)}")
    s(f"v_pk_add_f32 {vr(AC + 4, 2)}, {vr(AC + 4, 2)}, {vr(AC + 6, 2)}")
    s(f"v_pk_add_f32 {vr(AC, 2)}, {vr(AC, 2)}, {vr(AC + 4, 2)}")
    pack(s, UT, AC, 1)
    unpack(s, AC, UT, 1)
    s(f"v_add_f32 v{AC}, s93, v{AC}")
    s(f"v_add_f32 v{AC + 1}, s93, v{AC + 1}")
    pack(s, UT, AC, 1)
    s(f"buffer_store_dwordx2 {vr(UT, 2)}, v{vG}, {sr(SW, 4)}, s37 offen sc1")
    st(3)
    s2(8)
    if OPT['wl']:
        s("s_lshl_b32 s36, s5, 13")
        s(f"s_add_u32 s36, s36, {WS_HFLAG}")
        s("s_lshl_b32 s38, s4, 9")
        s("s_add_u32 s38, s38, s36")
        s("s_lshl_b32 s36, s3, 7")
        s("s_add_u32 s38, s38, s36")
        s("v_min_u32 v2, 1, v1")
        s("v_lshlrev_b32 v2, 31, v2")
        if OPT['wl'] == 1:
            s(f"buffer_store_dword v2, v2, {sr(SW, 4)}, s38 offen offset:4 sc1")
        else:
            s(f"buffer_load_dword v3, v2, {sr(SW, 4)}, s38 offen offset:4 sc1")
    G0, a0, a1, g0, g1 = WV, 122, 123, 124, 125
    s("s_mul_i32 s36, s3, 72")
    s(f"v_add_u32 v{a0}, s36, v1")
    s(f"v_and_b32 v{a1}, 7, v1")
    s("s_add_u32 s36, s36, 64")
    s(f"v_add_u32 v{a1}, s36, v{a1}")
    s(f"s_movk_i32 s36, {L_MOD}")
    for a_, d in ((a0, g0), (a1, g1)):
        s(f"v_and_b32 v{vT + 4}, 3, v{a_}")
        s(f"v_lshlrev_b32 v{vT + 4}, 4, v{vT + 4}")
        s(f"v_lshrrev_b32 v{a_}, 2, v{a_}")
        s(f"v_lshl_add_u32 v{d}, v{a_}, 7, v{vT + 4}")
        s(f"v_and_b32 v{vT + 5}, 1, v{a_}")
        s(f"v_lshl_add_u32 v{vT + 4}, v{vT + 5}, 3, v{vT + 4}")
        s(f"v_lshrrev_b32 v{a_}, 1, v{a_}")
        s(f"v_lshl_add_u32 v{a_}, v{a_}, 6, v{vT + 4}")
        s(f"v_add_u32 v{a_}, s36, v{a_}")

    def touch_a():
        s(f"buffer_load_dword v{PF + 2}, v{vQ}, {sr(K.SRD_Q, 4)}, s{K.sWQ} offen", 'PF')

    def poll_m():
        s(f"buffer_load_dwordx4 {vr(G0, 4)}, v{g0}, {sr(SW, 4)}, s37 offen {OPT['pm']}")
        s(f"buffer_load_dwordx4 {vr(G0 + 4, 4)}, v{g1}, {sr(SW, 4)}, s37 offen {OPT['pm']}")

    def check_m():
        for r in (1, 3, 5, 7):
            s(f"v_xor_b32 v{G0 + r}, s{K.sTAG}, v{G0 + r}")
        s(f"v_or3_b32 v{G0 + 1}, v{G0 + 1}, v{G0 + 3}, v{G0 + 5}")
        s(f"v_or_b32 v{G0 + 1}, v{G0 + 1}, v{G0 + 7}")
        s(f"v_cmp_ne_u32 vcc, 0, v{G0 + 1}")

    def early(n):
        if OPT['pp'] == n:
            poll_m()
            if OPT['qt'] == 4:
                touch_a()
    if OPT['tp'] in (0, 4):
        s("Lhead_tour:")
    unpack(s, X, XR, 12)
    early(0)
    if OPT['qt'] == 2:
        s(f"buffer_load_dword v{PF + 2}, v{vQ}, {sr(K.SRD_Q, 4)}, s{K.sWQ} offen", 'PF')
    m, v, t = vT, vT + 2, vT + 4

    def f_sum(acc, e, first):
        if e < 4:
            s(f"v_pk_add_f32 {vr(acc, 2)}, {vr(X + e, 2)}, {vr(X + e + 4, 2)}")
        elif e >= 8:
            s(f"v_pk_add_f32 {vr(acc, 2)}, {vr(acc, 2)}, {vr(X + e, 2)}")
    sum24(s, m, t, f_sum)
    red(s, [m], [t], (8, 4, 2, 1), True, False)
    s(f"v_mul_f32 v{m}, 0x3ae38e39, v{m}")
    early(1)
    for e in range(0, 24, 2):
        s(f"v_pk_add_f32 {vr(D + e, 2)}, {vr(X + e, 2)}, {vr(m, 2)} op_sel_hi:[1,0] neg_lo:[0,1] neg_hi:[0,1]")

    def f_sq(acc, e, first):
        if first:
            s(f"v_pk_mul_f32 {vr(acc, 2)}, {vr(D + e, 2)}, {vr(D + e, 2)}")
        else:
            s(f"v_pk_fma_f32 {vr(acc, 2)}, {vr(D + e, 2)}, {vr(D + e, 2)}, {vr(acc, 2)}")
    sum24(s, v, t, f_sq)
    s(f"v_cndmask_b32 v{v}, 0, v{v}, vcc")
    red(s, [v], [t], (8, 4, 2, 1), True, False)
    s(f"v_mul_f32 v{v}, 0x3ae38e39, v{v}")
    early(2)
    s(f"v_cvt_pk_bf16_f32 v{t}, v{m}, v{v}")
    s(f"v_and_b32 v{v}, 0xffff0000, v{t}")
    s(f"v_lshlrev_b32 v{m}, 16, v{t}")
    s(f"v_add_f32 v{v}, 0x3727c5ac, v{v}")
    rnd1(s, v)
    s(f"v_sqrt_f32 v{v}, v{v}")
    for e in range(0, 24, 2):
        s(f"v_pk_add_f32 {vr(D + e, 2)}, {vr(X + e, 2)}, {vr(m, 2)} op_sel_hi:[1,0] neg_lo:[0,1] neg_hi:[0,1]")
    rnd1(s, v)
    s(f"v_rcp_f32 v{v}, v{v}")
    pack(s, XR, D, 12)
    unpack(s, D, XR, 12)
    for e in range(0, 24, 2):
        s(f"v_pk_mul_f32 {vr(D + e, 2)}, {vr(D + e, 2)}, {vr(v, 2)} op_sel_hi:[1,0]")
    pack(s, XR, D, 12)
    unpack(s, D, XR, 12)
    if OPT['qt'] == 3:
        s(f"buffer_load_dword v{PF + 2}, v{vQ}, {sr(K.SRD_Q, 4)}, s{K.sWQ} offen", 'PF')
    for c in range(OPT['nq0']):
        for op in K.wq_tile(c, 0) + K.wq_tile(c, 1):
            K.emit_op(s, op)
    if OPT['tp'] == 2:
        s("Lhead_tour:")
    s(f"s_mov_b32 s38, {SPIN}")
    st(4)
    if OPT['pp'] >= 0:
        check_m()
        s("s_cbranch_vccz Lhead_gotm")
    s("Lhead_pollm:")
    s("@hide")
    poll_m()
    s("s_waitcnt vmcnt(0)")
    s("s_sub_u32 s38, s38, 1")
    s("s_cbranch_scc1 Lhead_gotm")
    check_m()
    s("s_cbranch_vccnz Lhead_pollm")
    s("@show")
    s("Lhead_gotm:")
    if OPT['qt'] == 5:
        touch_a()
    s(f"ds_write2_b32 v{a0}, v{G0}, v{G0 + 2} offset0:0 offset1:1")
    s(f"ds_write2_b32 v{a1}, v{G0 + 4}, v{G0 + 6} offset0:0 offset1:1")
    s("@lgkm 0")
    s("s_barrier")
    st(5)
    for i in range(3):
        s(f"ds_read_b128 {vr(X + 4 * i, 4)}, v{vM} offset:{L_MOD + 1152 + 384 * i}")
    for i in range(3):
        s(f"ds_read_b128 {vr(X + 12 + 4 * i, 4)}, v{vM} offset:{L_MOD + 384 * i}")
    unpack(s, C1, X, 12)
    for e in range(0, 24, 2):
        s(f"v_pk_mul_f32 {vr(D + e, 2)}, {vr(D + e, 2)}, {vr(C1 + e, 2)}")
    pack(s, XR, D, 12)
    unpack(s, SA, X + 12, 12)
    unpack(s, D, XR, 12)
    for i in range(3):
        for e in range(8 * i, 8 * i + 8, 2):
            s(f"v_pk_add_f32 {vr(D + e, 2)}, {vr(D + e, 2)}, {vr(SA + e, 2)}")
        pack(s, XR + 4 * i, D + 8 * i, 4)
        s(f"buffer_store_dwordx4 {vr(XR + 4 * i, 4)}, v{vP}, {sr(SW, 4)}, s92 offen offset:{768 * i} sc1", 'HS')
    if OPT['tp'] == 3:
        s("Lhead_tour:")
    if OPT['tp'] == 4:
        s("Lhead_tour2:")
    s("s_lshl_b32 s36, s5, 13")
    s(f"s_add_u32 s36, s36, {WS_HFLAG}")
    s("s_lshl_b32 s37, s4, 9")
    s("s_add_u32 s37, s37, s36")
    s("s_lshl_b32 s38, s3, 7")
    s("s_add_u32 s37, s37, s38")
    s("s_lshl_b32 s38, s3, 11")
    s("s_add_u32 s36, s36, s38")
    s(f"v_min_u32 v{vT}, 1, v1")
    s(f"v_lshlrev_b32 v{vT}, 31, v{vT}")
    s(f"v_and_b32 v{vT + 1}, 15, v1")
    s(f"v_lshlrev_b32 v{vT + 1}, 7, v{vT + 1}")
    s("v_cmp_gt_u32 vcc, 162, v0")
    for e in range(4):
        s(f"v_mov_b32 v{WV + e}, -1")
    s("s_mul_i32 s39, s2, 2592")
    s(f"s_add_u32 s39, s39, {WS_Y}")
    s(f"v_lshl_add_u32 v{vT + 2}, v0, 4, s39")
    s("s_lshl_b32 s39, s2, 7")
    s(f"s_add_u32 s39, s39, {WS_KEY}")
    s(f"v_mov_b32 v{vT + 3}, s39")
    s(f"v_cndmask_b32 v{vT + 2}, v{vT + 3}, v{vT + 2}, vcc")
    s("s_lshl_b32 s92, s5, 13")
    s(f"s_add_u32 s92, s92, {WS_FLAG}")
    s("s_add_u32 s92, s92, s38")
    s("s_lshl_b32 s38, s4, 7")
    s("s_add_u32 s92, s92, s38")
    s("s_getreg_b32 s38, hwreg(HW_REG_XCC_ID, 0, 4)")
    s("s_lshl_b32 s38, s38, 28")
    s(f"s_xor_b32 s38, s38, s{K.sTAG}")
    s(f"v_mov_b32 v{vT + 4}, s38")
    for i in range(5):
        s(f"v_mov_b32 v{K.MC + i}, v{CV + i}")
    s(f"v_mov_b32 v{K.MW}, v{vW}")
    if OPT['fl'] & 2:
        s("v_and_b32 v126, 31, v1")
        s("v_lshlrev_b32 v126, 2, v126")
    qops = [op for c in range(OPT['nq0'], OPT['nq2']) for op in K.wq_tile(c, 0) + K.wq_tile(c, 1)]
    for op in qops[:OPT['na']]:
        K.emit_op(s, op)
    s("@vm HS")
    s(f"buffer_store_dword v{UT + 1}, v{126 if OPT['fl'] & 2 else vT}, {sr(SW, 4)}, s37 offen sc1")
    st(6)
    if OPT['kt'] == -2:
        for op in touch_ops(K)[1:]:
            K.emit_op(s, op)
    for op in qops[OPT['na']:]:
        K.emit_op(s, op)
    if OPT['tp'] == 1:
        s("Lhead_tour:")
    s(f"s_mov_b32 s38, {SPIN}")
    st(7)
    s("Lhead_pollh:")
    s(f"buffer_load_dword v{vT + 3}, v{vT + 1}, {sr(SW, 4)}, s36 offen {OPT['ph']}")
    s("s_sub_u32 s38, s38, 1")
    s("s_cbranch_scc1 Lhead_goth")
    s("@drain")
    s(f"v_cmp_ne_u32 vcc, s{K.sTAG}, v{vT + 3}")
    s("s_cbranch_vccnz Lhead_pollh")
    s("Lhead_goth:")
    s("@drain")
    st(8)
    assert nA >= OPT['nq2']
    for c in range(1):
        for op in K.h_loads(c):
            K.emit_op(s, op)


def touch_ops(K):
    ops = [f"buffer_load_dword v{vT + 5}, v{vQ2}, {sr(K.SRD_Q, 4)}, s{K.sWQ} offen"]
    if True:
        ops += [f"buffer_load_dword v{vT + 6}, v{vK}, {sr(K.SRD_K, 4)}, 0 offen",
                f"buffer_load_dword v{vT + 7}, v{vV}, {sr(K.SRD_V, 4)}, 0 offen"]
    return [([], t, 'PF', []) for t in ops]


def arm_ops(K):
    SW = K.SRD_H
    ops = [f"buffer_store_dword v{vT + 4}, v{vT}, {sr(SW, 4)}, s92 offen offset:12 sc1",
           f"buffer_store_dwordx4 {vr(WV, 4)}, v{vT + 2}, {sr(SW, 4)}, 0 offen sc1"]
    return [([], t, 'ARM', []) for t in ops]
```

```python
from dsl import *
from sched import Stream

M16 = 'v_mfma_f32_16x16x32_bf16'
BIG = 0x80000000
SPIN = 1 << 14
SW, SP, SX, SO, SR, SY = 24, 28, 12, 16, 20, 8
sLU, sLU2 = 38, 39
sQ, sB0, sB1 = 56, 58, 49
sOCT, sIDX, sROLE, sA, sB, sC, sT0, sT1, sN = 40, 41, 42, 43, 44, 45, 46, 47, 48
sFL, sPL, sK0, sK1 = 92, 39, 92, 93
pWS = 50
vP, vXC, vX, vM, vR, vTOK, vF, vPL, vZ, POLL = 2, 3, 4, 5, 6, 7, 8, 9, 10, 11
vPD, vXC2, vX2, vM2, vR2 = 54, 55, 58, 59, 60
RAW = ((36, 40, 92), (160, 164, 168), (172, 208, 212), (64, 68, 72), (76, 80, 84), (216, 220, 88))
X1, GA, C1, SB, WR, GB = 12, 96, 120, 144, 168, 192
SELD, SELE, SELO = 240, 244, 248
A, H, PKX, PKH, PKO = 64, 216, 36, 64, 144
tM, tV, tT, tU = 48, 50, 52, 62
KEEP = 168
c0, cA, cB, kA, kT = 88, 90, 91, 92, 93
PB = {'D': 0, '0': 16, '1': 32, '2': 48, '3': 64}
HB, WF, DF = 0, 96, 168
L_WG, L_WU, L_WU2, L_WD, L_XCH, L_KEY, L_SEL = 98304, 135168, 40960, 61440, 32768, 36864, 36928
L_HB = 49152


def unpack(s, dst, src, n):
    for i in range(n):
        s(f"v_lshlrev_b32 v{dst + 2 * i}, 16, v{src + i}")
        s(f"v_and_b32 v{dst + 2 * i + 1}, 0xffff0000, v{src + i}")


def pack(s, dst, src, n):
    for i in range(n):
        s(f"v_cvt_pk_bf16_f32 v{dst + i}, v{src + 2 * i}, v{src + 2 * i + 1}")


def rnd1(s, r):
    s(f"v_cvt_pk_bf16_f32 v{r}, v{r}, v{r}")
    s(f"v_and_b32 v{r}, 0xffff0000, v{r}")


def red(s, regs, tmps, rors, x16, x32, op='v_add_f32'):
    for ro in rors:
        for r in regs:
            s(f"{op}_dpp v{r}, v{r}, v{r} row_ror:{ro} row_mask:0xf bank_mask:0xf")
    for sw, on in (('v_permlane16_swap_b32', x16), ('v_permlane32_swap_b32', x32)):
        if on:
            for r, t in zip(regs, tmps):
                s(f"v_mov_b32 v{t}, v{r}")
            for r, t in zip(regs, tmps):
                s(f"{sw} v{r}, v{t}")
            for r, t in zip(regs, tmps):
                s(f"{op} v{r}, v{r}, v{t}")


def top2_lane(s, K, n, k1, k2):
    s(f"v_max_u32 v{k1}, v{K}, v{K + 1}")
    s(f"v_min_u32 v{k2}, v{K}, v{K + 1}")
    for i in range(2, n):
        s(f"v_med3_u32 v{k2}, v{k1}, v{k2}, v{K + i}")
        s(f"v_max_u32 v{k1}, v{k1}, v{K + i}")


def top2_wave(s, k1, k2, p1, p2, t):
    def merge():
        s(f"v_min_u32 v{t}, v{k1}, v{p1}")
        s(f"v_max_u32 v{k1}, v{k1}, v{p1}")
        s(f"v_max3_u32 v{k2}, v{t}, v{k2}, v{p2}")
    for ro in (1, 2, 4, 8):
        s(f"v_mov_b32_dpp v{p1}, v{k1} row_ror:{ro} row_mask:0xf bank_mask:0xf")
        s(f"v_mov_b32_dpp v{p2}, v{k2} row_ror:{ro} row_mask:0xf bank_mask:0xf")
        merge()
    for sw in ('v_permlane16_swap_b32', 'v_permlane32_swap_b32'):
        s(f"v_mov_b32 v{p1}, v{k1}")
        s(f"v_mov_b32 v{p2}, v{k2}")
        s(f"{sw} v{k1}, v{p1}")
        s(f"{sw} v{k2}, v{p2}")
        merge()


def srd(s, *args):
    a = Asm(); a.srd(*args); s(a.text())


def fin(s):
    s.resolve()
    return [t for _, ls in s.split() for t in ls]


def stamp(s, diag, i, fine=False):
    mode = OPT['fine'] if OPT['fine'] in (4, 6) else 0
    if diag and ({False: 0, True: 4}.get(fine, fine) == mode or i in (0, 7)):
        s(f"s_memrealtime {sr(60 + 2 * i, 2)}")


def prepare():
    L = []
    s = L.append
    t0, t1, t2, t3 = 240, 241, 242, 243
    s(f"s_lshl_b32 s{sOCT}, s5, 4")
    s(f"s_add_u32 s{sOCT}, s{sOCT}, s4")
    s(f"v_and_b32 v{t0}, 31, v1")
    s(f"v_lshrrev_b32 v{t1}, 5, v1")
    s(f"v_cmp_gt_u32 vcc, 8, v{t0}")
    s(f"v_mov_b32 v{t2}, {BIG}")
    s(f"s_lshl_b32 s{sA}, s{sOCT}, 3")
    s(f"s_lshl_b32 s{sB}, s3, 1")
    s(f"s_add_u32 s{sA}, s{sA}, s{sB}")
    s(f"v_cndmask_b32 v{t2}, v{t2}, 0, vcc")
    s(f"v_add_u32 v{vTOK}, s{sA}, v{t1}")
    s(f"v_lshlrev_b32 v{vM}, 4, v{t0}")
    s(f"v_lshlrev_b32 v{t3}, 4, v{t1}")
    s(f"v_lshl_add_u32 v{vP}, v{t0}, 5, v{t3}")
    s(f"v_lshrrev_b32 v{t3}, 4, v{t0}")
    s(f"v_mul_u32_u24 v{t3}, 1536, v{t3}")
    s(f"v_add_u32 v{vP}, v{vP}, v{t3}")
    s(f"s_mul_i32 s{sB}, s{sA}, {PAIR // 2}")
    s(f"v_lshrrev_b32 v{t3}, 2, v{t0}")
    s(f"v_lshlrev_b32 v{t3}, 6, v{t3}")
    s(f"v_and_b32 v{t1}, 3, v{t0}")
    s(f"v_lshl_add_u32 v{vXC}, v{t1}, 3, v{t3}")
    s(f"v_mul_u32_u24 v{t3}, 1152, v{vTOK}")
    s(f"v_add_u32 v{vX}, v{t3}, v{vXC}")
    s(f"v_lshl_add_u32 v{vR}, v{t3}, 1, v{vM}")
    for d, r in ((vXC2, vXC), (vX2, vX), (vM2, vM), (vR2, vR)):
        s(f"v_or_b32 v{d}, v{r}, v{t2}")
    s(f"v_lshrrev_b32 v{t3}, 4, v1")
    s(f"v_lshlrev_b32 v{t3}, 8, v{t3}")
    s(f"v_and_b32 v{t1}, 7, v1")
    s(f"v_lshl_add_u32 v{t3}, v{t1}, 5, v{t3}")
    s(f"v_and_b32 v{t1}, 8, v1")
    s(f"v_lshl_add_u32 v{vPD}, v{t1}, 1, v{t3}")
    s(f"s_lshr_b32 s{sIDX}, s2, 3")
    for d, n in ((SX, 'x'), (SO, 'out')):
        s(f"s_mov_b32 s{d + 2}, {SZ[n]}")
        s(f"s_mov_b32 s{d + 3}, 0x20000")
    s((f"s_add_u32 s{SY}, s{pWS}, {WS_Y}", f"s_addc_u32 s{SY + 1}, s{pWS + 1}, 0"))
    s(f"s_mov_b32 s{SY + 2}, {Y_BYTES}")
    s(f"s_mov_b32 s{SY + 3}, 0x20000")
    s(f"s_lshl_b32 s{sPL}, s5, 13")
    s(f"s_add_u32 s{sPL}, s{sPL}, {WS_FLAG}")
    s(f"s_lshr_b32 s{sC}, s4, 2")
    s(f"s_lshl_b32 s{sC}, s{sC}, 11")
    s(f"s_add_u32 s{sPL}, s{sPL}, s{sC}")
    s(f"v_and_b32 v{vPL}, 15, v1")
    s(f"v_lshlrev_b32 v{vPL}, 7, v{vPL}")
    s(190)
    s(f"v_lshrrev_b32 v{t0}, 4, v1")
    s(f"v_and_b32 v{t0}, 2, v{t0}")
    s(f"v_bfe_u32 v{t1}, v1, 2, 2")
    s(f"v_cmp_eq_u32 s[54:55], v{t0}, v{t1}")
    s(f"v_or_b32 v{t0}, 1, v{t0}")
    s(f"v_cmp_eq_u32 s[36:37], v{t0}, v{t1}")
    s(f"v_and_b32 v{t0}, 1, v1")
    s(f"v_lshlrev_b32 v{t0}, 4, v{t0}")
    s(f"v_mov_b32 v{t1}, 0x3f80")
    s(f"v_lshlrev_b32 v{t0}, v{t0}, v{t1}")
    s(f"v_bfe_i32 v{t1}, v1, 1, 1")
    s(f"v_and_b32 v{SELD + 3}, v{t0}, v{t1}")
    s(f"v_xor_b32 v{SELD + 2}, v{t0}, v{SELD + 3}")
    for d, mk in ((SELE, 's[54:55]'), (SELO, 's[36:37]')):
        s(f"v_cndmask_b32 v{d + 2}, 0, v{SELD + 2}, {mk}")
        s(f"v_cndmask_b32 v{d + 3}, 0, v{SELD + 3}, {mk}")
    for r in (0, 1, 4, 5, 8, 9, 12, 13):
        s(f"v_mov_b32 v{SELD + r}, 0")
    s(404)
    s(f"s_and_b32 s{sROLE}, s2, 7")
    s(f"s_mov_b64 {sr(SR, 2)}, s[52:53]")
    s(f"s_mov_b32 s{SR + 2}, {SZ['wr']}")
    s(f"s_mov_b32 s{SR + 3}, 0x20000")

    def mod(dst, which):
        return [([f"s_mov_b32 s{sC}, {WS_MODP + 1152 * which}"] if i == 0 else [],
                 f"buffer_load_dwordx4 {vr(dst[i], 4)}, v{vM2 if i == 2 else vM}, {sr(SW, 4)}, s{sC} offen offset:{512 * i} sc1", 'R', []) for i in range(3)]

    def row(dst, voff, srd_):
        return [([], f"buffer_load_dwordx2 {vr(dst[i] + 2 * u, 2)}, v{voff[i == 2]}, {sr(srd_, 4)}, 0 offen offset:{512 * i + 32 * u}", 'R', [])
                for i in range(3) for u in range(2)]
    xr = row(RAW[0], (vX, vX2), SX)
    return L, xr[:4], mod(RAW[1], 2) + mod(RAW[2], 4), xr[4:] + mod(RAW[3], 3) + row(RAW[4], (vXC, vXC2), SR) + mod(RAW[5], 5)


def pointer_loads():
    return [f"s_load_dwordx2 {sr(SX, 2)}, s[0:1], {KA['x']}", f"s_load_dwordx2 {sr(SO, 2)}, s[0:1], {KA['out']}",
            f"s_load_dwordx2 s[52:53], s[0:1], {KA['wr']}"]


def flag_store():
    return [f"s_add_u32 s{sFL}, s{sFL}, {OPT['fs']}", f"buffer_store_dword v{vZ}, v{vF}, {sr(SW, 4)}, s{sFL} offen sc1"]


def flag_poll():
    return [f"s_add_u32 s{sPL}, s{sPL}, {OPT['fs']}", f"buffer_load_dword v{POLL}, v{vPL}, {sr(SW, 4)}, s{sPL} offen {OPT['pf']}"]


def flag_check(n):
    return [f"v_cmp_ne_u32 s[54:55], s95, v{POLL}", "s_cmp_lg_u64 s[54:55], 0", f"s_cbranch_scc1 Ltail_spin{n}", f"Ltail_got{n}:"]


def flag_try():
    return [f"v_cmp_ne_u32 s[54:55], s95, v{POLL}", "s_cmp_lg_u64 s[54:55], 0",
            f"s_cselect_b32 s{sB0}, {BIG}, s{sB}", f"s_cselect_b32 s{sB1}, s{sB}, {BIG}"]


def flag_spin(a, n):
    a(f"Ltail_spin{n}:")
    if n == 1 and OPT['p3']:
        a("s_waitcnt vmcnt(0)")
        a(flag_store()[1])
    a(f"s_mov_b32 s{sN}, {SPIN}")
    a(f"Ltail_spinl{n}:")
    a(flag_poll()[1])
    a("s_waitcnt vmcnt(0)")
    a(f"v_cmp_ne_u32 s[54:55], s95, v{POLL}")
    a(f"s_sub_u32 s{sN}, s{sN}, 1")
    a(f"s_cbranch_scc1 Ltail_got{n}")
    a("s_cmp_lg_u64 s[54:55], 0")
    a(f"s_cbranch_scc1 Ltail_spinl{n}")
    a(f"s_branch Ltail_got{n}")


def part_loads(groups, base=None, ro=0):
    ops = []
    for c in groups:
        for k in range(4):
            if c == 'D':
                pre, v, off = ([16384] if k == 0 else []), vPD, 1024 * k
            else:
                pre, v, off = [4096 * k], vP, 512 * int(c)
            ops.append(([f"s_add_u32 s{sQ}, s{base or sB}, {x}" for x in pre],
                        f"buffer_load_dwordx4 {ar(ro + PB[c] + 4 * k, 4)}, v{v}, {sr(SP, 4)}, s{sQ} offen offset:{off} sc1", 'PL', []))
    return ops


def post(s, diag, fwrites, emit_op):
    def acc(c, ro=0, first=True, last=True):
        i, sel = (2, SELD) if c == 'D' else (int(c) >> 1, (SELE, SELO)[int(c) & 1])
        for k in range(4):
            for u in range(2):
                d = vr(A + 8 * i + 4 * u, 4)
                s(f"{M16} {d}, {vr(sel + 2 - 2 * u, 4)}, {ar(ro + PB[c] + 4 * k, 4)}, {'0' if first and k == 0 and c in 'D02' else d}")
        if not last:
            return
        if c == 'D':
            for e in range(8):
                s(f"v_mov_b32_dpp v{A + 16 + e}, v{A + 16 + e} row_ror:8 row_mask:0x4 bank_mask:0xf")
        if c in 'D13':
            resid(i)

    def unp(dst, r):
        for i in range(3):
            unpack(s, dst + 8 * i, r[i], 4)

    def resid(i):
        for e in range(8 * i, 8 * i + 8, 2):
            s(f"v_pk_fma_f32 {vr(X1 + e, 2)}, {vr(GA + e, 2)}, {vr(A + e, 2)}, {vr(X1 + e, 2)}")
        pack(s, PKX + 4 * i, X1 + 8 * i, 4)
        unpack(s, X1 + 8 * i, PKX + 4 * i, 4)
        if i == 0:
            s(f"v_pk_add_f32 {vr(c0, 2)}, {vr(X1, 2)}, {vr(X1 + 2, 2)}")
            s(f"v_pk_add_f32 {vr(tU, 2)}, {vr(X1 + 4, 2)}, {vr(X1 + 6, 2)}")
            s(f"v_pk_add_f32 {vr(c0, 2)}, {vr(c0, 2)}, {vr(tU, 2)}")
            s(f"v_add_f32 v{c0}, v{c0}, v{c0 + 1}")
            red(s, [c0], [tU], (8, 4, 2, 1), True, False)
            s(f"v_mul_f32 v{c0}, 0x3b800000, v{c0}")
            sums(2)
            for r in range(m, m + 4):
                s(f"v_cndmask_b32 v{r}, 0, v{r}, vcc")
            sums(0)
        if i == 1:
            sums(1)

    def sums(i):
        for e in range(8 * i, 8 * i + 8, 2):
            s(f"v_pk_add_f32 {vr(H + e, 2)}, {vr(X1 + e, 2)}, {vr(c0, 2)} op_sel_hi:[1,0] neg_lo:[0,1] neg_hi:[0,1]")
        for e in range(8 * i, 8 * i + 8, 2):
            h = vr(H + e, 2)
            if e == 16:
                s(f"v_pk_add_f32 {vr(m, 2)}, {h}, {vr(H + e + 2, 2)}")
                s(f"v_pk_mul_f32 {vr(v, 2)}, {h}, {h}")
                s(f"v_pk_mul_f32 {vr(t, 2)}, {h}, {vr(WR + e, 2)}")
                continue
            if e != 18:
                s(f"v_pk_add_f32 {vr(m, 2)}, {vr(m, 2)}, {h}")
            s(f"v_pk_fma_f32 {vr(v, 2)}, {h}, {h}, {vr(v, 2)}")
            s(f"v_pk_fma_f32 {vr(t, 2)}, {h}, {vr(WR + e, 2)}, {vr(t, 2)}")

    def router_consts():
        for e in range(0, 24, 2):
            if e == 0:
                s(f"v_pk_mul_f32 {vr(tU, 2)}, {vr(SB, 2)}, {vr(WR, 2)}")
            else:
                s(f"v_pk_fma_f32 {vr(tU, 2)}, {vr(SB + e, 2)}, {vr(WR + e, 2)}, {vr(tU, 2)}")
            s(f"v_pk_mul_f32 {vr(WR + e, 2)}, {vr(WR + e, 2)}, {vr(C1 + e, 2)}")
            if e == 2:
                s(f"v_pk_add_f32 {vr(c0, 2)}, {vr(WR, 2)}, {vr(WR + 2, 2)}")
            elif e:
                s(f"v_pk_add_f32 {vr(c0, 2)}, {vr(c0, 2)}, {vr(WR + e, 2)}")
        s(f"v_add_f32 v{cB}, v{tU}, v{tU + 1}")
        s(f"v_add_f32 v{cA}, v{c0}, v{c0 + 1}")
        red(s, [cA, cB], [tU, tU + 1], (8, 4, 2, 1), True, False)
        s(f"v_lshlrev_b32 v{kA}, 2, v{vTOK}")
        s(f"v_and_b32 v{kA}, 28, v{kA}")
        s(f"v_sub_u32 v{kT}, 2047, v{vTOK}")
    m, v, t = tM, tV, tT
    stamp(s, diag, 0)
    if diag:
        s("s_memrealtime s[72:73]")
    S0, S1 = OPT['s0'], OPT['s1']
    S2 = 'D0123'[len(S0 + S1):]
    assert S0 + S1 + S2 == 'D0123'
    ops = (part_loads(S0, sB1, 80) if OPT['nb'] else []) + part_loads(S1)
    p3 = OPT['p3']
    s(flag_store()[0])
    if p3:
        for x in flag_check(1):
            s(x)
        for op in ops[:p3]:
            emit_op(s, op)
    for dst, r in zip((GA, C1, SB, WR), RAW[1:5]):
        unp(dst, r)
    s("@vm ST3")
    s(flag_store()[1])
    stamp(s, diag, 1, True)
    if not p3:
        for x in flag_check(1):
            s(x)
    for op in ops[p3:OPT['p2']]:
        emit_op(s, op)
    for x in fwrites:
        s(x)
    unp(X1, RAW[0])
    unp(GB, RAW[5])
    for x in flag_poll():
        s(x)
    for op in ops[OPT['p2']:]:
        emit_op(s, op)
    assert OPT['wdp'] == 5 and not S0
    if OPT['wf'] == 0:
        weight_frags(s)
    router_consts()
    for c in S0:
        acc(c, 0, True, not OPT['nb'])
    stamp(s, diag, 2, True)
    for x in flag_check(2):
        s(x)
    stamp(s, diag, 1)
    stamp(s, diag, 3, True)
    for op in part_loads(S2):
        emit_op(s, op)
    s(f"s_movk_i32 s{sN}, 0x7ff")
    if OPT['wf'] == 1:
        weight_frags(s)
    stamp(s, diag, 4, True)
    if OPT['nb']:
        for c in S0:
            acc(c, 80, False)
    for c in S1 + S2:
        acc(c)
    stamp(s, diag, 2)
    stamp(s, diag, 5, True)
    for r in (m, v, t):
        s(f"v_add_f32 v{r}, v{r}, v{r + 1}")
    red(s, [m, v, t], [m + 1, v + 1, t + 1], (8, 4, 2, 1), True, False)
    s(f"v_mul_f32 v{m}, 0x3ae38e39, v{m}")
    s(f"v_mul_f32 v{v}, 0x3ae38e39, v{v}")
    s(f"v_fma_f32 v{v}, -v{m}, v{m}, v{v}")
    s(f"v_add_f32 v{m}, v{m}, v{c0}")
    s(f"v_max_f32 v{v}, 0, v{v}")
    s(f"v_cvt_pk_bf16_f32 v{m}, v{m}, v{v}")
    s(f"v_and_b32 v{v}, 0xffff0000, v{m}")
    s(f"v_lshlrev_b32 v{m}, 16, v{m}")
    s(f"v_add_f32 v{v}, 0x3727c5ac, v{v}")
    s(f"v_sub_f32 v{m}, v{c0}, v{m}")
    rnd1(s, v)
    s(f"v_sqrt_f32 v{v}, v{v}")
    s(f"v_fmac_f32 v{t}, v{m}, v{cA}")
    rnd1(s, v)
    s(f"v_rcp_f32 v{v}, v{v}")
    s("s_mov_b32 exec_lo, 1")
    s("s_mov_b32 exec_hi, 1")
    s(f"v_fma_f32 v{t}, v{t}, v{v}, v{cB}")
    s(f"v_ashrrev_i32 v{tU}, 31, v{t}")
    s(f"v_or_b32 v{tU}, 0x80000000, v{tU}")
    s(f"v_xor_b32 v{t}, v{tU}, v{t}")
    s(f"v_min_u32 v{t}, 0xfffff000, v{t}")
    s(f"v_bfi_b32 v{t}, s{sN}, v{kT}, v{t}")
    s(f"ds_write_b32 v{kA}, v{t} offset:{L_KEY}")
    s("s_mov_b64 exec, -1")
    stamp(s, diag, 3)
    s(f"v_mul_f32 v{m}, v{m}, v{v}")
    s("@lgkm 0")
    s("s_barrier")
    stamp(s, diag, 4)


def h2_rows(s):
    m, v = tM, tV
    for e in range(0, 24, 2):
        s(f"v_pk_fma_f32 {vr(H + e, 2)}, {vr(H + e, 2)}, {vr(v, 2)}, {vr(m, 2)} op_sel_hi:[1,0,0]")
    for e in range(0, 24, 2):
        s(f"v_pk_fma_f32 {vr(H + e, 2)}, {vr(H + e, 2)}, {vr(C1 + e, 2)}, {vr(SB + e, 2)}")
    pack(s, PKH, H, 12)


def default_out(kept=False):
    s = Stream()
    T = GB
    X1 = 112 if kept else globals()['X1']
    if kept:
        unpack(s, X1, KEEP + 12, 12)
    unpack(s, H, KEEP if kept else PKH, 12)
    for e in range(0, 24, 2):
        s(f"v_pk_mul_f32 {vr(T + e, 2)}, {vr(T + e, 2)}, {vr(H + e, 2)}")
    pack(s, PKO, T, 12)
    unpack(s, T, PKO, 12)
    for e in range(0, 24, 2):
        s(f"v_pk_add_f32 {vr(T + e, 2)}, {vr(T + e, 2)}, {vr(X1 + e, 2)}")
    P2 = PKO + 12
    pack(s, P2, T, 12)
    s("v_and_b32 v30, 2, v1")
    s("v_cmp_ne_u32 vcc, 0, v30")
    s(f"v_mul_u32_u24 v30, 1152, v{vTOK}")
    s(f"v_add_u32 v{vX}, v30, v{vM}")
    s(f"v_add_u32 v{vX2}, v30, v{vM2}")
    for i in range(3):
        for h, qp in enumerate(("[0,2,0,2]", "[1,3,1,3]")):
            for e in range(2):
                s(f"v_mov_b32_dpp v{T + 4 * i + 2 * h + e}, v{P2 + 4 * i + 2 + e} quad_perm:{qp} row_mask:0xf bank_mask:0xf")
    for i in range(3):
        for h, qp in enumerate(("[0,2,0,2]", "[1,3,1,3]")):
            for e in range(2):
                s(f"v_cndmask_b32_dpp v{PKO + 4 * i + 2 * h + e}, v{P2 + 4 * i + e}, v{T + 4 * i + 2 * h + e}, vcc quad_perm:{qp} row_mask:0xf bank_mask:0xf")
    return fin(s)


KK, k1, k2, vKA, vKL = 96, 104, 105, 108, 109


def publish():
    s = Stream()
    s(f"v_mov_b32 v{vKL}, {L_KEY}")
    s(f"ds_read_b128 {vr(KK, 4)}, v{vKL}")
    s(f"ds_read_b128 {vr(KK + 4, 4)}, v{vKL} offset:16")
    s(f"s_lshl_b32 s{sC}, s2, 7")
    s(f"s_add_u32 s{sC}, s{sC}, {WS_KEY}")
    s("s_cmp_eq_u32 s3, 0")
    s(f"s_cselect_b32 s{sC}, s{sC}, {BIG}")
    top2_lane(s, KK, 8, k1, k2)
    s(f"buffer_store_dwordx2 {vr(k1, 2)}, v{vF}, {sr(SW, 4)}, s{sC} offen sc1")
    h2_rows(s)
    if True:
        s(f"v_and_b32 v106, 0x7ff, v{k1}")
        s(f"v_and_b32 v107, 0x7ff, v{k2}")
        s(f"v_cmp_eq_u32 vcc, v106, v{kT}")
        s(f"v_cmp_eq_u32 s[36:37], v107, v{kT}")
        s(f"v_mov_b32 v106, {BIG}")
        s("s_or_b64 vcc, vcc, s[36:37]")
        s(f"s_mov_b32 s{sC}, {WS_H2}")
        s("s_nop 0")
        s(f"v_cndmask_b32 v{vR}, v106, v{vR}, vcc")
        s(f"v_cndmask_b32 v{vR2}, v106, v{vR2}, vcc")
        for pk, o in ((PKH, 0),) if OPT['eo'] else ((PKH, 0), (PKX, 1152)):
            for i in range(3):
                s(f"buffer_store_dwordx4 {vr(pk + 4 * i, 4)}, v{vR2 if i == 2 else vR}, {sr(SW, 4)}, s{sC} offen offset:{o + 512 * i} sc1")
    return fin(s)


def route(diag):
    s = Stream()
    s(f"v_lshlrev_b32 v{vKA}, 7, v0")
    s(f"s_mov_b32 s{sC}, {WS_KEY}")
    s(f"s_lshl_b32 s36, s3, 3")
    s(f"v_mov_b32 v{vKL}, s36")
    s(f"s_mov_b32 s{sN}, {SPIN}")
    s("Ltail_pollk:")
    s(f"buffer_load_dwordx2 {vr(k1, 2)}, v{vKA}, {sr(SW, 4)}, s{sC} offen {OPT['pk']}")
    s(f"s_sub_u32 s{sN}, s{sN}, 1")
    s("s_cbranch_scc1 Ltail_gotk")
    s(f"v_max_u32 v106, v{k1}, v{k2}")
    s(f"v_cmp_eq_u32 vcc, -1, v106")
    s("s_cbranch_vccnz Ltail_pollk")
    s("Ltail_gotk:")
    s("s_waitcnt vmcnt(0)")
    if OPT['fine'] == 6:
        stamp(s, diag, 0)
    top2_wave(s, k1, k2, 106, 107, 110)
    s(f"ds_write_b64 v{vKL}, {vr(k1, 2)} offset:{L_SEL}")
    s(f"v_mov_b32 v{vKL}, {L_SEL}")
    if OPT['eo'] == 1:
        for t in x1_rows():
            s(t)
    s("@lgkm 0")
    s("s_barrier")
    s(f"ds_read_b128 {vr(KK, 4)}, v{vKL}")
    s(f"ds_read_b128 {vr(KK + 4, 4)}, v{vKL} offset:16")
    top2_lane(s, KK, 8, k1, k2)
    s(f"v_readfirstlane_b32 s{sK0}, v{k1}")
    s(f"v_readfirstlane_b32 s{sK1}, v{k2}")
    s(f"s_andn2_b32 s{sT0}, 0x7ff, s{sK0}")
    s(f"s_andn2_b32 s{sT1}, 0x7ff, s{sK1}")
    return fin(s)


def early_out():
    return [f"buffer_store_dwordx4 {vr(PKO + 4 * i, 4)}, v{vX2 if i == 2 else vX}, {sr(SO, 4)}, 0 offen offset:{512 * i} sc1" for i in range(3)]


def x1_rows():
    return [f"s_mov_b32 s36, {WS_X1}"] + [
        f"buffer_store_dwordx4 {vr(PKX + 4 * i, 4)}, v{vR2 if i == 2 else vR}, {sr(SW, 4)}, s36 offen offset:{512 * i} sc1" for i in range(3)]


def save_x1():
    return [f"v_mov_b32 v{KEEP + i}, v{PKH + i}" for i in range(12)] + [f"v_mov_b32 v{KEEP + 12 + i}, v{PKX + i}" for i in range(12)]


def store_out(s):
    s(f"v_cmp_ne_u32 vcc, s{sT0}, v{vTOK}")
    s(f"v_cmp_ne_u32 s[36:37], s{sT1}, v{vTOK}")
    s(f"v_mov_b32 v31, {BIG}")
    s("s_and_b64 vcc, vcc, s[36:37]")
    s("s_nop 1")
    s(f"v_cndmask_b32 v30, v31, v{vX2}, vcc")
    s(f"v_cndmask_b32 v31, v31, v{vX}, vcc")
    for i in range(3):
        s(f"buffer_store_dwordx4 {vr(PKO + 4 * i, 4)}, v{30 if i == 2 else 31}, {sr(SO, 4)}, 0 offen offset:{512 * i} {OPT['op']}")


def weight_frags(s):
    a, b, c, d, e = 56, 57, 61, 94, 95
    s(f"v_lshrrev_b32 v{a}, 2, v1")
    s(f"v_and_b32 v{b}, 3, v1")
    s(f"v_lshlrev_b32 v{b}, 3, v{b}")
    s("s_and_b32 s36, s3, 1")
    s("s_lshl_b32 s36, s36, 5")
    s(f"v_lshl_add_u32 v{c}, v{a}, 6, v{b}")
    s(f"v_add_u32 v{c}, s36, v{c}")
    s(f"s_mov_b32 s36, {L_WU}")
    s(f"s_mov_b32 s37, {L_WU2 - 14 * 2048}")
    s("s_cmp_lt_u32 s3, 2")
    s(f"s_cselect_b32 s36, {L_WG}, s36")
    s(f"s_cselect_b32 s37, {L_WG}, s37")
    s(f"v_add_u32 v{d}, s37, v{c}")
    s(f"v_add_u32 v{c}, s36, v{c}")
    s(f"v_mul_u32_u24 v{e}, 1152, v{a}")
    s("s_lshl_b32 s36, s3, 7")
    s(f"s_add_u32 s36, s36, {L_WD}")
    s(f"v_add3_u32 v{e}, v{e}, v{b}, s36")
    s("@lgkm 0")
    s("s_barrier")
    for k in range(18):
        for u in range(2):
            s(f"ds_read_b64_tr_b16 {ar(WF + 4 * k + 2 * u, 2)}, v{c if k < 14 else d} offset:{2048 * k + 1024 * u}")
    for z in range(3):
        for g in range(4):
            for u in range(2):
                s(f"ds_read_b64_tr_b16 {ar(DF + 16 * z + 4 * g + 2 * u, 2)}, v{e} offset:{18432 * u + 512 * z + 32 * g}")


def ffn_frags():
    s = Stream()
    s("v_lshlrev_b32 v13, 4, v1")
    s(f"v_add_u32 v13, {L_XCH}, v13")
    s(f"s_lshl_b32 s{sB}, s3, 10")
    s(f"v_add_u32 v14, s{sB}, v13")
    s("v_and_b32 v13, 0xffffff1f, v13")
    s("v_bfe_u32 v15, v1, 2, 2")
    for g in range(4):
        s(f"v_cmp_eq_u32 s[{52 + 2 * g}:{53 + 2 * g}], {g}, v15")
    s(f"s_mul_i32 s{sA}, s{sROLE}, 18")
    s(f"s_add_u32 s{sA}, s{sA}, s{sIDX}")
    s(f"s_lshl_b32 s{sA}, s{sA}, 9")
    s(f"s_mul_i32 s{sB}, s3, 73728")
    s(f"s_add_u32 s{sA}, s{sA}, s{sB}")
    s("v_lshlrev_b32 v15, 3, v1")
    s("v_and_b32 v10, 1, v1")
    s("v_and_b32 v9, 48, v1")
    if OPT['hb']:
        s("s_mul_i32 s38, s3, 3072")
        s(f"s_add_u32 s38, s38, {L_HB}")
        s("v_lshl_add_u32 v11, v10, 9, v9")
        s("v_add_u32 v11, s38, v11")
        s("v_lshrrev_b32 v10, 5, v1")
        s("v_and_b32 v9, 31, v1")
        s("v_lshlrev_b32 v9, 4, v9")
    return fin(s)


def ffn(diag):
    s = Stream()
    s(f"s_mul_i32 s{sB}, s{sT0}, 2304")
    s(f"s_mul_i32 s{sC}, s{sT1}, 2304")
    s(f"s_sub_u32 s{sC}, s{sC}, s{sB}")
    s(f"v_mad_i32_i24 v10, v10, s{sC}, v9")
    s(f"s_add_u32 s{sC}, s{sB}, {WS_H2}")
    if OPT['hb']:
        s(f"v_add_u32 v10, s{sC}, v10")
        s(f"s_mov_b32 s{sN}, {SPIN}")
        s("Ltail_pollh:")
        s("s_mov_b32 exec_lo, 0xffffff")
        s("s_mov_b32 exec_hi, 0xffffff")
        for i in range(3):
            s(f"s_add_u32 m0, s38, {640 * i}")
            s(f"buffer_load_dwordx4 v10, {sr(SW, 4)}, 0 offen offset:{384 * i} sc1 lds", 'HB')
        s("s_mov_b64 exec, -1")
    else:
        s(f"v_add_u32 v10, s{sC}, v10")
        s(f"s_mov_b32 s{sN}, {SPIN}")
        s("Ltail_pollh:")
        s("s_mov_b32 exec_lo, 0x30003")
        s("s_mov_b32 exec_hi, 0x30003")
        for k in range(18):
            s(f"buffer_load_dwordx4 {ar(HB + 4 * k, 4)}, v10, {sr(SW, 4)}, 0 offen offset:{64 * k} sc1")
        s("s_mov_b64 exec, -1")
    if OPT['hb']:
        s("@vm HB")
        for k in range(18):
            s(f"ds_read_b128 {ar(HB + 4 * k, 4)}, v11 offset:{1024 * (k // 6) + 64 * (k % 6)}")
    for k in range(18):
        d = vr(16 + 4 * (k & 1), 4)
        s(f"{M16} {d}, {ar(WF + 4 * k, 4)}, {ar(HB + 4 * k, 4)}, {'0' if k < 2 else d}")
    s(f"s_sub_u32 s{sN}, s{sN}, 1")
    s("v_pk_add_f32 v[16:17], v[16:17], v[20:21]")
    s("v_pk_add_f32 v[18:19], v[18:19], v[22:23]")
    s("s_cbranch_scc1 Ltail_goth")
    s("v_cmp_u_f32 vcc, v16, v16")
    s("s_and_b32 s36, vcc_lo, 3")
    s("s_cbranch_scc1 Ltail_pollh")
    s("Ltail_goth:")
    stamp(s, diag, 2, 6)
    stamp(s, diag, 6)
    s("ds_write_b128 v14, v[16:19]")
    s("@lgkm 0")
    s("s_barrier")
    stamp(s, diag, 3, 6)
    G, Uu, E = 16, 24, 32
    for w in range(4):
        s(f"ds_read_b128 {vr(G + 4 * w, 4)}, v13 offset:{1024 * w}")
    s(f"s_mov_b32 s36, 0xbfb8aa3b")
    s(f"s_mov_b32 s37, 0xbfb8aa3b")
    pack(s, E, G, 4)
    unpack(s, G, E, 4)
    for e in range(0, 8, 2):
        s(f"v_pk_mul_f32 {vr(E + e, 2)}, {vr(G + e, 2)}, s[36:37]")
    for e in range(8):
        s(f"v_exp_f32 v{E + e}, v{E + e}")
    pack(s, 60, Uu, 4)
    for e in range(0, 8, 2):
        s(f"v_pk_add_f32 {vr(E + e, 2)}, {vr(E + e, 2)}, 1.0 op_sel_hi:[1,0]")
    for e in range(8):
        s(f"v_rcp_f32 v{E + e}, v{E + e}")
    unpack(s, Uu, 60, 4)
    for e in range(0, 8, 2):
        s(f"v_pk_mul_f32 {vr(G + e, 2)}, {vr(G + e, 2)}, {vr(E + e, 2)}")
    pack(s, E, G, 4)
    unpack(s, G, E, 4)
    for e in range(0, 8, 2):
        s(f"v_pk_mul_f32 {vr(G + e, 2)}, {vr(G + e, 2)}, {vr(Uu + e, 2)}")
    pack(s, E, G, 4)
    for g in range(4):
        for e in range(4):
            s(f"v_cndmask_b32 v{64 + 4 * g + e}, 0, v{E + e}, s[{52 + 2 * g}:{53 + 2 * g}]")
    for z in range(3):
        for g in range(4):
            d = vr(16 + 4 * z, 4)
            s(f"{M16} {d}, {vr(64 + 4 * g, 4)}, {ar(DF + 16 * z + 4 * g, 4)}, {'0' if g == 0 else d}")
    for z in range(3):
        for e in range(2):
            s(f"v_min_u32 v{16 + 4 * z + e}, -2, v{16 + 4 * z + e}")
        s(f"buffer_store_dwordx2 {vr(16 + 4 * z, 2)}, v15, {sr(SY, 4)}, s{sA} offen sc1")
        if z < 2:
            s(f"s_add_u32 s{sA}, s{sA}, {4 * 73728}")
    stamp(s, diag, 4, 6)
    s("s_or_b32 s36, s2, s3")
    s(f"s_cselect_b32 s37, -4, {WS_EPOCH}")
    s("s_add_u32 s36, s94, 1")
    s("v_mov_b32 v106, s36")
    s(f"buffer_store_dword v106, v{vF}, {sr(SW, 4)}, s37 offen sc1")
    return fin(s)


def final(diag):
    s = Stream()
    s(f"s_mul_i32 s{sA}, s{sROLE}, 9")
    s(f"s_add_u32 s{sA}, s{sA}, s{sIDX}")
    s("v_bfe_u32 v8, v1, 2, 1")
    s("v_cmp_eq_u32 vcc, 1, v8")
    s(f"v_mov_b32 v9, s{sT0}")
    s(f"v_mov_b32 v10, s{sT1}")
    s("v_and_b32 v11, 3, v1")
    s("v_cndmask_b32 v9, v9, v10, vcc")
    s(f"s_lshr_b32 s{sB}, s{sA}, 2")
    s(f"s_lshl_b32 s{sB}, s{sB}, 6")
    s(f"s_and_b32 s{sC}, s{sA}, 1")
    s(f"s_lshl_b32 s{sC}, s{sC}, 5")
    s(f"s_add_u32 s{sB}, s{sB}, s{sC}")
    s(f"s_and_b32 s{sC}, s{sA}, 2")
    s(f"s_lshl_b32 s{sC}, s{sC}, 2")
    s(f"s_add_u32 s{sB}, s{sB}, s{sC}")
    s("v_lshrrev_b32 v12, 1, v11")
    s(f"v_lshl_add_u32 v12, v12, 4, s{sB}")
    s("v_and_b32 v13, 1, v11")
    s("v_lshl_add_u32 v12, v13, 2, v12")
    s("v_mul_u32_u24 v13, 1152, v9")
    s("v_lshl_add_u32 v14, v13, 1, v12")
    s(f"v_add_u32 v15, {WS_H2}, v14")
    s(f"s_mov_b32 s{sC}, {WS_MODP + 5 * 1152}")
    s(f"buffer_load_dword v18, v12, {sr(SW, 4)}, s{sC} offen sc1")
    s(f"v_mov_b32 v19, s{sK0}")
    s(f"v_mov_b32 v10, s{sK1}")
    s("v_cndmask_b32 v19, v19, v10, vcc")
    s("v_and_b32 v19, 0xfffff800, v19")
    s("v_or_b32 v19, 0x400, v19")
    s("v_ashrrev_i32 v10, 31, v19")
    s("v_not_b32 v10, v10")
    s("v_or_b32 v10, 0x80000000, v10")
    s("v_xor_b32 v19, v19, v10")
    s(f"s_lshl_b32 s{sC}, s{sA}, 4")
    s(f"v_lshl_add_u32 v13, v11, 2, v13")
    s(f"v_add_u32 v13, s{sC}, v13")
    s("v_lshrrev_b32 v14, 2, v1")
    s("v_lshlrev_b32 v14, 9, v14")
    s("v_lshl_add_u32 v14, v11, 4, v14")
    s(f"s_lshr_b32 s{sB}, s{sA}, 3")
    s(f"s_mul_i32 s{sB}, s{sB}, 73728")
    s(f"s_and_b32 s{sC}, s{sA}, 7")
    s(f"s_lshl_b32 s{sC}, s{sC}, 6")
    s(f"s_add_u32 s{sB}, s{sB}, s{sC}")
    s("v_cmp_eq_u32 s[38:39], 1, v8")
    rnd1(s, 19)
    s("v_mul_f32 v19, 0xbfb8aa3b, v19")
    s("v_exp_f32 v19, v19")
    unpack(s, 24, 18, 1)
    s("v_add_f32 v19, 1.0, v19")
    s("v_rcp_f32 v19, v19")
    s(f"s_mov_b32 s{sN}, {SPIN}")
    rnd1(s, 19)
    Y = 64
    if OPT['ys']:
        s(f"s_add_u32 s{sC}, s{sB}, {8192 * 8}")
        if OPT['ys'] == 2:
            s("s_mov_b64 exec, 0xffff")
        s("Ltail_polly0:")
        s(f"buffer_load_dwordx4 {vr(Y, 4)}, v14, {sr(SY, 4)}, s{sC} offen {OPT['py']}")
        s(f"s_sub_u32 s{sN}, s{sN}, 1")
        s("s_cbranch_scc1 Ltail_polly1")
        s(f"v_cmp_eq_u32 vcc, -1, v{Y}")
        s("s_cbranch_vccnz Ltail_polly0")
        s("Ltail_polly1:")
        s("s_mov_b64 exec, -1")
        s(f"s_mov_b32 s{sN}, {SPIN}")
        s("@drain")
    stamp(s, diag, 5, 6)
    s("Ltail_polly:")
    for i in range(9):
        s(f"s_add_u32 s{sC}, s{sB}, {8192 * i}")
        s(f"buffer_load_dwordx4 {vr(Y + 4 * i, 4)}, v14, {sr(SY, 4)}, s{sC} offen {OPT['py']}")
    s(f"s_mov_b32 s{sC}, {WS_X1 - WS_H2}")
    s(f"buffer_load_dword v16, v15, {sr(SW, 4)}, s{sC} offen sc1")
    s(f"buffer_load_dword v17, v15, {sr(SW, 4)}, 0 offen sc1")
    s(f"s_sub_u32 s{sN}, s{sN}, 1")
    s("s_cbranch_scc1 Ltail_goty")
    s(f"v_max3_u32 v26, v{Y}, v{Y + 1}, v{Y + 2}")
    for i in range(3, 35, 2):
        s(f"v_max3_u32 v26, v26, v{Y + i}, v{Y + i + 1}")
    s(f"v_max_u32 v26, v26, v{Y + 35}")
    s(f"v_max3_u32 v26, v26, v16, v17")
    s("v_cmp_eq_u32 vcc, -1, v26")
    s("s_cbranch_vccnz Ltail_polly")
    s("Ltail_goty:")
    s("@drain")
    stamp(s, diag, 6, 6)
    stamp(s, diag, 6)
    unpack(s, 20, 16, 2)
    for i in range(1, 9):
        for e in (0, 2):
            s(f"v_pk_add_f32 {vr(Y + e, 2)}, {vr(Y + e, 2)}, {vr(Y + 4 * i + e, 2)}")
    red(s, [Y, Y + 1, Y + 2, Y + 3], [Y + 4, Y + 5, Y + 6, Y + 7], (4, 8), True, True)
    s(f"v_cndmask_b32 v26, v{Y}, v{Y + 1}, s[38:39]")
    s(f"v_cndmask_b32 v27, v{Y + 2}, v{Y + 3}, s[38:39]")

    def r2():
        pack(s, 28, 26, 1); unpack(s, 26, 28, 1)
    r2()
    s("v_mul_f32 v26, v26, v19")
    s("v_mul_f32 v27, v27, v19")
    r2()
    s("v_pk_add_f32 v[26:27], v[26:27], v[22:23]")
    r2()
    s("v_pk_mul_f32 v[26:27], v[26:27], v[24:25]")
    r2()
    s("v_pk_add_f32 v[26:27], v[26:27], v[20:21]")
    pack(s, 28, 26, 1)
    s("s_mov_b64 exec, 0xff")
    s(f"buffer_store_dword v28, v13, {sr(SO, 4)}, 0 offen {OPT['fp']}")
    return fin(s)


def body(a, diag, fdma, emit_op):
    for t in publish():
        a(t)
    d = Stream()
    for op in fdma:
        emit_op(d, op)
    d = fin(d)
    w = OPT['wdp']
    if OPT['eo'] == 2:
        a(f"s_cmp_ge_u32 s{sIDX}, 18")
        a("s_cbranch_scc1 Ltail_idle")
        for t in x1_rows() + (d if w == 2 else []) + (default_out() if OPT['so'] == 0 else save_x1()) + ffn_frags() + route(diag):
            a(t)
    else:
        for t in default_out() + early_out():
            a(t)
        a(f"s_cmp_ge_u32 s{sIDX}, 18")
        a("s_cbranch_scc1 Ltail_idle")
        for t in d + ffn_frags() + route(diag):
            a(t)
    stamp(a, diag, 5)
    stamp(a, diag, 1, 6)
    for t in ffn(diag):
        a(t)
    if OPT['eo'] == 2:
        s = Stream(); store_out(s)
        for t in (default_out(True) if OPT['so'] else []) + fin(s):
            a(t)
    a(f"s_cmp_lt_u32 s{sIDX}, 9")
    a("s_cselect_b32 s36, s3, 0")
    a(f"s_cmp_lg_u32 s36, {OPT['fw']}")
    a("s_cbranch_scc1 Ltail_done")
    for t in final(diag):
        a(t)
    a("s_branch Ltail_done")
    a("Ltail_idle:")
    if OPT['eo'] == 2:
        for t in default_out() + early_out():
            a(t)
    a("s_waitcnt vmcnt(0)")
    for t in x1_rows():
        a(t)
    a("Ltail_done:")


def dump_stamps(a, n, region):
    a("s_waitcnt vmcnt(0)")
    stamp(a, True, n - 1)
    a("s_waitcnt lgkmcnt(0)")
    a("s_mov_b64 exec, -1")
    a.srd(SX, pWS, 1024 * 64, region)
    a("s_lshl_b32 s36, s2, 2")
    a("s_add_u32 s36, s36, s3")
    a("s_lshl_b32 s36, s36, 6")
    a("v_mov_b32 v2, 0")
    for i in range(n):
        a(f"v_mov_b32 v3, s{60 + 2 * i}")
        a(f"buffer_store_dword v3, v2, {sr(SX, 4)}, s36 offen offset:{4 * i}")
```

```python
import re, sys, subprocess, tempfile
from dsl import *
from sched import Stream
import tail, head

M16 = 'v_mfma_f32_16x16x32_bf16'
KAD = 8
TA = (12, 20, 28)
DK, DV, DQ, DO = 36, 40, 42, 46
IDX, HV, ONES, STV = 50, 51, 52, 56
RL = 58
Q = 64
ACC = 128
P = 128
NEGM = 192
S = 208
TMP = 216
OBT = (128, 144, 192, 176)
OACC = 192
PK = 224
O = 0
HF = 0
AF = (208, 160)
VF = 160
L = 192
KF = 208
sK, sV, sW, sCNT, sWQ, sWO, sH, sPART, sPASS, sT = 40, 41, 42, 43, 44, 45, 46, 47, 48, 49
SRD_K, SRD_V, SRD_Q, SRD_O, SRD_H, SRD_P, SRD_C = 8, 12, 16, 20, 24, 28, 32
SRD_T, sTCH, sTCH2, TV, TV2 = (32, 80, 84), 39, 38, 57, 62
sFG, sFD, sF = 58, 59, 57
FV, FV2, FW = 254, 255, 51
sWOa, sWOb, sPD, sPR, sOX, sXF, sSAME = 7, 46, 56, 93, 55, 54, 53
sTO, sFM = 52, 6
sAR, AD, AV = 53, 248, 232
SRD_M, sMW = 16, 44
MC, MW, MR, MU, MA = 2, 7, 240, 244, 224
XV, XID = 252, 253
OAC, BUF = 64, 64
sH1 = 43
SRD_D, sEP, sTAG = 88, 94, 95
CNT = 63
QSCALE = 0x3e0293ee
THR = 0x63800000
MOFF = 0xc1c00000
FLAG_LDS = 131072


def tr(dst, base, db, off):
    w = base >> 16
    return f"ds_read_b64_tr_b16 {ar(dst, 2)}, v{TA[w] + db} offset:{(base & 0xffff) + off}"


def dma(voff, srd, soff, p):
    o = f" offset:{1024 * p}" if p else ""
    if srd in (SRD_K, SRD_V) and OPT['kv']:
        o += ' ' + OPT['kv']
    return f"buffer_load_dwordx4 v{voff}, {sr(srd, 4)}, s{soff} offen{o} lds"


def m0(base):
    return f"s_add_u32 m0, s{sW}, {base}"


def tile_ops(kind, base, tag, soff_expr=None):
    ops = []
    for p in range(4):
        pre = []
        if p == 0:
            if soff_expr:
                pre.append(soff_expr)
            pre.append(m0(base))
        if kind == 'K':
            t = dma(DK + p, SRD_K, sK, p)
        elif kind == 'V':
            t = dma(DV + (p & 1), SRD_V, sV, p)
        elif kind == 'Q':
            t = dma(DQ + p, SRD_Q, sT, p)
        else:
            t = dma(DO + p, SRD_O, sT, p)
        post = []
        if p == 3 and kind == 'K':
            post.append(f"s_add_u32 s{sK}, s{sK}, 16384")
        if p == 3 and kind == 'V':
            post.append(f"s_add_u32 s{sV}, s{sV}, 16384")
        ops.append((pre, t, tag, post))
    return ops


def k_tile(k):
    return tile_ops('K', (k % 4) * 16384, f'K{k}')


def v_tile(k):
    return tile_ops('V', 65536 + (k % 4) * 16384, f'V{k}')


def qreg(c):
    return ((c + 1) % 5) * 32768


def qpos(p):
    if p < 5 or not OPT['ab']:
        return [(0, p), (1, p)]
    return [((p - 5) >> 1, 5 + 2 * ((p - 5) & 1) + t) for t in range(2)]


def wq_tile(p, tau):
    hh, c = qpos(p)[tau]
    return tile_ops('Q', qreg(p) + 16384 * tau, f'WQ{p}', f"s_add_u32 s{sT}, s{sWQ}, {c * 64 * 8192 + 256 * hh}")


def oreg(c):
    return (0, 2, 1, 3)[c % 4] * 32768


class _Pos:
    def __getitem__(self, p):
        if OPT['o3']:
            return [(0, None), (0, 0), (0, 1), (0, 2), (1, 0), (1, 1), (1, 2), (0, 3), (1, 3)][p]
        return [(0, None), (0, 0), (0, 1), (1, 0), (1, 1), (0, 2), (1, 2), (0, 3), (1, 3)][p]


POS = _Pos()


def wo_tile(p, tau):
    src, c = POS[p]
    base, col = (sWO, 1024) if c is None else ((sWOa, sWOb)[src], 256 * c)
    return tile_ops('O', oreg(p) + 16384 * tau, f'WO{p}', f"s_add_u32 s{sT}, s{base}, {64 * tau * 1152 + col}")


def h_loads(c):
    ops = []
    for tt in range(2):
        for ks in range(2):
            ops.append(([], f"buffer_load_dwordx4 {ar(HF + 16 * c + 8 * ks + 4 * tt, 4)}, v{HV}, {sr(SRD_H, 4)}, s{sH1 if tt else sH} offen offset:{128 * (2 * c + ks)} sc1", f'H{c}', []))
    return ops


def emit_op(s, op):
    pre, t, tag, post = op
    for x in pre:
        s(x)
    s(t, tag)
    for x in post:
        s(x)


class Gaps:
    def __init__(self):
        self.m = []

    def add(self, text):
        self.m.append(dict(m=text, salu=[], ds=[], vm=[], valu=[], tail=[]))
        return len(self.m) - 1

    def put(self, i, kind, text, tag=None):
        self.m[i][kind].append((text, tag))

    def put_op(self, i, op):
        pre, t, tag, post = op
        for j, x in enumerate(pre):
            self.put(i - len(pre) + j, 'salu', x)
        self.put(i, 'vm', t, tag)
        for x in post:
            self.put(min(i + 1, len(self.m) - 1), 'salu' if i + 1 < len(self.m) else 'tail', x)

    def emit(self, s):
        for i, g in enumerate(self.m[:-1]):
            if OPT['clr'] and g['m'] and g['vm'] and g['ds']:
                self.m[i + 1]['ds'] = g['ds'] + self.m[i + 1]['ds']
                g['ds'] = []
        for g in self.m:
            if g['m']:
                s(g['m'])
            for kind in ('salu', 'ds', 'vm', 'valu', 'tail'):
                for text, tag in g[kind]:
                    s(text, tag)


def stamp(s, diag, i, fine=False):
    if diag and ((OPT['fine'] != 0) == fine or i in (0, 9)):
        s(f"s_memtime {sr(60 + 2 * i, 2)}")


def setup(s):
    s(f"s_lshl_b32 s{sW}, s3, 12")
    s("v_lshrrev_b32 v2, 4, v1")
    s("v_and_b32 v3, 15, v1")
    s("v_lshrrev_b32 v5, 1, v3")
    s("v_mul_u32_u24 v5, 2304, v5")
    s("v_lshl_add_u32 v5, v2, 5, v5")
    s("v_and_b32 v6, 1, v3")
    s(f"v_lshl_add_u32 v{HV}, v6, 4, v5")
    s("s_lshl_b32 s6, s5, 2")
    s("s_add_u32 s6, s6, s3")
    s(f"s_mul_i32 s{sH}, s6, 36864")
    s(f"s_add_u32 s{sH}, s{sH}, {WS_H}")
    s(f"s_add_u32 s{sH1}, s{sH}, 18432")
    s(f"s_mul_i32 s{sWO}, s4, {256 * 1152}")
    s("s_lshl_b32 s7, s3, 4")
    s("v_add_u32 v4, s7, v2")
    s("v_lshlrev_b32 v5, 1, v2")
    s("v_xor_b32 v5, v5, v3")
    s("v_xor_b32 v6, 8, v5")
    s("v_lshlrev_b32 v7, 13, v4")
    s(f"v_lshl_add_u32 v{DQ}, v5, 4, v7")
    s(f"v_lshl_add_u32 v{DQ + 1}, v6, 4, v7")
    s(f"v_add_u32 v{DQ + 2}, {2 * (32768 - 1024)}, v{DQ}")
    s(f"v_add_u32 v{DQ + 3}, {3 * (32768 - 1024)}, v{DQ + 1}")
    s(f"v_add_u32 v{DQ + 1}, {32768 - 1024}, v{DQ + 1}")
    s("s_lshl_b32 s7, s4, 19")
    s(f"s_add_u32 s{SRD_K}, s52, s7")
    s(f"s_addc_u32 s{SRD_K + 1}, s53, 0")
    s(f"s_mov_b32 s{SRD_K + 2}, 524288")
    s(f"s_mov_b32 s{SRD_K + 3}, 0x20000")
    s(f"s_add_u32 s{SRD_V}, s54, s7")
    s(f"s_addc_u32 s{SRD_V + 1}, s55, 0")
    s(f"s_mov_b32 s{SRD_V + 2}, 524288")
    s(f"s_mov_b32 s{SRD_V + 3}, 0x20000")
    a = Asm()
    a.srd(SRD_P, 50, PART_BYTES, WS_PART)
    s(a.text())
    s("v_lshlrev_b32 v7, 8, v4")
    s(f"v_lshl_add_u32 v{DV}, v5, 4, v7")
    s(f"v_lshl_add_u32 v{DV + 1}, v6, 4, v7")
    s(f"v_xor_b32 v{TMP + 8}, v3, v2")
    s(f"v_lshl_add_u32 v{DK}, v{TMP + 8}, 4, v7")
    for p in range(1, 4):
        s(f"v_xor_b32 v{DK + p}, {64 * p}, v{DK}")
    for e, ch in ((0, 5), (1, 6)):
        s(f"v_lshrrev_b32 v7, 3, v{ch}")
        s("v_lshl_add_u32 v7, v7, 7, v4")
        s("v_mul_u32_u24 v7, 1152, v7")
        s(f"v_and_b32 v{TMP + 9}, 7, v{ch}")
        s(f"v_lshl_add_u32 v{DO + e}, v{TMP + 9}, 4, v7")
    s(f"v_add_u32 v{DO + 2}, {2 * (4608 - 1024)}, v{DO}")
    s(f"v_add_u32 v{DO + 3}, {3 * (4608 - 1024)}, v{DO + 1}")
    s(f"v_add_u32 v{DO + 1}, {4608 - 1024}, v{DO + 1}")
    s("v_lshlrev_b32 v7, 8, v3")
    s(f"v_lshl_add_u32 v{KAD}, v{TMP + 8}, 4, v7")
    for k in range(1, 4):
        s(f"v_xor_b32 v{KAD + k}, {64 * k}, v{KAD}")
    s("v_lshrrev_b32 v5, 2, v1")
    s("v_and_b32 v6, 7, v5")
    s("v_lshlrev_b32 v6, 5, v6")
    s("v_lshl_add_u32 v6, v5, 8, v6")
    s("v_and_b32 v7, 3, v1")
    s(f"v_lshl_add_u32 v{TA[0]}, v7, 3, v6")
    for db in range(1, 8):
        s(f"v_xor_b32 v{TA[0] + db}, {32 * db}, v{TA[0]}")
    for w in (1, 2):
        for db in range(8):
            s(f"v_add_u32 v{TA[w] + db}, {65536 * w}, v{TA[0] + db}")
    if OPT['l2']:
        s("v_cmp_gt_u32 s[36:37], 2, v3")
        s("v_mov_b32 v5, 0x3f803f80")
        s("s_nop 0")
        for i in range(4):
            s(f"v_cndmask_b32 v{ONES + i}, 0, v5, s[36:37]")
    else:
        for i in range(4):
            s(f"v_mov_b32 v{ONES + i}, 0x3f803f80")
    s("v_and_b32 v5, 1, v1")
    s("v_mul_u32_u24 v5, 0xaaaa, v5")
    s("v_add_u32 v5, 0x4444, v5")
    s(f"v_lshl_add_u32 v{IDX}, v5, 16, v5")
    s("v_lshrrev_b32 v5, 1, v3")
    s(f"v_mul_u32_u24 v5, {PAIR}, v5")
    s("v_lshl_add_u32 v5, v2, 5, v5")
    s("v_and_b32 v6, 1, v3")
    s(f"v_lshl_add_u32 v{STV}, v6, 4, v5")
    s(f"s_mul_i32 s{sPART}, s6, {16 * PAIR}")
    a = Asm()
    a.srd(SRD_T[0], 82, SZ['wu'])
    a.srd(SRD_T[1], 80, SZ['wg'])
    a.srd(SRD_T[2], 84, SZ['wd'])
    s(a.text())
    s("s_lshr_b32 s7, s2, 3")
    s("s_mul_i32 s7, s7, 18")
    s("s_add_u32 s7, s7, s3")
    s("s_and_b32 s36, s2, 7")
    s("s_mul_i32 s37, s36, 576")
    s("s_add_u32 s37, s37, s7")
    s("s_mul_i32 s37, s37, 1152")
    s("s_mul_i32 s7, s7, 9216")
    s("s_mul_i32 s36, s36, 1152")
    s("s_add_u32 s7, s7, s36")
    s("v_min_u32 v5, 17, v1")
    s(f"v_lshl_add_u32 v{TV}, v5, 6, s7")
    s(f"v_lshl_add_u32 v{TV2}, v5, 6, s37")
    s(f"s_mov_b32 s{sK}, 0")
    s(f"s_mov_b32 s{sV}, 0")
    s(f"s_mov_b32 s{sPASS}, 0")


def qproj(s, diag):
    def rd(n, r):
        c, d = divmod(n, 16)
        ks, u = r >> 1, r & 1
        return tr(VF + 8 * (n % 4) + 4 * ks + 2 * u, qreg(c) + 16384 * (d >> 3), d & 7, 8192 * ks + 4096 * u)
    if OPT['fine'] == 5:
        s("s_memtime s[60:61]")
    s("@vm WQ0")
    s("s_barrier")
    for n in range(3):
        for r in range(4):
            s(rd(n, r))
    for op in h_loads(1):
        emit_op(s, op)
    G = Gaps()
    for n in range(144):
        hh, c = qpos(n >> 4)[(n >> 3) & 1]
        d = 8 * hh + (n & 7)
        order = [(0, 0), (0, 1), (1, 0), (1, 1)]
        if OPT['sn'] & 2:
            order = [(n & 1, 0), (n & 1, 1), (~n & 1, 1), (~n & 1, 0)]
        for x, (tt, ks) in enumerate(order):
            acc = vr(ACC + 8 * d + 4 * tt, 4)
            cin = '0' if (c == 0 and x % 2 == 0) else acc
            i = G.add(f"{M16} {acc}, {ar(VF + 8 * (n % 4) + 4 * ks, 4)}, {ar(HF + 16 * c + 8 * ks + 4 * tt, 4)}, {cin}")
            if n + 3 < 144:
                G.put(i, 'ds', rd(n + 3, x))
    last = -9
    hq = [op for c in range(3, 9) for op in h_loads(c)]
    for c in range(9):
        b = 64 * c
        if c < 8:
            G.put(b + 51, 'tail', f"@vm WQ{c + 1}")
            G.put(b + 51, 'tail', "s_barrier")
        start = -9
        me = sys.modules[__name__]
        tch = head.touch_ops(me)
        if c == 0:
            start = 3
            ops = (wq_tile(2, 0) + wq_tile(2, 1) if OPT['nq2'] == 2 else []) + h_loads(2) + (tch if OPT['kt'] == 0 else tch[:1])
        elif c <= 6:
            start = max(-9, OPT['qs'] - OPT['qd'] * (c - 1))
            ops = wq_tile(c + 2, 0) + wq_tile(c + 2, 1) if c + 2 >= OPT['nq2'] else []
            n_h = int(OPT['hd'][c - 1]) if OPT['ab'] else 4
            ops += [hq.pop(0) for _ in range(n_h)]
            if c == OPT['kt']:
                ops += tch[1:]
            if c == 6:
                ops += head.arm_ops(me)
        elif c == 7:
            ops = k_tile(0) + k_tile(1)
        else:
            ops = k_tile(2) + v_tile(0) + v_tile(1)
        step = 4 if len(ops) < 16 else 3
        for j, op in enumerate(ops):
            assert b + start + step * j > last + 2
            G.put_op(b + start + step * j, op)
        last = b + start + step * (len(ops) - 1)
    assert not hq
    rest = []
    if OPT['ab']:
        G.put(64 * 6 + 30, 'salu', f"s_mov_b32 s36, {QSCALE}")
        g = 0
        for sx in range(4):
            g = max(g, 64 * 6 + 32 + 8 * sx + 11)
            for x in q_pack(0, sx, False):
                while g < 576 and (G.m[g]['vm'] or G.m[g - 1]['vm'] or len(G.m[g]['valu']) + len(G.m[g]['ds']) + (568 <= g <= 572) >= 2):
                    g += 1
                if g < 576:
                    G.put(g, 'valu', x)
                else:
                    rest.append(x)
    if OPT['fine'] == 5:
        for c in range(8):
            G.put(64 * c + 1, 'tail', f"s_memtime {sr(62 + 2 * c, 2)}")
        G.put(575, 'tail', "s_memtime s[78:79]")
    G.put(64 * 8 + 55, 'tail', "@vm K0")
    G.put(64 * 8 + 55, 'tail', "s_barrier")
    for k in range(4):
        G.put(64 * 8 + 56 + k, 'ds', kread(0, 0, k))
    G.put(64 * 8 + 60, 'ds', kread(0, 1, 0))
    G.put(64 * 8 + 62, 'salu', f"s_load_dwordx2 {sr(SRD_M, 2)}, s[0:1], {KA['wmod']}")
    G.emit(s)
    for x in rest:
        s(x)


def kread(k, kb, sidx):
    return f"ds_read_b128 {ar(KF + 16 * (kb & 1) + 4 * sidx, 4)}, v{KAD + sidx} offset:{(k % 4) * 16384 + 4096 * kb}"


def q_pack(hh, sx, pk):
    o = []
    for tt in range(2):
        for y in range(2):
            a0 = ACC + 8 * (8 * hh + 2 * sx + y) + 4 * tt
            if pk:
                o += [f"v_pk_mul_f32 {vr(a0 + 2 * e, 2)}, {vr(a0 + 2 * e, 2)}, s[36:37]" for e in range(2)]
            else:
                o += [f"v_mul_f32 v{a0 + e}, s36, v{a0 + e}" for e in range(4)]
    if pk:
        o.append(None)
    for tt in range(2):
        q = Q + 16 * (2 * hh + tt) + 4 * sx
        for y in range(2):
            a0 = ACC + 8 * (8 * hh + 2 * sx + y) + 4 * tt
            o += [f"v_cvt_pk_bf16_f32 v{q + 2 * y + e}, v{a0 + 2 * e}, v{a0 + 2 * e + 1}" for e in range(2)]
    if pk:
        o.append(None)
    for sw in ('v_permlane32_swap_b32', 'v_permlane16_swap_b32'):
        for tt in range(2):
            q = Q + 16 * (2 * hh + tt) + 4 * sx
            o += [f"{sw} v{q + e}, v{q + 2 + e}" for e in range(2)]
    return o


def qfinish(s):
    s(f"s_mov_b32 s36, {QSCALE}")
    s(f"s_mov_b32 s37, {QSCALE}")
    for e in range(4):
        s(f"v_mov_b32 v{RL + e}, 0")
    z = [f"v_mfma_f32_32x32x16_bf16 {ar(r, 16)}, {vr(RL, 4)}, {vr(RL, 4)}, 0" for r in list(range(O, O + 128, 16)) + [L]]
    for hh in range(1 if OPT['ab'] else 0, 2):
        for sx in range(4):
            for x in q_pack(hh, sx, True):
                if x is not None:
                    s(x)
                elif z:
                    s(z.pop(0))
    return z


def cross_max_to_negm(s, M, off='0'):
    for sw in ('v_permlane16_swap_b32', 'v_permlane32_swap_b32'):
        for qb in range(4):
            s(f"v_mov_b32 v{M + 4 + qb}, v{M + qb}")
        for qb in range(4):
            s(f"{sw} v{M + qb}, v{M + 4 + qb}")
        for qb in range(4):
            s(f"v_max_f32 v{M + qb}, v{M + qb}, v{M + 4 + qb}")
    for qb in range(4):
        for i in range(4):
            s(f"v_sub_f32 v{NEGM + 4 * qb + i}, {off}, v{M + qb}")


def prepass(s, z):
    s("@lgkm 0")
    for qb in range(4):
        for sx in range(4):
            d = vr(TMP + 4 * qb, 4)
            s(f"{M16} {d}, {ar(KF + 4 * sx, 4)}, {vr(Q + 16 * qb + 4 * sx, 4)}, {'0' if sx == 0 else d}")
    for x in z:
        s(x)
    M = TMP + 16
    for qb in range(4):
        t = TMP + 4 * qb
        s(f"v_max3_f32 v{M + qb}, v{t}, v{t + 1}, v{t + 2}")
        s(f"v_max_f32 v{M + qb}, v{M + qb}, v{t + 3}")
    cross_max_to_negm(s, M, MOFF)


def interval_ops(k):
    a = k_tile(k + 2) if k + 2 <= 31 else None
    b = v_tile(k + 1) if k + 1 <= 31 else None
    if k == 30:
        a = wo_tile(0, 0)
    if k == 31:
        a, b = wo_tile(0, 1), wo_tile(1, 0)
    if k == 32:
        a, b = wo_tile(1, 1), wo_tile(2, 0)
    return a + b


def rowsum(k, q2):
    return f"v_smfmac_f32_16x16x64_bf16 {ar(L + 4 * q2, 4)}, {vr(ONES, 4)}, {vr(P + 32 * ((k - 1) & 1) + 8 * q2, 8)}, v{IDX}"


def ob(tt, ks):
    return OBT[ks & 3] + 4 * (2 * (ks >> 2) + tt)


def norm_tile(n):
    db, qb = divmod(n, 4)
    hh, tt, t, y = qb >> 1, qb & 1, db >> 1, db & 1
    tmp = S + 4 * (n & 1)
    ops = [(f"v_accvgpr_read_b32 v{tmp + e}, a{O + 4 * n + e}", None) for e in range(4)]
    ops += [(f"v_pk_mul_f32 {vr(tmp + 2 * e, 2)}, {vr(tmp + 2 * e, 2)}, {vr((RL + qb) & ~1, 2)} op_sel:[0,{qb & 1}] op_sel_hi:[1,{qb & 1}]", None) for e in range(2)]
    d = ob(tt, 4 * hh + t) + 2 * y
    ops += [(f"v_cvt_pk_bf16_f32 v{d + e}, v{tmp + 2 * e}, v{tmp + 2 * e + 1}", None) for e in range(2)]
    if y:
        pre, st, tag, _ = o_store(8 * tt + 4 * hh + t)
        ops += [(pre[0], None), (st, tag)]
    return ops


def stage(s, k):
    G = Gaps()
    qk, pv = k <= 31, k >= 1
    gi = {}
    for i in range(16):
        kb, qb = i >> 2, i & 3
        for sx in range(4):
            d = vr(S + 4 * (i & 1), 4)
            t = f"{M16} {d}, {ar(KF + 16 * (kb & 1) + 4 * sx, 4)}, {vr(Q + 16 * qb + 4 * sx, 4)}, {vr(NEGM + 4 * qb, 4) if sx == 0 else d}"
            if k == 32 and i == 0 and sx < 3:
                gi[i, sx] = G.add(rowsum(k, sx))
                continue
            gi[i, sx] = G.add(t if qk else None)
        db = i >> 1
        for x in range(4):
            q2, t = 2 * (i & 1) + (x >> 1), (x ^ (x >> 1 if OPT['sn'] & 1 else 0)) & 1
            d = ar(O + 16 * db + 4 * q2, 4)
            tx = f"{M16} {d}, {ar(VF + 8 * (db % 4) + 4 * t, 4)}, {vr(P + 32 * ((k - 1) & 1) + 8 * q2 + 4 * t, 4)}, {d}"
            gi[i, 4 + x] = G.add(tx if pv else None)
        lq = ({1: 0, 3: 1, 5: 2, 7: 3} if OPT['sg'] else {2: 0, 4: 1, 6: 2, 8: 3}) if qk else {0: 3}
        if pv and i in lq:
            q2 = lq[i]
            gi[i, 8] = G.add(rowsum(k, q2))
    for i in range(16):
        Gx = 16 * k + i
        T = Gx - 1
        if 0 <= T < 512:
            tk, ti = divmod(T, 16)
            kb, qb = ti >> 2, ti & 3
            sb = S + 4 * (ti & 1)
            for e in range(4):
                G.put(gi[i, min(e + 1, 3) if k == 0 and OPT['z0'] else e], 'valu', f"v_exp_f32 v{sb + e}, v{sb + e}")
            pd = P + 32 * (tk & 1) + 8 * qb + 2 * kb
            if OPT['x'] & 512:
                G.put(gi[i, 4], 'valu', f"v_perm_b32 v{pd}, v{sb + 1}, v{sb}, s101")
                G.put(gi[i, 6], 'valu', f"v_perm_b32 v{pd + 1}, v{sb + 3}, v{sb + 2}, s101")
            else:
                G.put(gi[i, 4], 'valu', f"v_cvt_pk_bf16_f32 v{pd}, v{sb}, v{sb + 1}")
                G.put(gi[i, 6], 'valu', f"v_cvt_pk_bf16_f32 v{pd + 1}, v{sb + 2}, v{sb + 3}")
        B, sx = divmod(Gx + 5, 4)
        if B < 128:
            if k == 0 and OPT['z0'] and i < 13:
                G.put(gi[i + 1, 0], 'ds', kread(B >> 2, B & 3, sx))
            else:
                G.put(gi[i, 6], 'ds', kread(B >> 2, B & 3, sx))
        D, t = divmod(Gx + 3 - 16, 2)
        if 0 <= D < 256:
            vk, db = divmod(D, 8)
            for u in range(2):
                G.put(gi[i, 4 + u], 'ds', tr(VF + 8 * (db % 4) + 4 * t + 2 * u, 65536 + (vk % 4) * 16384, db, 8192 * t + 4096 * u))
        if OPT['lw'] == 0:
            if qk and (pv or i == 15) and i % 2 == 1:
                G.put(gi[i, 7], 'salu', "@lgkm 3")
        elif qk and (pv or i == 14) and i % 2 == 0:
            G.put(gi[i, 0], 'salu', "@lgkm 3")
    if k >= 1:
        for j, op in enumerate(interval_ops(k)):
            if j >= 3:
                place(G, gi, 2 * (j - 3) + 1, op)
    if k <= 31:
        for j, op in enumerate(interval_ops(k + 1)[:3]):
            place(G, gi, 11 + 2 * j, op)
    if 1 <= k <= 28:
        if OPT['x'] & 128:
            pass
        elif k % 4 == 1:
            G.put(gi[2, 2], 'salu', f"s_mov_b32 m0, s{sFM}")
            G.put(gi[2, 7], 'vm', dma(FV, SRD_T[0], sF, 0).replace(' lds', ' ' + OPT['fnt'] + ' lds'), 'T')
            G.put(gi[4, 1], 'salu', f"s_add_u32 s{sFM}, s{sFM}, 4096")
            G.put(gi[4, 2], 'salu', f"s_add_u32 s{sF}, s{sF}, {64 * 9216}")
        elif k % 4:
            d = k % 4 == 3
            G.put(gi[12, 7], 'vm', f"buffer_load_dword v{TMP + k % 4}, v{TV2 if d else TV}, {sr(SRD_T[k % 4 - 1], 4)}, s{sTCH2 if d else sTCH} offen", 'T')
        else:
            G.put(gi[13, 1], 'salu', f"s_sub_u32 s{sTCH}, s{sTCH}, {4 * 9216}")
            G.put(gi[13, 2], 'salu', f"s_sub_u32 s{sTCH2}, s{sTCH2}, {4 * 1152}")
    if k == 0:
        G.put(gi[6, 7], 'salu', f"s_mov_b32 s{sTCH}, {24 * 9216}")
        G.put(gi[6, 7], 'salu', f"s_mov_b32 s{sTCH2}, {24 * 1152}")
    if k == 0:
        G.put(gi[15, 2], 'salu', f"s_mul_i32 s37, s5, 18432")
        G.put(gi[15, 3], 'salu', f"s_add_u32 s37, s37, s{sWO}")
        for x in (f"v_min_u32 v{TMP + 20}, 143, v0", f"v_lshl_add_u32 v{TMP + 20}, v{TMP + 20}, 7, s37",
                  f"v_mul_u32_u24 v{TMP + 19}, 24, v0", f"v_lshrrev_b32 v{TMP + 19}, 8, v{TMP + 19}",
                  f"v_lshl_add_u32 v{TMP + 19}, v{TMP + 19}, 7, s37"):
            G.put(gi[15, 5], 'valu', x)
    if k % 4 == 3 and k <= 28:
        G.put(gi[14, 7], 'vm', f"buffer_load_dword v{TMP + 5}, v{TMP + 19}, {sr(SRD_O, 4)}, 0 offen", 'T')
        G.put(gi[15, 5], 'valu', f"v_add_u32 v{TMP + 19}, {20 * 128}, v{TMP + 19}")
    if k == OPT['wot']:
        G.put(gi[6, 7], 'vm', f"buffer_load_dword v{TMP + 5}, v{TMP + 20}, {sr(SRD_O, 4)}, 0 offen", 'T')
    if k == 0:
        G.put(gi[14, 5], 'valu', f"v_min_u32 v{TMP + 21}, 19, v1")
        G.put(gi[14, 5], 'valu', f"v_lshl_add_u32 v{TMP + 21}, v{TMP + 21}, 7, s36")
        G.put(gi[14, 5], 'valu', f"v_lshl_add_u32 v{TMP + 22}, v1, 7, s36")
        G.put(gi[14, 3], 'salu', f"s_mov_b32 s{sTO}, s{sOX}")
        for x in (f"s_mov_b32 s{sF}, s{sFG}", f"s_lshl_b32 s{sFM}, s3, 10", f"s_add_u32 s{sFM}, s{sFM}, {tail.L_WU}",
                  "s_lshr_b32 s37, s2, 3", f"s_mul_i32 s37, s37, {-14 * 9216}", f"s_add_u32 s37, s37, {448 * 9216}"):
            G.put(gi[13, 5], 'salu', x)
        G.put(gi[14, 7], 'vm', f"buffer_load_dword v{TMP + 1}, v{TV}, {sr(SRD_T[0], 4)}, s37 offen", 'T')
    if OPT['oxt'] & 1 and k % 4 == 0 and 1 <= k <= 28:
        G.put(gi[12, 7], 'vm', f"buffer_load_dword v{TMP}, v{TMP + 21}, {sr(SRD_P, 4)}, s{sTO} offen", 'T')
        G.put(gi[13, 3], 'salu', f"s_add_u32 s{sTO}, s{sTO}, {18 * 128}")
    if OPT['oxt'] & 4 and k == 0:
        G.put(gi[14, 6], 'tail', f"s_add_u32 s{sTO}, s36, {19 * 128}")
    if OPT['oxt'] & 4 and 1 <= k <= 28:
        if k % 4 == 3:
            G.put(gi[0, 5], 'valu', f"v_min_u32 v{TMP + 21}, s{sTO}, v{TMP + 22}")
            G.put(gi[0, 7], 'vm', f"buffer_load_dword v{TMP + 4}, v{TMP + 21}, {sr(SRD_P, 4)}, s{sOX} offen", 'T')
            G.put(gi[1, 5], 'valu', f"v_add_u32 v{TMP + 21}, 8192, v{TMP + 22}")
            G.put(gi[2, 5], 'valu', f"v_min_u32 v{TMP + 21}, s{sTO}, v{TMP + 21}")
        if k % 4 == 0:
            G.put(gi[12, 7], 'vm', f"buffer_load_dword v{TMP}, v{TMP + 21}, {sr(SRD_P, 4)}, s{sOX} offen", 'T')
            G.put(gi[13, 3], 'salu', f"s_add_u32 s{sTO}, s{sTO}, {18 * 128}")
    if OPT['oxt'] & 8 and k in (29, 30):
        if k == 29:
            G.put(gi[2, 8], 'valu', f"v_lshl_add_u32 v{TMP + 22}, v1, 7, v{TMP + 22}")
        G.put(gi[12, 7], 'vm', f"buffer_load_dword v{TMP + 23 - 5 * (k - 29)}, v{TMP + 22}, {sr(SRD_P, 4)}, s{sOX} offen offset:{128 * (k - 29)}", 'T')
    if OPT['oxt'] & 2:
        for j, (kk, i) in enumerate({0: ((29, 12), (31, 12)), 1: ((29, 12), (30, 12)), 2: ((29, 2), (29, 12)), 3: ((29, 2), (30, 6))}[OPT['rt']]):
            if k == kk:
                G.put(gi[i, 3], 'salu', f"s_add_u32 s37, s{sOX}, {8192 * j}")
                G.put(gi[i, 7], 'vm', f"buffer_load_dword v{TMP + 23 - 5 * j}, v{TMP + 22}, {sr(SRD_P, 4)}, s37 offen", 'T')
    need = []
    if k + 1 <= 31:
        need.append(f'K{k + 1}')
    if k <= 31:
        need.append(f'V{k}')
    if k == 32:
        need.append('WO0')
    if k == 0:
        o, v = ffn_setup()
        for j, x in enumerate(o + v):
            for y in (x if isinstance(x, tuple) else (x,)):
                if j < len(o):
                    G.put(gi[j // 4, j % 4], 'salu', y)
                elif OPT['z0'] and 's36' not in y and j - len(o) < 20:
                    jj = j - len(o)
                    G.put(gi[0, jj >> 1] if jj < 8 else gi[jj - 7, 0], 'valu', y)
                else:
                    G.put(gi[13, 4], 'valu', y)
    if 29 <= k <= 31:
        for j, i in enumerate((0, 4, 8, 14)):
            n = 4 * (k - 29) + j
            if not OPT['x'] & 256:
                pre, t, tag, _ = ffn_load(n)
                G.put(gi[i, 3], 'salu', pre[0])
                G.put(gi[i, 7], 'vm', t, tag)
    if k == 30:
        G.put(gi[0, 5], 'valu', f"v_mov_b32 v{CNT}, 0")
        G.put(gi[2, 7], 'vm', f"buffer_load_dword v{XID}, v{CNT}, {sr(SRD_H, 4)}, s{sXF} offen offset:12 sc1", 'T')
    if OPT['cl'] and k == 0:
        for x in ("s_lshr_b32 s36, s2, 3", "s_lshl_b32 s36, s36, 7", f"v_lshrrev_b32 v{TMP + 17}, 5, v0", f"v_lshl_add_u32 v{TMP + 17}, v{TMP + 17}, 12, s36"):
            G.put(gi[15, 6], 'tail', x)
    if OPT['cl'] and 1 <= k <= 28 and k % 4 == 4 - OPT['cl']:
        G.put(gi[0, 2], 'salu', "s_getpc_b64 s[36:37]")
        G.put(gi[0, 7], 'vm', f"global_load_dword v{TMP + 4}, v{TMP + 17}, s[36:37] offset:4092", 'T')
    if k == OPT['ct']:
        for j, x in enumerate((f"s_getpc_b64 {sr(SRD_M, 2)}", "Lattn_pc2:", f"s_mov_b32 s{SRD_M + 2}, Lattn_redo-Lattn_pc2",
                               "s_lshr_b32 s37, s2, 3", "s_lshl_b32 s37, s37, 7")):
            G.put(gi[5, 0] if j < 2 else gi[5 + (j > 3), (j - 1) % 3], 'salu', x)
        G.put(gi[4, 8], 'valu', f"v_lshrrev_b32 v{TMP + 6}, 5, v0")
        G.put(gi[5, 5], 'valu', f"v_lshlrev_b32 v{TMP + 6}, 12, v{TMP + 6}")
        G.put(gi[6, 7], 'vm', f"buffer_load_dword v{TMP + 6}, v{TMP + 6}, {sr(SRD_M, 4)}, s37 offen", 'T')
    if OPT['fine'] == 7 and k >= 29:
        G.put(gi[0, 4], 'tail', f"s_memtime {sr(60 + 4 * (k - 29), 2)}")
        G.put(gi[8, 4], 'tail', f"s_memtime {sr(62 + 4 * (k - 29), 2)}")
        if k == 32:
            G.put(gi[15, 7], 'tail', "s_memtime s[76:77]")
    late_mod(G, gi, k)
    if k == 32:
        lfinish(G, gi)
    G.put(gi[10, 7], 'tail', f"@vm {','.join(need)} force")
    G.put(gi[10, 7], 'tail', "s_barrier")
    if k == 32:
        G.put(gi[11, 6], 'ds', f"ds_read_b128 {vr(TMP + 8, 4)}, v{TMP + 12}")
        for j, op in enumerate(wo_tile(2, 1) + wo_tile(3, 0)):
            i, sl = divmod(j, 2)
            G.put_op(gi[12 + i, 5 + 2 * sl], op)
    G.emit(s)


def place(G, gi, i, op):
    pre, t, tag, post = op
    for j, x in enumerate(pre):
        G.put(gi[i, 1 + j], 'salu', x)
    G.put(gi.get((i, 8), gi[i, 7]) if OPT['sg'] == 2 else gi[i, 7], 'vm', t, tag)
    for x in post:
        G.put(gi[i + 1, 1], 'salu', x)


def lfinish(G, gi):
    ops = []
    for qb in range(4):
        ops.append(f"v_accvgpr_read_b32 v{TMP + 2 * qb}, a{L + 4 * qb}")
        ops.append(f"v_accvgpr_read_b32 v{TMP + 2 * qb + 1}, a{L + 4 * qb + 1}")
    for qb in range(4):
        ops.append(f"v_add_f32 v{RL + qb}, v{TMP + 2 * qb}, v{TMP + 2 * qb + 1}")
    if OPT['l2']:
        for sw in ('v_permlane16_swap_b32', 'v_permlane32_swap_b32'):
            for qb in range(4):
                ops.append(f"v_mov_b32 v{TMP + qb}, v{RL + qb}")
            for qb in range(4):
                ops.append(f"{sw} v{RL + qb}, v{TMP + qb}")
    ops.append(f"v_add_f32 v{TMP}, v{RL}, v{RL + 1}")
    ops.append(f"v_add_f32 v{TMP + 1}, v{RL + 2}, v{RL + 3}")
    ops.append(f"v_add_f32 v{TMP}, v{TMP}, v{TMP + 1}")
    ops.append(f"v_cmp_ngt_f32 vcc, {THR}, v{TMP}")
    for qb in range(4):
        ops.append(f"v_rcp_f32 v{RL + qb}, v{RL + qb}")
    ops.append(f"v_mov_b32 v{TMP + 12}, {FLAG_LDS}")
    ops.append("s_or_b32 s36, vcc_lo, vcc_hi")
    ops.append(f"v_mov_b32 v{TMP + 2}, s36")
    ops.append(f"s_lshl_b32 s38, s3, 2")
    ops.append(f"v_add_u32 v{TMP + 3}, s38, v{TMP + 12}")
    ops.append(f"ds_write_b32 v{TMP + 3}, v{TMP + 2}")
    assert not OPT['l2']
    slots = [gi[i, sl] for i in (1, 2, 3) for sl in (4, 5, 5, 6, 6, 7, 7)][1:] + [gi[i, sl] for i in (4, 5, 6) for sl in (4, 5)]
    for n in range(OPT['ne']):
        for o, tag in norm_tile(n):
            G.put(gi[16 - OPT['ne'] // 2 + (n >> 1), 6 + (n & 1)], 'valu', o, tag)
    assert len(ops) <= len(slots), (len(ops), len(slots))
    for o, g in zip(ops, slots):
        G.put(g, 'valu', o, 'FLAG')
    G.put(gi[10, 7], 'tail', "@ds FLAG")


def oread(n, r):
    c, nb = divmod(n, 4)
    ks, u = r >> 1, r & 1
    hh, t = ks >> 2, ks & 3
    return tr(AF[n & 1] + 4 * ks + 2 * u, oreg(c) + 16384 * (t >> 1), 4 * hh + nb, 8192 * (t & 1) + 4096 * u)


def normalize(s):
    s(f"v_or3_b32 v{TMP + 8}, v{TMP + 8}, v{TMP + 9}, v{TMP + 10}")
    s(f"v_or_b32 v{TMP + 8}, v{TMP + 8}, v{TMP + 11}")
    s(f"v_readfirstlane_b32 s36, v{TMP + 8}")
    s(f"v_readfirstlane_b32 s38, v{XID}")
    s(f"v_min_u32 v{tail.vF}, 1, v1")
    s(f"v_lshlrev_b32 v{tail.vF}, 31, v{tail.vF}")
    s(f"v_mov_b32 v{tail.vZ}, s{sTAG}")
    s(f"s_getreg_b32 s39, hwreg(HW_REG_XCC_ID, 0, 4)")
    s("s_lshl_b32 s39, s39, 28")
    s(f"s_xor_b32 s39, s39, s{sTAG}")
    s("s_cmp_eq_u32 s38, s39")
    s(f"s_cselect_b32 s{sSAME}, {0 if OPT['x'] & 4 else 1}, 0")
    for r in range(16):
        s(oread(0, r))
    s(f"s_andn2_b32 s36, s36, s{sPASS}")
    s("s_cbranch_scc1 Lattn_redo")
    for n in range(OPT['ne'], 32):
        for o, tag in norm_tile(n):
            s(o, tag)


FP = [('g', i) for i in range(9)] + [('u', 7), ('u', 8), ('d', 0)]


def freg(n):
    return 128 + 4 * n if n < 8 else 240 + 4 * (n - 8)


def wd_dma(i):
    return ([f"s_add_u32 s{sF}, s{sFD}, {i * 4096}", f"s_add_u32 m0, s{sFM}, {tail.L_WD + 4096 * i - tail.L_WU - 7 * 4096}"],
            dma(FV2, SRD_T[2], sF, 0), 'F', [])


def ffn_load(n):
    m, i = FP[n]
    if m == 'd':
        srd_, v, so = SRD_T[2], FV2, f"s{sFD}, {i * 4096}"
    else:
        srd_, v, so = SRD_T[1 if m == 'g' else 0], FV, f"s{sFG}, {i * 64 * 9216}"
    return ([f"s_add_u32 s{sF}, {so}"], f"buffer_load_dwordx4 {ar(freg(n), 4)}, v{v}, {sr(srd_, 4)}, s{sF} offen", 'F', [])


def ffn_write(n):
    m, i = FP[n]
    if m == 'g':
        v, off = FW, 4096 * i
    elif m == 'u':
        v, off = (FW, tail.L_WU - tail.L_WG + 4096 * i) if i < 7 else (FV2, tail.L_WU2 + 4096 * (i - 7))
    else:
        v, off = FV2, tail.L_WD + 4096 * i
    return f"ds_write_b128 v{v}, {ar(freg(n), 4)} offset:{off}"


def mod_block(d, bad):
    return [f"s_lshr_b32 s{d}, s2, 5", f"s_lshl_b32 s{d}, s{d}, 3", f"s_and_b32 s{bad}, s2, 7", f"s_add_u32 s{d}, s{d}, s{bad}",
            f"s_lshl_b32 s{d}, s{d}, 2", f"s_bfe_u32 s{bad}, s2, 0x20003", f"s_add_u32 s{d}, s{d}, s{bad}", f"s_add_u32 s{d}, s{d}, 72",
            (f"s_cmp_lt_u32 s{d}, 216", f"s_cselect_b32 s{bad}, 0, {tail.BIG}")]


def late_mod(G, gi, k):
    def fill(ops, i0, i1, kind='valu'):
        slots = []
        for i in range(i0, i1):
            if kind == 'salu':
                slots += [gi[i, x] for x in (0, 1, 2, 3) if not G.m[gi[i, x]]['salu']]
                continue
            if not G.m[gi[i, 5]]['valu']:
                slots.append(gi[i, 5])
            if i % 2 == 0 and i != 10 and not G.m[gi[i, 7]]['vm']:
                slots += [gi[i, 7]] * 2
        assert len(slots) >= len(ops), (k, len(slots), len(ops))
        for g, x in zip(slots, ops):
            for y in (x if isinstance(x, tuple) else (x,)):
                G.put(g, kind, y)
    t0, t1, t2 = MU, MU + 1, MU + 2
    if 1 <= k <= 28:
        if k % 4 == 1 and not OPT['x'] & 16:
            G.put(gi[14, 7], 'vm', f"buffer_load_dwordx4 {vr(MR, 4)}, v{MW}, {sr(SRD_M, 4)}, s{sMW} offen", 'T')
            G.put(gi[15, 3], 'salu', f"s_add_u32 s{sMW}, s{sMW}, {128 * 6912}")
        if k % 4 == 2 and not OPT['x'] & 32:
            G.put(gi[14, 7], 'vm', f"buffer_store_dwordx4 {vr(AD, 4)}, v{AV}, {sr(SRD_H, 4)}, s{sAR} offen sc1", 'T')
            G.put(gi[15, 3], 'salu', f"s_add_u32 s{sAR}, s{sAR}, 656")
        if k % 4 == 0 and not OPT['x'] & 64:
            ops = []
            for e in range(4):
                a, b = MU + 2 * (e & 1), MU + 2 * (e & 1) + 1
                ops += [f"v_lshlrev_b32 v{a}, 16, v{MR + e}", f"v_and_b32 v{b}, 0xffff0000, v{MR + e}",
                        f"v_fmac_f32 v{MA + 2 * e}, v{MC}, v{a}", f"v_fmac_f32 v{MA + 2 * e + 1}, v{MC}, v{b}"]
            ops += [f"v_mov_b32 v{MC + i}, v{MC + i + 1}" for i in range(4)]
            fill(ops, 0, 16)
    if k == 29:
        ops = [f"v_permlane32_swap_b32 v{MA + e}, v{MA + 4 + e}" for e in range(4)]
        ops += [f"v_add_f32 v{MA + e}, v{MA + e}, v{MA + 4 + e}" for e in range(4)]
        ops += [f"v_and_b32 v{t0}, 1, v1"]
        ops += [f"v_permlane16_swap_b32 v{MA + e}, v{MA + 2 + e}" for e in range(2)]
        ops += [f"v_lshlrev_b32 v{t0}, 5, v{t0}"]
        ops += [f"v_add_f32 v{MA + e}, v{MA + e}, v{MA + 2 + e}" for e in range(2)]
        ops += [f"v_lshrrev_b32 v{t1}, 4, v1", f"v_lshl_add_u32 v{t0}, v{t1}, 3, v{t0}"]
        fill(ops, 0, 16)
        fill(["s_lshl_b32 s38, s3, 6", f"s_add_u32 s38, s38, {FLAG_LDS + 64}"], 0, 2, 'salu')
    if k == 30:
        ops = []
        for ro in (2, 4, 8):
            ops += [f"v_add_f32_dpp v{MA + e}, v{MA + e}, v{MA + e} row_ror:{ro} row_mask:0xf bank_mask:0xf" for e in range(2)]
        ops += [f"v_add_u32 v{t0}, s38, v{t0}", f"v_and_b32 v{t1}, 7, v1"]
        fill(ops, 1, 8)
        G.put(gi.get((8, 8), gi[8, 5]), 'ds', f"ds_write_b64 v{t0}, {vr(MA, 2)}", 'MW')
        G.put(gi[10, 7], 'tail', "@ds MW")
        fill([f"v_lshlrev_b32 v{t1}, 3, v{t1}", f"v_add_u32 v{t1}, {FLAG_LDS + 64}, v{t1}"], 8, 10)
        for w in range(4):
            G.put(gi[11 + w, 5], 'ds', f"ds_read_b64 {vr(MA + 2 * w, 2)}, v{t1} offset:{64 * w}")
        fill(mod_block(39, 43) + [f"s_or_b32 s43, s43, s{sPASS}", f"s_and_b32 s43, s43, {tail.BIG}", "s_sub_u32 s36, s39, 144",
                                  ("s_cmp_lt_u32 s36, 36", "s_cselect_b32 s36, 1.0, 0"), f"s_lshr_b32 s{sMW}, s39, 1", f"s_lshl_b32 s{sMW}, s{sMW}, 6",
                                  "s_and_b32 s39, s39, 1", "s_lshl_b32 s39, s39, 3", f"s_add_u32 s39, s39, s{sMW}",
                                  f"s_add_u32 s39, s39, {WS_MODP}", "s_or_b32 s39, s39, s43"], 2, 16, 'salu')
    if k == 31:
        ops = [f"v_add_f32 v{MA + e}, v{MA + e}, v{MA + 4 + e}" for e in range(4)]
        ops += [f"v_add_f32 v{MA + e}, v{MA + e}, v{MA + 2 + e}" for e in range(2)]
        ops += [f"v_cvt_pk_bf16_f32 v{t2}, v{MA}, v{MA + 1}", f"v_lshlrev_b32 v{MA}, 16, v{t2}", f"v_and_b32 v{MA + 1}, 0xffff0000, v{t2}",
                f"v_add_f32 v{MA}, s36, v{MA}", f"v_add_f32 v{MA + 1}, s36, v{MA + 1}", f"v_cvt_pk_bf16_f32 v{t2}, v{MA}, v{MA + 1}",
                f"v_lshrrev_b32 v{t0}, 1, v0", f"v_lshlrev_b32 v{t0}, 4, v{t0}", f"v_and_b32 v{t1}, 1, v0", f"v_lshl_add_u32 v{t0}, v{t1}, 2, v{t0}",
                f"v_lshrrev_b32 v{t1}, 3, v0", f"v_min_u32 v{t1}, 1, v{t1}", f"v_lshl_or_b32 v{t0}, v{t1}, 31, v{t0}"]
        fill(ops, 0, 16)
    if k == 32:
        G.put(gi[0, 7], 'vm', f"buffer_store_dword v{t2}, v{t0}, {sr(SRD_H, 4)}, s39 offen sc1", 'MS')
        for j, x in enumerate((f"v_min_u32 v{MR}, 1, v0", f"v_lshlrev_b32 v{MR}, 31, v{MR}", f"v_mov_b32 v{MR + 1}, 1")):
            G.put(gi[7 + j, 4], 'valu', x)


def ffn_setup():
    o = ["s_lshr_b32 s6, s2, 3", "s_and_b32 s7, s2, 7", "s_mul_i32 s7, s7, 18", "s_add_u32 s7, s7, s6",
         f"s_lshl_b32 s{sFG}, s7, 6", f"s_mul_i32 s{sFD}, s7, 36864",
         ("s_cmp_lt_u32 s6, 18", f"s_cselect_b32 s7, 0, {tail.BIG}"),
         f"s_or_b32 s{sFG}, s{sFG}, s7", f"s_or_b32 s{sFD}, s{sFD}, s7"]
    v = [f"v_lshrrev_b32 v{FW}, 2, v0", f"v_mul_u32_u24 v{FW}, 9216, v{FW}", f"v_and_b32 v{FV}, 3, v0",
         f"v_lshl_add_u32 v{FV}, v{FV}, 4, v{FW}", f"v_lshlrev_b32 v{FV2}, 4, v0", f"v_add_u32 v{FW}, {tail.L_WG}, v{FV2}"]
    o += ["s_and_b32 s7, s4, 1", "s_lshl_b32 s6, s7, 7",
          "s_xor_b32 s36, s4, 1", f"s_mul_i32 s36, s36, {256 * 1152}", f"s_add_u32 s{sWOb}, s36, s6",
          "s_lshl_b32 s36, s4, 8", f"s_add_u32 s{sPD}, s{sPART}, s36",
          "s_lshr_b32 s36, s4, 1", "s_lshl_b32 s36, s36, 11", "s_lshl_b32 s7, s7, 8", "s_add_u32 s36, s36, s7",
          f"s_add_u32 s{sPR}, s{sPART}, s36",
          "s_lshr_b32 s36, s4, 1", "s_lshl_b32 s36, s36, 4", "s_add_u32 s36, s36, s5", "s_lshl_b32 s36, s36, 9", "s_add_u32 s36, s36, s7",
          "s_lshl_b32 s36, s36, 8", f"s_add_u32 s{sOX}, s36, {OX}",
          f"s_add_u32 s{sWOa}, s{sWO}, s6", f"s_xor_b32 s{sXF}, s{tail.sFL}, 128", "s_lshl_b32 s36, s3, 14"]
    v += [f"v_lshl_add_u32 v{XV}, v1, 4, s36"]
    o = mod_block(sMW, 37) + [f"s_lshl_b32 s{sMW}, s{sMW}, 5", f"s_or_b32 s{sMW}, s{sMW}, s37", f"s_mov_b32 s{SRD_M + 2}, {SZ['wmod']}"] + o
    v += [f"v_mov_b32 v{MA + e}, 0" for e in range(8)]
    o = [f"s_lshl_b32 s{sAR}, s5, 4", f"s_add_u32 s{sAR}, s{sAR}, s4", f"s_lshl_b32 s{sAR}, s{sAR}, 2", f"s_add_u32 s{sAR}, s{sAR}, s3",
         f"s_mul_i32 s{sAR}, s{sAR}, 4608", f"s_add_u32 s{sAR}, s{sAR}, {WS_H2}"] + o
    v += [f"v_mov_b32 v{AD + e}, -1" for e in range(4)] + [f"v_min_u32 v{AV}, 41, v1", f"v_lshlrev_b32 v{AV}, 4, v{AV}"]
    return o, v


def o_store(f):
    pre = [f"s_add_u32 s37, s{sOX}, {4096 * (f >> 2)}"]
    return (pre, f"buffer_store_dwordx4 {vr(ob(f >> 3, f & 7), 4)}, v{XV}, {sr(SRD_P, 4)}, s37 offen offset:{1024 * (f & 3)} {OPT['ox']}", 'OS', [])


def o_load(f):
    pre = [f"s_add_u32 s37, s{sOX}, {4096 * (f >> 2)}"] if f % 4 == 0 else []
    return (pre, f"buffer_load_dwordx4 {ar(BUF + 4 * f, 4)}, v{XV}, {sr(SRD_P, 4)}, s37 offen offset:{1024 * (f & 3)} {OPT['ol']}", 'OL', [])


def oproj(s):
    G = Gaps()

    def acc(n, tt):
        c = POS[n >> 2][1]
        if c == 2 and OPT['o3']:
            return (160, 168, 208, 216)[n & 3] + 4 * tt
        return OAC + 32 * (1 if c is None else c & 1) + 8 * (n & 3) + 4 * tt
    for n in range(36):
        src, c = POS[n >> 2]
        for tt in range(2):
            for x in range(8):
                ks = 7 - x if tt and OPT['sn'] & 4 else x
                d = vr(acc(n, tt), 4)
                b = ar(BUF + 32 * tt + 4 * ks, 4) if src else vr(ob(tt, ks), 4)
                i = G.add(f"{M16} {d}, {ar(AF[n & 1] + 4 * ks, 4)}, {b}, {'0' if x == 0 and src == 0 else d}")
                if n + 1 < 36:
                    G.put(i, 'ds', oread(n + 1, 8 * tt + x))
    for _ in range(8):
        G.add(None)
    for n in range(36):
        src, c = POS[n >> 2]
        if c is not None and src == 0:
            continue
        for tt in range(2):
            e0 = 16 * n + 8 * tt + 8 + 4
            a0 = acc(n, tt)
            pk = PK + 8 * ((n >> 1) & 1) + 4 * tt + 2 * (n & 1)
            G.put(e0, 'valu', f"v_cvt_pk_bf16_f32 v{pk}, v{a0}, v{a0 + 1}")
            G.put(e0 + 1, 'valu', f"v_cvt_pk_bf16_f32 v{pk + 1}, v{a0 + 2}, v{a0 + 3}")
            if n & 1:
                base, off = (sPD, 16384) if c is None else (sPR, 512 * c)
                G.put(e0 + 1, 'salu', f"s_add_u32 s38, s{base}, {tt * 8 * PAIR + off + ((n >> 1) & 1) * 128}")
                G.put(e0 + 2, 'vm', f"buffer_store_dwordx4 {vr(pk - 2, 4)}, v{STV}, {sr(SRD_P, 4)}, s38 offen {OPT['st']}", 'STD' if c is None else f'ST{c}')
    for c in range(8):
        b = 64 * c + 47
        G.put(b, 'tail', f"@vm WO{c + 1}")
        if c in (2, 7):
            G.put(b, 'tail', "@lgkm 0")
        G.put(b, 'tail', "s_barrier")
        if c == 0:
            ops = wo_tile(3, 1)
        elif c <= 5:
            ops = wo_tile(c + 3, 0) + wo_tile(c + 3, 1)
        else:
            ops = []
        for j, op in enumerate(ops):
            G.put_op(b + 9 + 8 * (j >> 1) + 2 * (j & 1), op)

    def spread(ops, lo, hi, step=2):
        free = [i for i in range(lo, hi) if i % step == step - 2 and not G.m[i]['vm'] and not G.m[i]['valu'] and not G.m[i + 1]['valu']]
        assert len(free) >= len(ops), (len(free), len(ops))
        for j, op in enumerate(ops):
            G.put_op(free[j * len(free) // len(ops)], op)
    fx, px, cx = OPT['fx'], OPT['px'], OPT['cx']
    assert fx < OPT['at'] < 176
    G.put(fx - 1, 'tail', "@vm OS")
    G.put(fx - 1, 'tail', f"s_cmp_eq_u32 s{sSAME}, 0")
    G.put(fx - 1, 'tail', "s_cbranch_scc1 Lattn_wb")
    G.put(fx - 1, 'tail', "Lattn_wbdone:")
    G.put(fx, 'vm', f"buffer_store_dword v{tail.vZ}, v{tail.vF}, {sr(SRD_H, 4)}, s{tail.sFL} offen offset:8 sc1")
    G.put(fx + 1, 'salu', f"s_xor_b32 s{sOX}, s{sOX}, 65536")
    spread([([], f"buffer_atomic_add v{MR + 1}, v{MR}, {sr(SRD_D, 4)}, 0 offen sc1", None, [])], OPT['at'], OPT['at'] + 12)
    spread([([], x_poll(), None, [])], px, px + 8)
    G.put(cx - 2, 'valu', f"v_readfirstlane_b32 s36, v{tail.POLL}")
    G.put(cx, 'tail', f"s_cmp_lg_u32 s36, s{sTAG}")
    G.put(cx, 'tail', "s_cbranch_scc1 Lattn_xspin")
    G.put(cx, 'tail', "Lattn_xgot:")
    spread([o_load(f) for f in range(16)], cx + 3, OPT['ex'])
    for j, x in enumerate(tail.pointer_loads()):
        G.put(fx + 3 + 2 * j, 'tail', x)
    L, ldx, ld0, ld1 = tail.prepare()
    g0 = 200

    def flag(f, groups):
        spread([([tail.flag_store()[0], "@vm ST" + groups[-1]], tail.flag_store()[1], None, [])], f, f + 12)

    def poll(p):
        assert p > g0
        spread([(tail.flag_poll()[:1], tail.flag_poll()[1], None, [])], p, p + 12)
    if OPT['s0']:
        flag(OPT['f0'], OPT['s0'])
        poll(OPT['p0'])
        c0 = OPT['c0']
        fc = tail.flag_try() if OPT['nb'] else tail.flag_check(0)
        assert c0 > 404 or not OPT['nb']
        G.put(c0 - 2, 'valu', fc[0])
        for x in fc[1:]:
            G.put(c0, 'tail', x)
        spread(tail.part_loads(OPT['s0'], tail.sB0 if OPT['nb'] else None), c0 + 2, c0 + 2 + 18 * len(OPT['s0']))
    flag(OPT['f1'], OPT['s1'])
    poll(OPT['p1'])
    if OPT['f3']:
        assert OPT['f3'] > OPT['f1'] + 12
        spread([(["@vm ST2"], tail.mid_store(), None, [])], OPT['f3'], OPT['f3'] + 12)
        spread([([], tail.mid_poll(), None, [])], 564, 576)
    ca = OPT['ca']
    assert ca > g0
    spread([([], f"buffer_load_dword v{CNT}, v{CNT}, {sr(SRD_D, 4)}, 0 offen sc1", None, [])], ca - 60, ca - 40)
    G.put(ca - 2, 'valu', f"v_readfirstlane_b32 s37, v{CNT}")
    for x in ("s_cmp_lt_u32 s37, 256", "s_cbranch_scc1 Lattn_armwait", "Lattn_armed:"):
        G.put(ca, 'tail', x)
    if OPT['wdp'] == 5:
        spread([wd_dma(i) for i in range(1, 9)], OPT['wd0'], OPT['wd0'] + 48, 4)
    spread(ldx, OPT['xp'], OPT['xp'] + 40)
    if OPT['o3']:
        ld0, ld1 = ld1[:5], ld1[5:11] + ld0 + ld1[11:]
    spread(ld0, ca + 2, ca + 44)
    spread(ld1, max(64 * 7 + 8, ca + 46), 536)
    g = max(72, OPT['at'] + 14)
    for x in L:
        if isinstance(x, int):
            assert x != 190 or g < g0
            g = max(g, x, OPT['ex'] + 4)
            continue
        x = x if isinstance(x, tuple) else (x,)
        kind = 'salu' if x[0].startswith('s_') else 'valu'
        while G.m[g][kind] or G.m[g]['vm'] or (kind == 'salu' and G.m[g]['valu']) or (kind == 'valu' and G.m[g - 1]['vm']):
            g += 1
        for y in x:
            G.put(g, kind, y)
        if 's[36:37]' in x[0] or 's[54:55]' in x[0]:
            assert g < min(OPT['ca'], OPT['c0']) - 4
    assert g < 64 * 7 + 6
    if OPT['fine'] == 3:
        for c in range(8):
            G.put(64 * c + 63, 'tail', f"s_memtime {sr(62 + 2 * c, 2)}")
    G.emit(s)


def x_poll():
    return f"buffer_load_dword v{tail.POLL}, v{tail.vF}, {sr(SRD_H, 4)}, s{sXF} offen offset:8 sc1"


def pair_cold(a):
    a("Lattn_wb:")
    a("buffer_wbl2 sc1")
    a("s_waitcnt vmcnt(0)")
    a("s_branch Lattn_wbdone")
    a("Lattn_xspin:")
    a(f"s_mov_b32 s37, {tail.SPIN}")
    a("Lattn_xloop:")
    a(x_poll())
    a("s_waitcnt vmcnt(0)")
    a(f"v_readfirstlane_b32 s36, v{tail.POLL}")
    a("s_sub_u32 s37, s37, 1")
    a("s_cbranch_scc1 Lattn_xgot")
    a(f"s_cmp_lg_u32 s36, s{sTAG}")
    a("s_cbranch_scc1 Lattn_xloop")
    a("s_branch Lattn_xgot")


def redo():
    s = Stream()
    s("Lattn_redo:")
    s(f"s_load_dwordx2 {sr(SRD_M, 2)}, s[0:1], {KA['wmod']}")
    s(f"v_xor_b32 v{KAD}, 64, v{KAD + 1}")
    s(f"v_xor_b32 v{KAD + 2}, 64, v{KAD + 3}")
    s("@drain")
    s("s_barrier")
    M = TMP + 16
    for qb in range(4):
        s(f"v_mov_b32 v{M + qb}, 0xff800000")
    s(f"s_mov_b32 s{sK}, 0")
    s(f"s_mov_b32 s{sPASS}, -1")
    s("Lattn_redo_loop:")
    for op in k_tile(0):
        emit_op(s, op)
    s("@drain")
    s("s_barrier")
    for kb in range(4):
        for sx in range(4):
            s(kread(0, kb, sx))
        for qb in range(4):
            for sx in range(4):
                d = vr(TMP + 4 * qb, 4)
                s(f"{M16} {d}, {ar(KF + 16 * (kb & 1) + 4 * sx, 4)}, {vr(Q + 16 * qb + 4 * sx, 4)}, {'0' if sx == 0 else d}")
        for qb in range(4):
            t = TMP + 4 * qb
            s(f"v_max3_f32 v{M + qb}, v{M + qb}, v{t}, v{t + 1}")
            s(f"v_max3_f32 v{M + qb}, v{M + qb}, v{t + 2}, v{t + 3}")
    s("s_barrier")
    s(f"s_cmp_lt_u32 s{sK}, 524288")
    s("s_cbranch_scc1 Lattn_redo_loop")
    cross_max_to_negm(s, M)
    s(f"s_mov_b32 s{sK}, 0")
    s(f"s_mov_b32 s{sV}, 0")
    for op in k_tile(0) + k_tile(1) + k_tile(2) + v_tile(0) + v_tile(1):
        emit_op(s, op)
    for r in list(range(O, O + 128)) + list(range(L, L + 16)):
        s(f"v_accvgpr_write_b32 a{r}, 0")
    s("@drain")
    s("s_barrier")
    for sx in range(4):
        s(kread(0, 0, sx))
    s(kread(0, 1, 0))
    s("@drain")
    s("s_branch Lattn_stage0")
    s.resolve()
    return [t for _, ls in s.split() for t in ls]


def merge_body(copies):
    out = []
    assert len({len(c) for c in copies}) == 1
    for lines in zip(*copies):
        if len(set(lines)) == 1:
            out.append(lines[0])
        else:
            ms = [re.fullmatch(r's_waitcnt (\w+)\((\d+)\)', l) for l in lines]
            assert all(ms) and len({m.group(1) for m in ms}) == 1, lines
            out.append(f"s_waitcnt {ms[0].group(1)}({min(int(m.group(2)) for m in ms)})")
    return out


def insn_sizes(lines):
    src = '.amdgcn_target "amdgcn-amd-amdhsa--gfx950"\n.text\n' + '\n'.join(lines) + '\n'
    with tempfile.TemporaryDirectory() as d:
        open(d + '/t.s', 'w').write(src)
        subprocess.run(['clang', '-x', 'assembler', '-target', 'amdgcn-amd-amdhsa', '-mcpu=gfx950', '-c', d + '/t.s', '-o', d + '/t.o'], check=True)
        dis = subprocess.run(['llvm-objdump', '-d', '--mcpu=gfx950', d + '/t.o'], check=True, capture_output=True, text=True).stdout
    sz = [4 * len(m.group(1).split()) for m in re.finditer(r'// [0-9A-F]{12}: ((?:[0-9A-F]{8} ?)+)', dis)]
    it = iter(sz)
    out = [0 if l.endswith(':') else next(it) for l in lines]
    assert next(it, None) is None
    return out


def page_tour(lines):
    i0 = lines.index('Lhead_tour:')
    if not OPT['tour']:
        assert not OPT['cl']
        return lines
    sz = insn_sizes(lines)
    end = lines.index('Lattn_redo:')
    out = []; pos = 4; page = 1
    chains = ([], []); cur = 0

    def enter(c):
        pre = ['    s_mov_b64 exec, 0']
        for w in range(3):
            pre += [f'    s_cmp_eq_u32 s3, {w}', f'    s_cbranch_scc1 Ltour{c}_{w}']
        return pre + [f'    s_branch Ltour{c}_3']
    for i in range(i0 + 1, len(lines)):
        l = lines[i]
        if l == 'Lattn_loop:':
            while pos % 32 != OPT['lal']:
                out.append('    s_nop 0'); pos += 4
        want = None
        if i < end and pos >= 4096 * page and not l.endswith(':'):
            prev = lines[i - 1].split()[0]
            if prev.startswith('v_mfma') and not l.split()[0].startswith('s_') or pos - 4096 * page >= 40:
                want = cur; page += 1
        if lines[i - 1][:-1] in ('Ltail_spin1', 'Ltail_spin2', 'Ltail_spin3', 'Ltail_idle'):
            want = cur
        if lines[i - 1][:-1] in ('Ltail_spin0', 'Lattn_xspin'):
            want = 0
        if want is not None:
            n = len(chains[want]); chains[want].append(pos)
            out.append(f'Ltour{want}_{n}:'); out.append((want, n)); pos += 4
        if l == 'Ltail_tour:':
            out += enter(1) + ['Lmain1:', '    s_mov_b64 exec, -1']; pos += 36; cur = 1
            continue
        out.append(l); pos += sz[i]
        if 's_getpc_b64 s[36:37]' in l:
            reach = pos + 4092 + 32768
    assert not OPT['cl'] or reach <= pos
    assert cur == 0 or len(chains[1]) >= 4
    print('code bytes', pos, 'stubs', len(chains[0]), len(chains[1]), file=sys.stderr)
    out = [f"    s_cbranch_execz {'Ltour%d_%d' % (x[0], x[1] + 4) if x[1] + 4 < len(chains[x[0]]) else 'Lmain%d' % x[0]}"
           if isinstance(x, tuple) else x for x in out]
    return lines[:i0] + enter(0) + ['.p2align 12', 'Lmain0:', '    s_mov_b64 exec, -1'] + out


def k_attn(diag=False):
    s = Stream()
    head.head(s, diag, sys.modules[__name__])
    stamp(s, diag, 1)
    qproj(s, diag)
    stamp(s, diag, 2)
    prepass(s, qfinish(s))
    s("@mark pre")
    s("Lattn_stage0:")
    s(f"s_mov_b32 s{sCNT}, 7")
    if OPT['x'] & 512:
        s("s_mov_b32 s101, 0x07060302")
    for k in range(33):
        s(f"@mark st{k}")
        stage(s, k)
    s("@mark post")
    normalize(s)
    s("@mark oproj")
    oproj(s)
    s("@mark tail")
    tail.post(s, diag, [ffn_write(n) for n in range(12)], emit_op)
    s.resolve()
    parts = dict(s.split())
    for k in range(1, 5):
        parts[f'body{k}'] = merge_body([parts[f'st{j}'] for j in range(k, 29, 4)])
    a = Asm()

    def put(name):
        for t in parts[name]:
            a(t)
    put('_head'); stamp(a, diag, 3); put('pre'); put('st0')
    stamp(a, diag, 4)
    a("Lattn_loop:")
    for k in range(1, 5):
        put(f'body{k}')
    a(f"s_sub_u32 s{sCNT}, s{sCNT}, 1")
    a(f"s_cmp_lg_u32 s{sCNT}, 0")
    a("s_cbranch_scc1 Lattn_loop")
    stamp(a, diag, 5)
    for k in range(29, 33):
        put(f'st{k}')
    stamp(a, diag, 6)
    put('post')
    if OPT['fine'] == 3:
        stamp(a, diag, 0)
    stamp(a, diag, 7)
    put('oproj')
    if diag:
        stamp(a, diag, 8)
        if OPT['fine'] != 5:
            stamp(a, diag, 9)
        a("s_memrealtime s[98:99]")
        a("s_waitcnt lgkmcnt(0)")
        for i in range(10):
            a(f"s_sub_u32 s7, s{60 + 2 * i}, s60")
            a(f"v_accvgpr_write_b32 a{224 + i}, s7")
        a("v_accvgpr_write_b32 a234, s96")
        a("v_accvgpr_write_b32 a235, s98")
    put('tail')
    tail.body(a, diag, [wd_dma(i) for i in range(1, 9)], emit_op)
    if diag:
        tail.dump_stamps(a, 8, WS_STAMP + 0x20000)
        a.srd(SRD_V, 50, 1024 * 64, WS_STAMP)
        for i in range(3):
            a(f"buffer_store_dwordx4 {ar(224 + 4 * i, 4)}, v2, {sr(SRD_V, 4)}, s36 offen offset:{16 * i}")
    a("s_endpgm")
    pair_cold(a)
    if OPT['s0'] and not OPT['nb']:
        tail.flag_spin(a, 0)
    tail.flag_spin(a, 1)
    tail.flag_spin(a, 2)
    if OPT['f3']:
        tail.flag_spin(a, 3)
    for t in redo():
        a(t)
    a("Lattn_armwait:")
    a(f"s_mov_b32 s36, {tail.SPIN}")
    a("Lattn_armloop:")
    a(f"v_mov_b32 v{CNT}, 0")
    a(f"buffer_load_dword v{CNT}, v{CNT}, {sr(SRD_D, 4)}, 0 offen sc1")
    a("s_waitcnt vmcnt(0)")
    a(f"v_readfirstlane_b32 s37, v{CNT}")
    a("s_sub_u32 s36, s36, 1")
    a("s_cbranch_scc1 Lattn_armed")
    a("s_cmp_lt_u32 s37, 256")
    a("s_cbranch_scc1 Lattn_armloop")
    a("s_branch Lattn_armed")
    a("Lattn_end:")
    a("s_endpgm")
    a.L = page_tour(a.L)
    return a.text(), 512, dict(grid=256, block=256, lds=163840), s.stats
```

```python
from dsl import *
from sched import Stream

M16 = 'v_mfma_f32_16x16x32_bf16'
BIG = 0x80000000
SPIN = 1 << 18
SPIN_NAN = 1 << 14
SW, SP, SX, SO, SR, SY = 24, 28, 12, 16, 20, 8
sLU, sLU2 = 38, 39
sQ, sB0, sB1 = 56, 58, 49
sOCT, sIDX, sROLE, sA, sB, sC, sT0, sT1, sN = 40, 41, 42, 43, 44, 45, 46, 47, 48
sFL, sPL, sK0, sK1 = 92, 39, 92, 93
pWS = 50
vP, vXC, vX, vM, vR, vTOK, vF, vPL, vZ, POLL = 2, 3, 4, 5, 6, 7, 8, 9, 10, 11
vPD, vXC2, vX2, vM2, vR2 = 54, 55, 58, 59, 60
RAW = ((36, 40, 92), (160, 164, 168), (172, 208, 212), (64, 68, 72), (76, 80, 84), (216, 220, 88))
X1, GA, C1, SB, WR, GB = 12, 96, 120, 144, 168, 192
SELD, SELE, SELO = 240, 244, 248
A, H, PKX, PKH, PKO = 64, 216, 36, 64, 144
tM, tV, tT, tU = 48, 50, 52, 62
KEEP = 168
POLL3 = 57
c0, cA, cB, kA, kT = 88, 90, 91, 92, 93
PB = {'D': 32, '0': 48, '1': 64, '2': 16, '3': 0}
HB, WF, DF = 0, 96, 168
L_WG, L_WU, L_WU2, L_WD, L_XCH, L_KEY, L_SEL = 98304, 135168, 40960, 61440, 32768, 36864, 36928
L_HB = 49152


def unpack(s, dst, src, n):
    for i in range(n):
        s(f"v_lshlrev_b32 v{dst + 2 * i}, 16, v{src + i}")
        s(f"v_and_b32 v{dst + 2 * i + 1}, 0xffff0000, v{src + i}")


def pack(s, dst, src, n):
    for i in range(n):
        s(f"v_cvt_pk_bf16_f32 v{dst + i}, v{src + 2 * i}, v{src + 2 * i + 1}")


def rnd1(s, r):
    s(f"v_cvt_pk_bf16_f32 v{r}, v{r}, v{r}")
    s(f"v_and_b32 v{r}, 0xffff0000, v{r}")


def red(s, regs, tmps, rors, x16, x32, op='v_add_f32'):
    for ro in rors:
        for r in regs:
            s(f"{op}_dpp v{r}, v{r}, v{r} row_ror:{ro} row_mask:0xf bank_mask:0xf")
    for sw, on in (('v_permlane16_swap_b32', x16), ('v_permlane32_swap_b32', x32)):
        if on:
            for r, t in zip(regs, tmps):
                s(f"v_mov_b32 v{t}, v{r}")
            for r, t in zip(regs, tmps):
                s(f"{sw} v{r}, v{t}")
            for r, t in zip(regs, tmps):
                s(f"{op} v{r}, v{r}, v{t}")


def top2_lane(s, K, n, k1, k2):
    s(f"v_max_u32 v{k1}, v{K}, v{K + 1}")
    s(f"v_min_u32 v{k2}, v{K}, v{K + 1}")
    for i in range(2, n):
        s(f"v_med3_u32 v{k2}, v{k1}, v{k2}, v{K + i}")
        s(f"v_max_u32 v{k1}, v{k1}, v{K + i}")


def top2_wave(s, k1, k2, p1, p2, t):
    def merge():
        s(f"v_min_u32 v{t}, v{k1}, v{p1}")
        s(f"v_max_u32 v{k1}, v{k1}, v{p1}")
        s(f"v_max3_u32 v{k2}, v{t}, v{k2}, v{p2}")
    for ro in (1, 2, 4, 8):
        s(f"v_mov_b32_dpp v{p1}, v{k1} row_ror:{ro} row_mask:0xf bank_mask:0xf")
        s(f"v_mov_b32_dpp v{p2}, v{k2} row_ror:{ro} row_mask:0xf bank_mask:0xf")
        merge()
    for sw in ('v_permlane16_swap_b32', 'v_permlane32_swap_b32'):
        s(f"v_mov_b32 v{p1}, v{k1}")
        s(f"v_mov_b32 v{p2}, v{k2}")
        s(f"{sw} v{k1}, v{p1}")
        s(f"{sw} v{k2}, v{p2}")
        merge()


def srd(s, *args):
    a = Asm(); a.srd(*args); s(a.text())


def fin(s):
    s.resolve()
    return [t for _, ls in s.split() for t in ls]


def stamp(s, diag, i, fine=False):
    mode = OPT['fine'] if OPT['fine'] in (4, 6) else 0
    if diag and ({False: 0, True: 4}.get(fine, fine) == mode or i in (0, 7)):
        s(f"s_memrealtime {sr(60 + 2 * i, 2)}")


def prepare():
    L = []
    s = L.append
    t0, t1, t2, t3 = 240, 241, 242, 243
    s(f"s_lshl_b32 s{sOCT}, s5, 4")
    s(f"s_add_u32 s{sOCT}, s{sOCT}, s4")
    s(f"v_and_b32 v{t0}, 31, v1")
    s(f"v_lshrrev_b32 v{t1}, 5, v1")
    s(f"v_cmp_gt_u32 vcc, 8, v{t0}")
    s(f"v_mov_b32 v{t2}, {BIG}")
    s(f"s_lshl_b32 s{sA}, s{sOCT}, 3")
    s(f"s_lshl_b32 s{sB}, s3, 1")
    s(f"s_add_u32 s{sA}, s{sA}, s{sB}")
    s(f"v_cndmask_b32 v{t2}, v{t2}, 0, vcc")
    s(f"v_add_u32 v{vTOK}, s{sA}, v{t1}")
    s(f"v_lshlrev_b32 v{vM}, 4, v{t0}")
    s(f"v_lshlrev_b32 v{t3}, 4, v{t1}")
    s(f"v_lshl_add_u32 v{vP}, v{t0}, 5, v{t3}")
    s(f"v_lshrrev_b32 v{t3}, 4, v{t0}")
    s(f"v_mul_u32_u24 v{t3}, 1536, v{t3}")
    s(f"v_add_u32 v{vP}, v{vP}, v{t3}")
    s(f"s_mul_i32 s{sB}, s{sA}, {PAIR // 2}")
    s(f"v_lshrrev_b32 v{t3}, 2, v{t0}")
    s(f"v_lshlrev_b32 v{t3}, 6, v{t3}")
    s(f"v_and_b32 v{t1}, 3, v{t0}")
    s(f"v_lshl_add_u32 v{vXC}, v{t1}, 3, v{t3}")
    s(f"v_mul_u32_u24 v{t3}, 1152, v{vTOK}")
    s(f"v_add_u32 v{vX}, v{t3}, v{vXC}")
    s(f"v_lshl_add_u32 v{vR}, v{t3}, 1, v{vM}")
    for d, r in ((vXC2, vXC), (vX2, vX), (vM2, vM), (vR2, vR)):
        s(f"v_or_b32 v{d}, v{r}, v{t2}")
    s(f"v_lshrrev_b32 v{t3}, 4, v1")
    s(f"v_lshlrev_b32 v{t3}, 8, v{t3}")
    s(f"v_and_b32 v{t1}, 7, v1")
    s(f"v_lshl_add_u32 v{t3}, v{t1}, 5, v{t3}")
    s(f"v_and_b32 v{t1}, 8, v1")
    s(f"v_lshl_add_u32 v{vPD}, v{t1}, 1, v{t3}")
    s(f"s_lshr_b32 s{sIDX}, s2, 3")
    for d, n in ((SX, 'x'), (SO, 'out')):
        s(f"s_mov_b32 s{d + 2}, {SZ[n]}")
        s(f"s_mov_b32 s{d + 3}, 0x20000")
    s((f"s_add_u32 s{SY}, s{pWS}, {WS_Y}", f"s_addc_u32 s{SY + 1}, s{pWS + 1}, 0"))
    s(f"s_mov_b32 s{SY + 2}, {Y_BYTES}")
    s(f"s_mov_b32 s{SY + 3}, 0x20000")
    s(f"s_lshl_b32 s{sPL}, s5, 13")
    s(f"s_add_u32 s{sPL}, s{sPL}, {WS_FLAG}")
    s(f"s_lshr_b32 s{sC}, s4, 2")
    s(f"s_lshl_b32 s{sC}, s{sC}, 11")
    s(f"s_add_u32 s{sPL}, s{sPL}, s{sC}")
    s(f"v_and_b32 v{vPL}, 15, v1")
    s(f"v_lshlrev_b32 v{vPL}, 7, v{vPL}")
    s(190)
    s(f"v_lshrrev_b32 v{t0}, 4, v1")
    s(f"v_and_b32 v{t0}, 2, v{t0}")
    s(f"v_bfe_u32 v{t1}, v1, 2, 2")
    s(f"v_cmp_eq_u32 s[54:55], v{t0}, v{t1}")
    s(f"v_or_b32 v{t0}, 1, v{t0}")
    s(f"v_cmp_eq_u32 s[36:37], v{t0}, v{t1}")
    s(f"v_and_b32 v{t0}, 1, v1")
    s(f"v_lshlrev_b32 v{t0}, 4, v{t0}")
    s(f"v_mov_b32 v{t1}, 0x3f80")
    s(f"v_lshlrev_b32 v{t0}, v{t0}, v{t1}")
    s(f"v_bfe_i32 v{t1}, v1, 1, 1")
    s(f"v_and_b32 v{SELD + 3}, v{t0}, v{t1}")
    s(f"v_xor_b32 v{SELD + 2}, v{t0}, v{SELD + 3}")
    for d, mk in ((SELE, 's[54:55]'), (SELO, 's[36:37]')):
        s(f"v_cndmask_b32 v{d + 2}, 0, v{SELD + 2}, {mk}")
        s(f"v_cndmask_b32 v{d + 3}, 0, v{SELD + 3}, {mk}")
    for r in (0, 1, 4, 5, 8, 9, 12, 13):
        s(f"v_mov_b32 v{SELD + r}, 0")
    s(404)
    s(f"s_and_b32 s{sROLE}, s2, 7")
    s(f"s_mov_b64 {sr(SR, 2)}, s[52:53]")
    s(f"s_mov_b32 s{SR + 2}, {SZ['wr']}")
    s(f"s_mov_b32 s{SR + 3}, 0x20000")

    def mod(dst, which):
        return [([f"s_mov_b32 s{sC}, {WS_MODP + 1152 * which}"] if i == 0 else [],
                 f"buffer_load_dwordx4 {vr(dst[i], 4)}, v{vM2 if i == 2 else vM}, {sr(SW, 4)}, s{sC} offen offset:{512 * i} sc1", 'R', []) for i in range(3)]

    def row(dst, voff, srd_):
        return [([], f"buffer_load_dwordx2 {vr(dst[i] + 2 * u, 2)}, v{voff[i == 2]}, {sr(srd_, 4)}, 0 offen offset:{512 * i + 32 * u}", 'R', [])
                for i in range(3) for u in range(2)]
    xr = row(RAW[0], (vX, vX2), SX)
    return L, xr[:4], mod(RAW[1], 2) + mod(RAW[2], 4), xr[4:] + mod(RAW[3], 3) + row(RAW[4], (vXC, vXC2), SR) + mod(RAW[5], 5)


def pointer_loads():
    return [f"s_load_dwordx2 {sr(SX, 2)}, s[0:1], {KA['x']}", f"s_load_dwordx2 {sr(SO, 2)}, s[0:1], {KA['out']}",
            f"s_load_dwordx2 s[52:53], s[0:1], {KA['wr']}"]


def flag_store():
    return [f"s_add_u32 s{sFL}, s{sFL}, {OPT['fs']}", f"buffer_store_dword v{vZ}, v{vF}, {sr(SW, 4)}, s{sFL} offen sc1"]


def flag_poll():
    return [f"s_add_u32 s{sPL}, s{sPL}, {OPT['fs']}", f"buffer_load_dword v{POLL}, v{vPL}, {sr(SW, 4)}, s{sPL} offen {OPT['pf']}"]


def mid_store():
    return f"buffer_store_dword v{vZ}, v{vF}, {sr(SW, 4)}, s{sFL} offen offset:4 sc1"


def mid_poll():
    return f"buffer_load_dword v{POLL3}, v{vPL}, {sr(SW, 4)}, s{sPL} offen offset:4 {OPT['pf']}"


def flag_check(n):
    return [f"v_cmp_ne_u32 s[54:55], s95, v{POLL3 if n == 3 else POLL}", "s_cmp_lg_u64 s[54:55], 0", f"s_cbranch_scc1 Ltail_spin{n}", f"Ltail_got{n}:"]


def flag_try():
    return [f"v_cmp_ne_u32 s[54:55], s95, v{POLL}", "s_cmp_lg_u64 s[54:55], 0",
            f"s_cselect_b32 s{sB0}, {BIG}, s{sB}", f"s_cselect_b32 s{sB1}, s{sB}, {BIG}"]


def flag_spin(a, n):
    a(f"Ltail_spin{n}:")
    if n == 1 and OPT['p3']:
        a("s_waitcnt vmcnt(0)")
        a(flag_store()[1])
    a(f"s_mov_b32 s{sN}, {SPIN}")
    a(f"Ltail_spinl{n}:")
    a(mid_poll() if n == 3 else flag_poll()[1])
    a("s_waitcnt vmcnt(0)")
    a(f"v_cmp_ne_u32 s[54:55], s95, v{POLL3 if n == 3 else POLL}")
    a(f"s_sub_u32 s{sN}, s{sN}, 1")
    a(f"s_cbranch_scc1 Ltail_got{n}")
    a("s_cmp_lg_u64 s[54:55], 0")
    a(f"s_cbranch_scc1 Ltail_spinl{n}")
    a(f"s_branch Ltail_got{n}")


def part_loads(groups, base=None, ro=0):
    ops = []
    for c in groups:
        for k in range(4):
            if c == 'D':
                pre, v, off = ([16384] if k == 0 else []), vPD, 1024 * k
            else:
                pre, v, off = [4096 * k], vP, 512 * int(c)
            ops.append(([f"s_add_u32 s{sQ}, s{base or sB}, {x}" for x in pre],
                        f"buffer_load_dwordx4 {ar(ro + PB[c] + 4 * k, 4)}, v{v}, {sr(SP, 4)}, s{sQ} offen offset:{off} {OPT['pl']}", 'PL', []))
    return ops


def post(s, diag, fwrites, emit_op):
    def acc(c, ro=0, first=True, last=True):
        i, sel = (2, SELD) if c == 'D' else (int(c) >> 1, (SELE, SELO)[int(c) & 1])
        for k in range(4):
            for u in range(2):
                d = vr(A + 8 * i + 4 * u, 4)
                s(f"{M16} {d}, {vr(sel + 2 - 2 * u, 4)}, {ar(ro + PB[c] + 4 * k, 4)}, {'0' if first and k == 0 and c in 'D02' else d}")
        if not last:
            return
        if c == 'D':
            for e in range(8):
                s(f"v_mov_b32_dpp v{A + 16 + e}, v{A + 16 + e} row_ror:8 row_mask:0x4 bank_mask:0xf")
        if c in 'D13':
            resid(i)

    def unp(dst, r):
        for i in range(3):
            unpack(s, dst + 8 * i, r[i], 4)

    def resid(i):
        for e in range(8 * i, 8 * i + 8, 2):
            s(f"v_pk_fma_f32 {vr(X1 + e, 2)}, {vr(GA + e, 2)}, {vr(A + e, 2)}, {vr(X1 + e, 2)}")
        pack(s, PKX + 4 * i, X1 + 8 * i, 4)
        unpack(s, X1 + 8 * i, PKX + 4 * i, 4)
        if i == 0:
            s(f"v_pk_add_f32 {vr(c0, 2)}, {vr(X1, 2)}, {vr(X1 + 2, 2)}")
            s(f"v_pk_add_f32 {vr(tU, 2)}, {vr(X1 + 4, 2)}, {vr(X1 + 6, 2)}")
            s(f"v_pk_add_f32 {vr(c0, 2)}, {vr(c0, 2)}, {vr(tU, 2)}")
            s(f"v_add_f32 v{c0}, v{c0}, v{c0 + 1}")
            red(s, [c0], [tU], (8, 4, 2, 1), True, False)
            s(f"v_mul_f32 v{c0}, 0x3b800000, v{c0}")
            sums(2)
            for r in range(m, m + 4):
                s(f"v_cndmask_b32 v{r}, 0, v{r}, vcc")
            sums(0)
        if i == 1:
            sums(1)

    def sums(i):
        for e in range(8 * i, 8 * i + 8, 2):
            s(f"v_pk_add_f32 {vr(H + e, 2)}, {vr(X1 + e, 2)}, {vr(c0, 2)} op_sel_hi:[1,0] neg_lo:[0,1] neg_hi:[0,1]")
        for e in range(8 * i, 8 * i + 8, 2):
            h = vr(H + e, 2)
            if e == 16:
                s(f"v_pk_add_f32 {vr(m, 2)}, {h}, {vr(H + e + 2, 2)}")
                s(f"v_pk_mul_f32 {vr(v, 2)}, {h}, {h}")
                s(f"v_pk_mul_f32 {vr(t, 2)}, {h}, {vr(WR + e, 2)}")
                continue
            if e != 18:
                s(f"v_pk_add_f32 {vr(m, 2)}, {vr(m, 2)}, {h}")
            s(f"v_pk_fma_f32 {vr(v, 2)}, {h}, {h}, {vr(v, 2)}")
            s(f"v_pk_fma_f32 {vr(t, 2)}, {h}, {vr(WR + e, 2)}, {vr(t, 2)}")

    def router_consts():
        for e in range(0, 24, 2):
            if e == 0:
                s(f"v_pk_mul_f32 {vr(tU, 2)}, {vr(SB, 2)}, {vr(WR, 2)}")
            else:
                s(f"v_pk_fma_f32 {vr(tU, 2)}, {vr(SB + e, 2)}, {vr(WR + e, 2)}, {vr(tU, 2)}")
            s(f"v_pk_mul_f32 {vr(WR + e, 2)}, {vr(WR + e, 2)}, {vr(C1 + e, 2)}")
            if e == 2:
                s(f"v_pk_add_f32 {vr(c0, 2)}, {vr(WR, 2)}, {vr(WR + 2, 2)}")
            elif e:
                s(f"v_pk_add_f32 {vr(c0, 2)}, {vr(c0, 2)}, {vr(WR + e, 2)}")
        s(f"v_add_f32 v{cB}, v{tU}, v{tU + 1}")
        s(f"v_add_f32 v{cA}, v{c0}, v{c0 + 1}")
        red(s, [cA, cB], [tU, tU + 1], (8, 4, 2, 1), True, False)
        s(f"v_lshlrev_b32 v{kA}, 2, v{vTOK}")
        s(f"v_and_b32 v{kA}, 28, v{kA}")
        s(f"v_sub_u32 v{kT}, 2047, v{vTOK}")
    m, v, t = tM, tV, tT
    stamp(s, diag, 0)
    if diag:
        s("s_memrealtime s[72:73]")
    S0, S1 = OPT['s0'], OPT['s1']
    S2 = 'D0123'[len(S0 + S1):]
    assert S0 + S1 + S2 == 'D0123'
    ops = (part_loads(S0, sB1, 80) if OPT['nb'] else []) + part_loads(S1)
    p3 = OPT['p3']
    s(flag_store()[0])
    if p3:
        for x in flag_check(1):
            s(x)
        for op in ops[:p3]:
            emit_op(s, op)
    for dst, r in zip((GA, C1, SB, WR), RAW[1:5]):
        unp(dst, r)
    if OPT['t2'] == 1:
        s("Ltail_tour:")
    s("@vm ST3")
    s(flag_store()[1])
    stamp(s, diag, 1, True)
    if not p3:
        for x in flag_check(1):
            s(x)
    if OPT['f3']:
        assert S1 == 'D01'
        for op in ops[p3:]:
            emit_op(s, op)
        for x in fwrites:
            s(x)
        unp(X1, RAW[0])
        unp(GB, RAW[5])
        for x in flag_check(3):
            s(x)
        ops = part_loads('2')
        S1, S2 = 'D012', '3'
        for op in ops[:OPT['p4']]:
            emit_op(s, op)
        for x in flag_poll():
            s(x)
        for op in ops[OPT['p4']:]:
            emit_op(s, op)
    else:
        for op in ops[p3:OPT['p2']]:
            emit_op(s, op)
        for x in fwrites:
            s(x)
        unp(X1, RAW[0])
        unp(GB, RAW[5])
        for x in flag_poll():
            s(x)
        for op in ops[OPT['p2']:]:
            emit_op(s, op)
    assert OPT['wdp'] in (5, 6, 7) and not S0
    if OPT['wf'] == 0:
        weight_frags(s)
    if OPT['t2'] == 2:
        s("Ltail_tour:")
    router_consts()
    for c in S0:
        acc(c, 0, True, not OPT['nb'])
    pre = S1[:OPT['pa']]
    for c in pre:
        acc(c)
    stamp(s, diag, 2, True)
    for x in flag_check(2):
        s(x)
    stamp(s, diag, 1)
    stamp(s, diag, 3, True)
    for op in part_loads(S2):
        emit_op(s, op)
    s(f"s_movk_i32 s{sN}, 0x7ff")
    if OPT['wf'] == 1:
        weight_frags(s)
    stamp(s, diag, 4, True)
    if OPT['nb']:
        for c in S0:
            acc(c, 80, False)
    for c in (S1 + S2)[len(pre):]:
        acc(c)
    stamp(s, diag, 2)
    stamp(s, diag, 5, True)
    for r in (m, v, t):
        s(f"v_add_f32 v{r}, v{r}, v{r + 1}")
    red(s, [m, v, t], [m + 1, v + 1, t + 1], (8, 4, 2, 1), True, False)
    s(f"v_mul_f32 v{m}, 0x3ae38e39, v{m}")
    s(f"v_mul_f32 v{v}, 0x3ae38e39, v{v}")
    s(f"v_fma_f32 v{v}, -v{m}, v{m}, v{v}")
    s(f"v_add_f32 v{m}, v{m}, v{c0}")
    s(f"v_max_f32 v{v}, 0, v{v}")
    s(f"v_cvt_pk_bf16_f32 v{m}, v{m}, v{v}")
    s(f"v_and_b32 v{v}, 0xffff0000, v{m}")
    s(f"v_lshlrev_b32 v{m}, 16, v{m}")
    s(f"v_add_f32 v{v}, 0x3727c5ac, v{v}")
    s(f"v_sub_f32 v{m}, v{c0}, v{m}")
    rnd1(s, v)
    s(f"v_sqrt_f32 v{v}, v{v}")
    s(f"v_fmac_f32 v{t}, v{m}, v{cA}")
    rnd1(s, v)
    s(f"v_rcp_f32 v{v}, v{v}")
    s("s_mov_b32 exec_lo, 1")
    s("s_mov_b32 exec_hi, 1")
    s(f"v_fma_f32 v{t}, v{t}, v{v}, v{cB}")
    s(f"v_ashrrev_i32 v{tU}, 31, v{t}")
    s(f"v_or_b32 v{tU}, 0x80000000, v{tU}")
    s(f"v_xor_b32 v{t}, v{tU}, v{t}")
    s(f"v_min_u32 v{t}, 0xfffff000, v{t}")
    s(f"v_bfi_b32 v{t}, s{sN}, v{kT}, v{t}")
    s(f"ds_write_b32 v{kA}, v{t} offset:{L_KEY}")
    s("s_mov_b64 exec, -1")
    stamp(s, diag, 3)
    s(f"v_mul_f32 v{m}, v{m}, v{v}")
    s("@lgkm 0")
    s("s_barrier")
    stamp(s, diag, 4)


def h2_rows(s):
    m, v = tM, tV
    for e in range(0, 24, 2):
        s(f"v_pk_fma_f32 {vr(H + e, 2)}, {vr(H + e, 2)}, {vr(v, 2)}, {vr(m, 2)} op_sel_hi:[1,0,0]")
    for e in range(0, 24, 2):
        s(f"v_pk_fma_f32 {vr(H + e, 2)}, {vr(H + e, 2)}, {vr(C1 + e, 2)}, {vr(SB + e, 2)}")
    pack(s, PKH, H, 12)


def default_out(kept=False):
    s = Stream()
    T = GB
    X1 = 112 if kept else globals()['X1']
    if kept:
        unpack(s, X1, KEEP + 12, 12)
    unpack(s, H, KEEP if kept else PKH, 12)
    for e in range(0, 24, 2):
        s(f"v_pk_mul_f32 {vr(T + e, 2)}, {vr(T + e, 2)}, {vr(H + e, 2)}")
    pack(s, PKO, T, 12)
    unpack(s, T, PKO, 12)
    for e in range(0, 24, 2):
        s(f"v_pk_add_f32 {vr(T + e, 2)}, {vr(T + e, 2)}, {vr(X1 + e, 2)}")
    P2 = PKO + 12
    pack(s, P2, T, 12)
    s("v_and_b32 v30, 2, v1")
    s("v_cmp_ne_u32 vcc, 0, v30")
    s(f"v_mul_u32_u24 v30, 1152, v{vTOK}")
    s(f"v_add_u32 v{vX}, v30, v{vM}")
    s(f"v_add_u32 v{vX2}, v30, v{vM2}")
    for i in range(3):
        for h, qp in enumerate(("[0,2,0,2]", "[1,3,1,3]")):
            for e in range(2):
                s(f"v_mov_b32_dpp v{T + 4 * i + 2 * h + e}, v{P2 + 4 * i + 2 + e} quad_perm:{qp} row_mask:0xf bank_mask:0xf")
    for i in range(3):
        for h, qp in enumerate(("[0,2,0,2]", "[1,3,1,3]")):
            for e in range(2):
                s(f"v_cndmask_b32_dpp v{PKO + 4 * i + 2 * h + e}, v{P2 + 4 * i + e}, v{T + 4 * i + 2 * h + e}, vcc quad_perm:{qp} row_mask:0xf bank_mask:0xf")
    return fin(s)


KK, k1, k2, vKA, vKL = 96, 104, 105, 108, 109


def publish():
    s = Stream()
    s(f"v_mov_b32 v{vKL}, {L_KEY}")
    s(f"ds_read_b128 {vr(KK, 4)}, v{vKL}")
    s(f"ds_read_b128 {vr(KK + 4, 4)}, v{vKL} offset:16")
    s(f"s_lshl_b32 s{sC}, s2, 7")
    s(f"s_add_u32 s{sC}, s{sC}, {WS_KEY}")
    s("s_cmp_eq_u32 s3, 0")
    s(f"s_cselect_b32 s{sC}, s{sC}, {BIG}")
    top2_lane(s, KK, 8, k1, k2)
    s(f"buffer_store_dwordx2 {vr(k1, 2)}, v{vF}, {sr(SW, 4)}, s{sC} offen sc1")
    h2_rows(s)
    if True:
        s(f"v_and_b32 v106, 0x7ff, v{k1}")
        s(f"v_and_b32 v107, 0x7ff, v{k2}")
        s(f"v_cmp_eq_u32 vcc, v106, v{kT}")
        s(f"v_cmp_eq_u32 s[36:37], v107, v{kT}")
        s(f"v_mov_b32 v106, {BIG}")
        s("s_or_b64 vcc, vcc, s[36:37]")
        s(f"s_mov_b32 s{sC}, {WS_H2}")
        s("s_nop 0")
        s(f"v_cndmask_b32 v{vR}, v106, v{vR}, vcc")
        s(f"v_cndmask_b32 v{vR2}, v106, v{vR2}, vcc")
        for pk, o in ((PKH, 0),) if OPT['eo'] else ((PKH, 0), (PKX, 1152)):
            for i in range(3):
                s(f"buffer_store_dwordx4 {vr(pk + 4 * i, 4)}, v{vR2 if i == 2 else vR}, {sr(SW, 4)}, s{sC} offen offset:{o + 512 * i} sc1")
    return fin(s)


def route(diag):
    s = Stream()
    s(f"v_lshlrev_b32 v{vKA}, 7, v0")
    s(f"s_mov_b32 s{sC}, {WS_KEY}")
    s(f"s_lshl_b32 s36, s3, 3")
    s(f"v_mov_b32 v{vKL}, s36")
    s(f"s_mov_b32 s{sN}, {SPIN}")
    s("Ltail_pollk:")
    s(f"buffer_load_dwordx2 {vr(k1, 2)}, v{vKA}, {sr(SW, 4)}, s{sC} offen {OPT['pk']}")
    s(f"s_sub_u32 s{sN}, s{sN}, 1")
    s("s_cbranch_scc1 Ltail_gotk")
    s(f"v_max_u32 v106, v{k1}, v{k2}")
    s(f"v_cmp_eq_u32 vcc, -1, v106")
    s("s_cbranch_vccnz Ltail_pollk")
    s("Ltail_gotk:")
    s("s_waitcnt vmcnt(0)")
    if OPT['fine'] == 6:
        stamp(s, diag, 0)
    top2_wave(s, k1, k2, 106, 107, 110)
    s(f"ds_write_b64 v{vKL}, {vr(k1, 2)} offset:{L_SEL}")
    s(f"v_mov_b32 v{vKL}, {L_SEL}")
    if OPT['eo'] == 1:
        for t in x1_rows():
            s(t)
    s("@lgkm 0")
    s("s_barrier")
    s(f"ds_read_b128 {vr(KK, 4)}, v{vKL}")
    s(f"ds_read_b128 {vr(KK + 4, 4)}, v{vKL} offset:16")
    top2_lane(s, KK, 8, k1, k2)
    s(f"v_readfirstlane_b32 s{sK0}, v{k1}")
    s(f"v_readfirstlane_b32 s{sK1}, v{k2}")
    s(f"s_andn2_b32 s{sT0}, 0x7ff, s{sK0}")
    s(f"s_andn2_b32 s{sT1}, 0x7ff, s{sK1}")
    return fin(s)


def early_out():
    return [f"buffer_store_dwordx4 {vr(PKO + 4 * i, 4)}, v{vX2 if i == 2 else vX}, {sr(SO, 4)}, 0 offen offset:{512 * i} sc1" for i in range(3)]


def x1_rows():
    return [f"s_mov_b32 s36, {WS_X1}"] + [
        f"buffer_store_dwordx4 {vr(PKX + 4 * i, 4)}, v{vR2 if i == 2 else vR}, {sr(SW, 4)}, s36 offen offset:{512 * i} sc1" for i in range(3)]


def save_x1():
    return [f"v_mov_b32 v{KEEP + i}, v{PKH + i}" for i in range(12)] + [f"v_mov_b32 v{KEEP + 12 + i}, v{PKX + i}" for i in range(12)]


def store_out(s):
    s(f"v_cmp_ne_u32 vcc, s{sT0}, v{vTOK}")
    s(f"v_cmp_ne_u32 s[36:37], s{sT1}, v{vTOK}")
    s(f"v_mov_b32 v31, {BIG}")
    s("s_and_b64 vcc, vcc, s[36:37]")
    s("s_nop 1")
    s(f"v_cndmask_b32 v30, v31, v{vX2}, vcc")
    s(f"v_cndmask_b32 v31, v31, v{vX}, vcc")
    for i in range(3):
        s(f"buffer_store_dwordx4 {vr(PKO + 4 * i, 4)}, v{30 if i == 2 else 31}, {sr(SO, 4)}, 0 offen offset:{512 * i} {OPT['op']}")


def weight_frags(s):
    a, b, c, d, e = 56, 57, 61, 94, 95
    s(f"v_lshrrev_b32 v{a}, 2, v1")
    s(f"v_and_b32 v{b}, 3, v1")
    s(f"v_lshlrev_b32 v{b}, 3, v{b}")
    s("s_and_b32 s36, s3, 1")
    s("s_lshl_b32 s36, s36, 5")
    s(f"v_lshl_add_u32 v{c}, v{a}, 6, v{b}")
    s(f"v_add_u32 v{c}, s36, v{c}")
    s(f"s_mov_b32 s36, {L_WU}")
    s(f"s_mov_b32 s37, {L_WU2 - 14 * 2048}")
    s("s_cmp_lt_u32 s3, 2")
    s(f"s_cselect_b32 s36, {L_WG}, s36")
    s(f"s_cselect_b32 s37, {L_WG}, s37")
    s(f"v_add_u32 v{d}, s37, v{c}")
    s(f"v_add_u32 v{c}, s36, v{c}")
    s(f"v_mul_u32_u24 v{e}, 1152, v{a}")
    s("s_lshl_b32 s36, s3, 7")
    s(f"s_add_u32 s36, s36, {L_WD}")
    s(f"v_add3_u32 v{e}, v{e}, v{b}, s36")
    s("@lgkm 0")
    s("s_barrier")
    for k in range(18):
        for u in range(2):
            s(f"ds_read_b64_tr_b16 {ar(WF + 4 * k + 2 * u, 2)}, v{c if k < 14 else d} offset:{2048 * k + 1024 * u}")
    for z in range(3):
        for g in range(4):
            for u in range(2):
                s(f"ds_read_b64_tr_b16 {ar(DF + 16 * z + 4 * g + 2 * u, 2)}, v{e} offset:{18432 * u + 512 * z + 32 * g}")


def ffn_frags():
    s = Stream()
    s("v_lshlrev_b32 v13, 4, v1")
    s(f"v_add_u32 v13, {L_XCH}, v13")
    s(f"s_lshl_b32 s{sB}, s3, 10")
    s(f"v_add_u32 v14, s{sB}, v13")
    s("v_and_b32 v13, 0xffffff1f, v13")
    s("v_bfe_u32 v15, v1, 2, 2")
    for g in range(4):
        s(f"v_cmp_eq_u32 s[{52 + 2 * g}:{53 + 2 * g}], {g}, v15")
    s(f"s_mul_i32 s{sA}, s{sROLE}, 18")
    s(f"s_add_u32 s{sA}, s{sA}, s{sIDX}")
    s(f"s_lshl_b32 s{sA}, s{sA}, 9")
    s(f"s_mul_i32 s{sB}, s3, 73728")
    s(f"s_add_u32 s{sA}, s{sA}, s{sB}")
    s("v_lshlrev_b32 v15, 3, v1")
    s("s_cmp_lt_u32 s3, 2")
    s("s_cselect_b32 s36, 0xbfb8aa3b, 0")
    s("s_cselect_b32 s37, 1.0, 0")
    s("v_mov_b32 v40, s36")
    s("v_mov_b32 v41, s37")
    s("v_and_b32 v10, 1, v1")
    s("v_and_b32 v9, 48, v1")
    if OPT['hb']:
        s("s_mul_i32 s38, s3, 3072")
        s(f"s_add_u32 s38, s38, {L_HB}")
        s("v_lshl_add_u32 v11, v10, 9, v9")
        s("v_add_u32 v11, s38, v11")
        s("v_lshrrev_b32 v10, 5, v1")
        s("v_and_b32 v9, 31, v1")
        s("v_lshlrev_b32 v9, 4, v9")
    return fin(s)


def ffn(diag):
    s = Stream()
    s(f"s_mul_i32 s{sB}, s{sT0}, 2304")
    s(f"s_mul_i32 s{sC}, s{sT1}, 2304")
    s(f"s_sub_u32 s{sC}, s{sC}, s{sB}")
    s(f"v_mad_i32_i24 v10, v10, s{sC}, v9")
    s(f"s_add_u32 s{sC}, s{sB}, {WS_H2}")
    if OPT['hb']:
        s(f"v_add_u32 v10, s{sC}, v10")
        s(f"s_mov_b32 s{sN}, {SPIN_NAN}")
        s("Ltail_pollh:")
        s("s_mov_b32 exec_lo, 0xffffff")
        s("s_mov_b32 exec_hi, 0xffffff")
        for i in range(3):
            s(f"s_add_u32 m0, s38, {640 * i}")
            s(f"buffer_load_dwordx4 v10, {sr(SW, 4)}, 0 offen offset:{384 * i} sc1 lds", 'HB')
        s("s_mov_b64 exec, -1")
    else:
        s(f"v_add_u32 v10, s{sC}, v10")
        s(f"s_mov_b32 s{sN}, {SPIN_NAN}")
        s("Ltail_pollh:")
        s("s_mov_b32 exec_lo, 0x30003")
        s("s_mov_b32 exec_hi, 0x30003")
        for k in range(18):
            s(f"buffer_load_dwordx4 {ar(HB + 4 * k, 4)}, v10, {sr(SW, 4)}, 0 offen offset:{64 * k} sc1")
        s("s_mov_b64 exec, -1")
    if OPT['hb']:
        s("@vm HB")
        for k in range(18):
            s(f"ds_read_b128 {ar(HB + 4 * k, 4)}, v11 offset:{1024 * (k // 6) + 64 * (k % 6)}")
    for k in range(18):
        d = vr(16 + 4 * (k & 1), 4)
        s(f"{M16} {d}, {ar(WF + 4 * k, 4)}, {ar(HB + 4 * k, 4)}, {'0' if k < 2 else d}")
    s(f"s_sub_u32 s{sN}, s{sN}, 1")
    s("v_pk_add_f32 v[16:17], v[16:17], v[20:21]")
    s("v_pk_add_f32 v[18:19], v[18:19], v[22:23]")
    s("s_cbranch_scc1 Ltail_goth")
    s("v_cmp_u_f32 vcc, v16, v16")
    s("s_and_b32 s36, vcc_lo, 3")
    s("s_cbranch_scc1 Ltail_pollh")
    s("Ltail_goth:")
    stamp(s, diag, 2, 6)
    stamp(s, diag, 6)
    G, Uu, E = 16, 24, 32
    pack(s, E, G, 2)
    unpack(s, G, E, 2)
    for e in (0, 2):
        s(f"v_pk_mul_f32 {vr(E + e, 2)}, {vr(G + e, 2)}, {vr(40, 2)} op_sel_hi:[1,0]")
    for e in range(4):
        s(f"v_exp_f32 v{E + e}, v{E + e}")
    for e in range(4):
        s(f"v_fma_f32 v{E + e}, v{E + e}, v41, 1.0")
    for e in range(4):
        s(f"v_rcp_f32 v{E + e}, v{E + e}")
    for e in (0, 2):
        s(f"v_pk_mul_f32 {vr(G + e, 2)}, {vr(G + e, 2)}, {vr(E + e, 2)}")
    pack(s, E, G, 2)
    unpack(s, G, E, 2)
    s("ds_write_b128 v14, v[16:19]")
    s("@lgkm 0")
    s("s_barrier")
    stamp(s, diag, 3, 6)
    for w in (0, 2, 1, 3):
        s(f"ds_read_b128 {vr(G + 4 * w, 4)}, v13 offset:{1024 * w}")
    for h in range(2):
        for e in (4 * h, 4 * h + 2):
            s(f"v_pk_mul_f32 {vr(G + e, 2)}, {vr(G + e, 2)}, {vr(Uu + e, 2)}")
        pack(s, E + 2 * h, G + 4 * h, 2)

    def mask(g, e):
        s(f"v_cndmask_b32 v{64 + 4 * g + e}, 0, v{E + e}, s[{52 + 2 * g}:{53 + 2 * g}]")
    for e in range(4):
        mask(0, e)
    for g in range(4):
        for z in range(3):
            d = vr(16 + 4 * z, 4)
            s(f"{M16} {d}, {vr(64 + 4 * g, 4)}, {ar(DF + 16 * z + 4 * g, 4)}, {'0' if g == 0 else d}")
            if g < 3 and z < 2:
                mask(g + 1, 2 * z)
                mask(g + 1, 2 * z + 1)
    for z in range(3):
        for e in range(2):
            s(f"v_min_u32 v{16 + 4 * z + e}, -2, v{16 + 4 * z + e}")
        s(f"buffer_store_dwordx2 {vr(16 + 4 * z, 2)}, v15, {sr(SY, 4)}, s{sA} offen sc1")
        if z < 2:
            s(f"s_add_u32 s{sA}, s{sA}, {4 * 73728}")
    stamp(s, diag, 4, 6)
    s("s_or_b32 s36, s2, s3")
    s(f"s_cselect_b32 s37, -4, {WS_EPOCH}")
    s("s_add_u32 s36, s94, 1")
    s("v_mov_b32 v106, s36")
    s(f"buffer_store_dword v106, v{vF}, {sr(SW, 4)}, s37 offen sc1")
    return fin(s)


def final(diag):
    s = Stream()
    s(f"s_mul_i32 s{sA}, s{sROLE}, 9")
    s(f"s_add_u32 s{sA}, s{sA}, s{sIDX}")
    s("v_bfe_u32 v8, v1, 2, 1")
    s("v_cmp_eq_u32 vcc, 1, v8")
    s(f"v_mov_b32 v9, s{sT0}")
    s(f"v_mov_b32 v10, s{sT1}")
    s("v_and_b32 v11, 3, v1")
    s("v_cndmask_b32 v9, v9, v10, vcc")
    s(f"s_lshr_b32 s{sB}, s{sA}, 2")
    s(f"s_lshl_b32 s{sB}, s{sB}, 6")
    s(f"s_and_b32 s{sC}, s{sA}, 1")
    s(f"s_lshl_b32 s{sC}, s{sC}, 5")
    s(f"s_add_u32 s{sB}, s{sB}, s{sC}")
    s(f"s_and_b32 s{sC}, s{sA}, 2")
    s(f"s_lshl_b32 s{sC}, s{sC}, 2")
    s(f"s_add_u32 s{sB}, s{sB}, s{sC}")
    s("v_lshrrev_b32 v12, 1, v11")
    s(f"v_lshl_add_u32 v12, v12, 4, s{sB}")
    s("v_and_b32 v13, 1, v11")
    s("v_lshl_add_u32 v12, v13, 2, v12")
    s("v_mul_u32_u24 v13, 1152, v9")
    s("v_lshl_add_u32 v14, v13, 1, v12")
    s(f"v_add_u32 v15, {WS_H2}, v14")
    s(f"s_mov_b32 s{sC}, {WS_MODP + 5 * 1152}")
    s(f"buffer_load_dword v18, v12, {sr(SW, 4)}, s{sC} offen sc1")
    s(f"v_mov_b32 v19, s{sK0}")
    s(f"v_mov_b32 v10, s{sK1}")
    s("v_cndmask_b32 v19, v19, v10, vcc")
    s("v_and_b32 v19, 0xfffff800, v19")
    s("v_or_b32 v19, 0x400, v19")
    s("v_ashrrev_i32 v10, 31, v19")
    s("v_not_b32 v10, v10")
    s("v_or_b32 v10, 0x80000000, v10")
    s("v_xor_b32 v19, v19, v10")
    s(f"s_lshl_b32 s{sC}, s{sA}, 4")
    s(f"v_lshl_add_u32 v13, v11, 2, v13")
    s(f"v_add_u32 v13, s{sC}, v13")
    s("v_lshrrev_b32 v14, 2, v1")
    s("v_lshlrev_b32 v14, 9, v14")
    s("v_lshl_add_u32 v14, v11, 4, v14")
    s(f"s_lshr_b32 s{sB}, s{sA}, 3")
    s(f"s_mul_i32 s{sB}, s{sB}, 73728")
    s(f"s_and_b32 s{sC}, s{sA}, 7")
    s(f"s_lshl_b32 s{sC}, s{sC}, 6")
    s(f"s_add_u32 s{sB}, s{sB}, s{sC}")
    s("v_cmp_eq_u32 s[38:39], 1, v8")
    rnd1(s, 19)
    s("v_mul_f32 v19, 0xbfb8aa3b, v19")
    s("v_exp_f32 v19, v19")
    unpack(s, 24, 18, 1)
    s("v_add_f32 v19, 1.0, v19")
    s("v_rcp_f32 v19, v19")
    s(f"s_mov_b32 s{sN}, {SPIN}")
    rnd1(s, 19)
    Y = 64
    if OPT['ys']:
        s(f"s_add_u32 s{sC}, s{sB}, {8192 * 8}")
        if OPT['ys'] == 2:
            s("s_mov_b64 exec, 0xffff")
        s("Ltail_polly0:")
        s(f"buffer_load_dwordx4 {vr(Y, 4)}, v14, {sr(SY, 4)}, s{sC} offen {OPT['py']}")
        s(f"s_sub_u32 s{sN}, s{sN}, 1")
        s("s_cbranch_scc1 Ltail_polly1")
        s(f"v_cmp_eq_u32 vcc, -1, v{Y}")
        s("s_cbranch_vccnz Ltail_polly0")
        s("Ltail_polly1:")
        s("s_mov_b64 exec, -1")
        s(f"s_mov_b32 s{sN}, {SPIN}")
        s("@drain")
    stamp(s, diag, 5, 6)
    s("Ltail_polly:")
    for i in range(9):
        s(f"s_add_u32 s{sC}, s{sB}, {8192 * i}")
        s(f"buffer_load_dwordx4 {vr(Y + 4 * i, 4)}, v14, {sr(SY, 4)}, s{sC} offen {OPT['py']}")
    s(f"s_mov_b32 s{sC}, {WS_X1 - WS_H2}")
    s(f"buffer_load_dword v16, v15, {sr(SW, 4)}, s{sC} offen sc1")
    s(f"buffer_load_dword v17, v15, {sr(SW, 4)}, 0 offen sc1")
    s(f"s_sub_u32 s{sN}, s{sN}, 1")
    s("s_cbranch_scc1 Ltail_goty")
    s(f"v_max3_u32 v26, v{Y}, v{Y + 1}, v{Y + 2}")
    for i in range(3, 35, 2):
        s(f"v_max3_u32 v26, v26, v{Y + i}, v{Y + i + 1}")
    s(f"v_max_u32 v26, v26, v{Y + 35}")
    s(f"v_max3_u32 v26, v26, v16, v17")
    s("v_cmp_eq_u32 vcc, -1, v26")
    s("s_cbranch_vccnz Ltail_polly")
    s("Ltail_goty:")
    s("@drain")
    stamp(s, diag, 6, 6)
    stamp(s, diag, 6)
    unpack(s, 20, 16, 2)
    for i in range(1, 9):
        for e in (0, 2):
            s(f"v_pk_add_f32 {vr(Y + e, 2)}, {vr(Y + e, 2)}, {vr(Y + 4 * i + e, 2)}")
    red(s, [Y, Y + 1, Y + 2, Y + 3], [Y + 4, Y + 5, Y + 6, Y + 7], (4, 8), True, True)
    s(f"v_cndmask_b32 v26, v{Y}, v{Y + 1}, s[38:39]")
    s(f"v_cndmask_b32 v27, v{Y + 2}, v{Y + 3}, s[38:39]")

    def r2():
        pack(s, 28, 26, 1); unpack(s, 26, 28, 1)
    r2()
    s("v_mul_f32 v26, v26, v19")
    s("v_mul_f32 v27, v27, v19")
    r2()
    s("v_pk_add_f32 v[26:27], v[26:27], v[22:23]")
    r2()
    s("v_pk_mul_f32 v[26:27], v[26:27], v[24:25]")
    r2()
    s("v_pk_add_f32 v[26:27], v[26:27], v[20:21]")
    pack(s, 28, 26, 1)
    s("s_mov_b64 exec, 0xff")
    s(f"buffer_store_dword v28, v13, {sr(SO, 4)}, 0 offen {OPT['fp']}")
    return fin(s)


def body(a, diag, fdma, emit_op):
    for t in publish():
        a(t)
    d = Stream()
    for op in fdma:
        emit_op(d, op)
    d = fin(d)
    w = OPT['wdp']
    if OPT['eo'] == 2:
        a(f"s_cmp_ge_u32 s{sIDX}, 18")
        a("s_cbranch_scc1 Ltail_idle")
        for t in x1_rows() + (d if w == 2 else []) + (default_out() if OPT['so'] == 0 else save_x1()) + ffn_frags() + route(diag):
            a(t)
    else:
        for t in default_out() + early_out():
            a(t)
        a(f"s_cmp_ge_u32 s{sIDX}, 18")
        a("s_cbranch_scc1 Ltail_idle")
        for t in d + ffn_frags() + route(diag):
            a(t)
    stamp(a, diag, 5)
    stamp(a, diag, 1, 6)
    for t in ffn(diag):
        a(t)
    if OPT['eo'] == 2:
        s = Stream(); store_out(s)
        for t in (default_out(True) if OPT['so'] else []) + fin(s):
            a(t)
    a(f"s_cmp_lt_u32 s{sIDX}, 9")
    a("s_cselect_b32 s36, s3, 0")
    a(f"s_cmp_lg_u32 s36, {OPT['fw']}")
    a("s_cbranch_scc1 Ltail_done")
    for t in final(diag):
        a(t)
    a("s_branch Ltail_done")
    a("Ltail_idle:")
    if OPT['eo'] == 2:
        for t in default_out() + early_out():
            a(t)
    a("s_waitcnt vmcnt(0)")
    for t in x1_rows():
        a(t)
    if OPT['wb']:
        a(f"s_cmp_eq_u32 s{sIDX}, 31")
        a("s_cselect_b32 s36, s3, 1")
        a("s_cmp_lg_u32 s36, 0")
        a("s_cbranch_scc1 Ltail_done")
        a("buffer_wbl2 sc1")
    a("Ltail_done:")


def dump_stamps(a, n, region):
    a("s_waitcnt vmcnt(0)")
    stamp(a, True, n - 1)
    a("s_waitcnt lgkmcnt(0)")
    a("s_mov_b64 exec, -1")
    a.srd(SX, pWS, 1024 * 64, region)
    a("s_lshl_b32 s36, s2, 2")
    a("s_add_u32 s36, s36, s3")
    a("s_lshl_b32 s36, s36, 6")
    a("v_mov_b32 v2, 0")
    for i in range(n):
        a(f"v_mov_b32 v3, s{60 + 2 * i}")
        a(f"buffer_store_dword v3, v2, {sr(SX, 4)}, s36 offen offset:{4 * i}")
```

```python
import re, sys, subprocess, tempfile
from dsl import *
from sched import Stream
import tail, head

M16 = 'v_mfma_f32_16x16x32_bf16'
KAD = 8
TA = (12, 20, 28)
DK, DV, DQ, DO = 36, 40, 42, 46
IDX, HV, ONES, STV = 50, 51, 52, 56
RL = 58
Q = 64
ACC = 128
P = 128
NEGM = 192
S = 208
TMP = 216
OBT = (128, 144, 192, 176)
OACC = 192
PK = 224
O = 0
HF = 0
AF = (208, 160)
VF = 160
L = 192
KF = 208
sK, sV, sW, sCNT, sWQ, sWO, sH, sPART, sPASS, sT = 40, 41, 42, 43, 44, 45, 46, 47, 48, 49
SRD_K, SRD_V, SRD_Q, SRD_O, SRD_H, SRD_P, SRD_C = 8, 12, 16, 20, 24, 28, 32
SRD_T, sTCH, sTCH2, TV, TV2 = (32, 80, 84), 39, 38, 57, 62
sFG, sFD, sF = 58, 59, 57
FV, FV2, FW = 254, 255, 51
sWOa, sWOb, sPD, sPR, sOX, sXF, sSAME = 7, 46, 56, 93, 55, 54, 53
sTO, sFM = 52, 6
sAR, AD, AV = 53, 248, 232
SRD_M, sMW = 16, 44
MC, MW, MR, MU, MA = 2, 7, 240, 244, 224
XV, XID = 252, 253
OAC, BUF = 64, 64
sH1 = 43
SRD_D, sEP, sTAG = 88, 94, 95
CNT = 63
QSCALE = 0x3e0293ee
THR = 0x63800000
MOFF = 0xc1c00000
FLAG_LDS = 131072


def tr(dst, base, db, off):
    w = base >> 16
    return f"ds_read_b64_tr_b16 {ar(dst, 2)}, v{TA[w] + db} offset:{(base & 0xffff) + off}"


def dma(voff, srd, soff, p):
    o = f" offset:{1024 * p}" if p else ""
    if srd in (SRD_K, SRD_V) and OPT['kv']:
        o += ' ' + OPT['kv']
    return f"buffer_load_dwordx4 v{voff}, {sr(srd, 4)}, s{soff} offen{o} lds"


def m0(base):
    return f"s_add_u32 m0, s{sW}, {base}"


def tile_ops(kind, base, tag, soff_expr=None):
    ops = []
    for p in range(4):
        pre = []
        if p == 0:
            if soff_expr:
                pre.append(soff_expr)
            pre.append(m0(base))
        if kind == 'K':
            t = dma(DK + p, SRD_K, sK, p)
        elif kind == 'V':
            t = dma(DV + (p & 1), SRD_V, sV, p)
        elif kind == 'Q':
            t = dma(DQ + p, SRD_Q, sT, p)
        else:
            t = dma(DO + p, SRD_O, sT, p)
        post = []
        if p == 3 and kind == 'K':
            post.append(f"s_add_u32 s{sK}, s{sK}, 16384")
        if p == 3 and kind == 'V':
            post.append(f"s_add_u32 s{sV}, s{sV}, 16384")
        ops.append((pre, t, tag, post))
    return ops


def k_tile(k):
    return tile_ops('K', (k % 4) * 16384, f'K{k}')


def v_tile(k):
    return tile_ops('V', 65536 + (k % 4) * 16384, f'V{k}')


def qreg(c):
    return ((c + 1) % 5) * 32768


def qpos(p):
    if p < 5 or not OPT['ab']:
        return [(0, p), (1, p)]
    return [((p - 5) >> 1, 5 + 2 * ((p - 5) & 1) + t) for t in range(2)]


def wq_tile(p, tau):
    hh, c = qpos(p)[tau]
    return tile_ops('Q', qreg(p) + 16384 * tau, f'WQ{p}', f"s_add_u32 s{sT}, s{sWQ}, {c * 64 * 8192 + 256 * hh}")


def oreg(c):
    return (0, 2, 1, 3)[c % 4] * 32768


class _Pos:
    def __getitem__(self, p):
        if OPT['o3']:
            return [(0, None), (0, 0), (0, 1), (0, 2), (1, 0), (1, 1), (1, 2), (0, 3), (1, 3)][p]
        return [(0, None), (0, 0), (0, 1), (1, 0), (1, 1), (0, 2), (1, 2), (0, 3), (1, 3)][p]


POS = _Pos()


def wo_tile(p, tau):
    src, c = POS[p]
    base, col = (sWO, 1024) if c is None else ((sWOa, sWOb)[src], 256 * c)
    return tile_ops('O', oreg(p) + 16384 * tau, f'WO{p}', f"s_add_u32 s{sT}, s{base}, {64 * tau * 1152 + col}")


def h_loads(c):
    ops = []
    for tt in range(2):
        for ks in range(2):
            ops.append(([], f"buffer_load_dwordx4 {ar(HF + 16 * c + 8 * ks + 4 * tt, 4)}, v{HV}, {sr(SRD_H, 4)}, s{sH1 if tt else sH} offen offset:{128 * (2 * c + ks)} sc1", f'H{c}', []))
    return ops


def emit_op(s, op):
    pre, t, tag, post = op
    for x in pre:
        s(x)
    s(t, tag)
    for x in post:
        s(x)


class Gaps:
    def __init__(self):
        self.m = []

    def add(self, text):
        self.m.append(dict(m=text, salu=[], ds=[], vm=[], valu=[], tail=[]))
        return len(self.m) - 1

    def put(self, i, kind, text, tag=None):
        self.m[i][kind].append((text, tag))

    def put_op(self, i, op):
        pre, t, tag, post = op
        for j, x in enumerate(pre):
            self.put(i - len(pre) + j, 'salu', x)
        self.put(i, 'vm', t, tag)
        for x in post:
            self.put(min(i + 1, len(self.m) - 1), 'salu' if i + 1 < len(self.m) else 'tail', x)

    def emit(self, s):
        for i, g in enumerate(self.m[:-1]):
            if OPT['clr'] and g['m'] and g['vm'] and g['ds']:
                self.m[i + 1]['ds'] = g['ds'] + self.m[i + 1]['ds']
                g['ds'] = []
        for g in self.m:
            if g['m']:
                s(g['m'])
            for kind in ('salu', 'ds', 'vm', 'valu', 'tail'):
                for text, tag in g[kind]:
                    s(text, tag)


def stamp(s, diag, i, fine=False):
    if diag and ((OPT['fine'] != 0) == fine or i in (0, 9)):
        s(f"s_memtime {sr(60 + 2 * i, 2)}")


def setup(s):
    s(f"s_lshl_b32 s{sW}, s3, 12")
    s("v_lshrrev_b32 v2, 4, v1")
    s("v_and_b32 v3, 15, v1")
    s("v_lshrrev_b32 v5, 1, v3")
    s("v_mul_u32_u24 v5, 2304, v5")
    s("v_lshl_add_u32 v5, v2, 5, v5")
    s("v_and_b32 v6, 1, v3")
    s(f"v_lshl_add_u32 v{HV}, v6, 4, v5")
    s("s_lshl_b32 s6, s5, 2")
    s("s_add_u32 s6, s6, s3")
    s(f"s_mul_i32 s{sH}, s6, 36864")
    s(f"s_add_u32 s{sH}, s{sH}, {WS_H}")
    s(f"s_add_u32 s{sH1}, s{sH}, 18432")
    s(f"s_mul_i32 s{sWO}, s4, {256 * 1152}")
    s("s_lshl_b32 s7, s3, 4")
    s("v_add_u32 v4, s7, v2")
    s("v_lshlrev_b32 v5, 1, v2")
    s("v_xor_b32 v5, v5, v3")
    s("v_xor_b32 v6, 8, v5")
    s("v_lshlrev_b32 v7, 13, v4")
    s(f"v_lshl_add_u32 v{DQ}, v5, 4, v7")
    s(f"v_lshl_add_u32 v{DQ + 1}, v6, 4, v7")
    s(f"v_add_u32 v{DQ + 2}, {2 * (32768 - 1024)}, v{DQ}")
    s(f"v_add_u32 v{DQ + 3}, {3 * (32768 - 1024)}, v{DQ + 1}")
    s(f"v_add_u32 v{DQ + 1}, {32768 - 1024}, v{DQ + 1}")
    s("s_lshl_b32 s7, s4, 19")
    s(f"s_add_u32 s{SRD_K}, s52, s7")
    s(f"s_addc_u32 s{SRD_K + 1}, s53, 0")
    s(f"s_mov_b32 s{SRD_K + 2}, 524288")
    s(f"s_mov_b32 s{SRD_K + 3}, 0x20000")
    s(f"s_add_u32 s{SRD_V}, s54, s7")
    s(f"s_addc_u32 s{SRD_V + 1}, s55, 0")
    s(f"s_mov_b32 s{SRD_V + 2}, 524288")
    s(f"s_mov_b32 s{SRD_V + 3}, 0x20000")
    a = Asm()
    a.srd(SRD_P, 50, PART_BYTES, WS_PART)
    s(a.text())
    s("v_lshlrev_b32 v7, 8, v4")
    s(f"v_lshl_add_u32 v{DV}, v5, 4, v7")
    s(f"v_lshl_add_u32 v{DV + 1}, v6, 4, v7")
    s(f"v_xor_b32 v{TMP + 8}, v3, v2")
    s(f"v_lshl_add_u32 v{DK}, v{TMP + 8}, 4, v7")
    for p in range(1, 4):
        s(f"v_xor_b32 v{DK + p}, {64 * p}, v{DK}")
    for e, ch in ((0, 5), (1, 6)):
        s(f"v_lshrrev_b32 v7, 3, v{ch}")
        s("v_lshl_add_u32 v7, v7, 7, v4")
        s("v_mul_u32_u24 v7, 1152, v7")
        s(f"v_and_b32 v{TMP + 9}, 7, v{ch}")
        s(f"v_lshl_add_u32 v{DO + e}, v{TMP + 9}, 4, v7")
    s(f"v_add_u32 v{DO + 2}, {2 * (4608 - 1024)}, v{DO}")
    s(f"v_add_u32 v{DO + 3}, {3 * (4608 - 1024)}, v{DO + 1}")
    s(f"v_add_u32 v{DO + 1}, {4608 - 1024}, v{DO + 1}")
    s("v_lshlrev_b32 v7, 8, v3")
    s(f"v_lshl_add_u32 v{KAD}, v{TMP + 8}, 4, v7")
    for k in range(1, 4):
        s(f"v_xor_b32 v{KAD + k}, {64 * k}, v{KAD}")
    s("v_lshrrev_b32 v5, 2, v1")
    s("v_and_b32 v6, 7, v5")
    s("v_lshlrev_b32 v6, 5, v6")
    s("v_lshl_add_u32 v6, v5, 8, v6")
    s("v_and_b32 v7, 3, v1")
    s(f"v_lshl_add_u32 v{TA[0]}, v7, 3, v6")
    for db in range(1, 8):
        s(f"v_xor_b32 v{TA[0] + db}, {32 * db}, v{TA[0]}")
    for w in (1, 2):
        for db in range(8):
            s(f"v_add_u32 v{TA[w] + db}, {65536 * w}, v{TA[0] + db}")
    if OPT['l2']:
        s("v_cmp_gt_u32 s[36:37], 2, v3")
        s("v_mov_b32 v5, 0x3f803f80")
        s("s_nop 0")
        for i in range(4):
            s(f"v_cndmask_b32 v{ONES + i}, 0, v5, s[36:37]")
    else:
        for i in range(4):
            s(f"v_mov_b32 v{ONES + i}, 0x3f803f80")
    s("v_and_b32 v5, 1, v1")
    s("v_mul_u32_u24 v5, 0xaaaa, v5")
    s("v_add_u32 v5, 0x4444, v5")
    s(f"v_lshl_add_u32 v{IDX}, v5, 16, v5")
    s("v_lshrrev_b32 v5, 1, v3")
    s(f"v_mul_u32_u24 v5, {PAIR}, v5")
    s("v_lshl_add_u32 v5, v2, 5, v5")
    s("v_and_b32 v6, 1, v3")
    s(f"v_lshl_add_u32 v{STV}, v6, 4, v5")
    s(f"s_mul_i32 s{sPART}, s6, {16 * PAIR}")
    a = Asm()
    a.srd(SRD_T[0], 82, SZ['wu'])
    a.srd(SRD_T[1], 80, SZ['wg'])
    a.srd(SRD_T[2], 84, SZ['wd'])
    s(a.text())
    s("s_lshr_b32 s7, s2, 3")
    s("s_mul_i32 s7, s7, 18")
    s("s_add_u32 s7, s7, s3")
    s("s_and_b32 s36, s2, 7")
    s("s_mul_i32 s37, s36, 576")
    s("s_add_u32 s37, s37, s7")
    s("s_mul_i32 s37, s37, 1152")
    s("s_mul_i32 s7, s7, 9216")
    s("s_mul_i32 s36, s36, 1152")
    s("s_add_u32 s7, s7, s36")
    s("v_min_u32 v5, 17, v1")
    s(f"v_lshl_add_u32 v{TV}, v5, 6, s7")
    s(f"v_lshl_add_u32 v{TV2}, v5, 6, s37")
    s(f"s_mov_b32 s{sK}, 0")
    s(f"s_mov_b32 s{sV}, 0")
    s(f"s_mov_b32 s{sPASS}, 0")


def qproj(s, diag):
    def rd(n, r):
        c, d = divmod(n, 16)
        ks, u = r >> 1, r & 1
        return tr(VF + 8 * (n % 4) + 4 * ks + 2 * u, qreg(c) + 16384 * (d >> 3), d & 7, 8192 * ks + 4096 * u)
    if OPT['fine'] == 5:
        s("s_memtime s[60:61]")
    s("@vm WQ0")
    s("s_barrier")
    for n in range(3):
        for r in range(4):
            s(rd(n, r))
    me = sys.modules[__name__]
    if OPT['sv']:
        for x in head.h_probe(me):
            s(x)
        s("s_cbranch_vccnz Lhead_again")
        s("Lhead_valid:")
        stamp(s, diag and OPT['fine'] == 1, 8, True)
    else:
        for op in h_loads(1):
            emit_op(s, op)
    G = Gaps()
    for n in range(144):
        hh, c = qpos(n >> 4)[(n >> 3) & 1]
        d = 8 * hh + (n & 7)
        order = [(0, 0), (0, 1), (1, 0), (1, 1)]
        if OPT['sn'] & 2:
            order = [(n & 1, 0), (n & 1, 1), (~n & 1, 1), (~n & 1, 0)]
        for x, (tt, ks) in enumerate(order):
            acc = vr(ACC + 8 * d + 4 * tt, 4)
            cin = '0' if (c == 0 and x % 2 == 0) else acc
            i = G.add(f"{M16} {acc}, {ar(VF + 8 * (n % 4) + 4 * ks, 4)}, {ar(HF + 16 * c + 8 * ks + 4 * tt, 4)}, {cin}")
            if n + 3 < 144:
                G.put(i, 'ds', rd(n + 3, x))
    last = -9
    hq = [op for c in range(3, 9) for op in h_loads(c)]
    for c in range(9):
        b = 64 * c
        if c < 8:
            G.put(b + 51, 'tail', f"@vm WQ{c + 1}")
            G.put(b + 51, 'tail', "s_barrier")
        start = -9
        me = sys.modules[__name__]
        tch = head.touch_ops(me)
        if c == 0:
            start = 3
            ops = (wq_tile(2, 0) + wq_tile(2, 1) if OPT['nq2'] == 2 else []) + ([] if OPT['sv'] else h_loads(2)) + (tch if OPT['kt'] == 0 else tch[:1])
            if OPT['sv']:
                ops.insert(-1, ([], head.h_poll(me), None, []))
                G.put(OPT['hc'] - 2, 'valu', f"v_cmp_ne_u32 vcc, s{sTAG}, v{head.vT + 3}")
                G.put(OPT['hc'], 'tail', "s_cbranch_vccnz Lhead_hspin")
                G.put(OPT['hc'], 'tail', "Lhead_goth:")
        elif c <= 6:
            start = max(-9, OPT['qs'] - OPT['qd'] * (c - 1))
            ops = wq_tile(c + 2, 0) + wq_tile(c + 2, 1) if c + 2 >= OPT['nq2'] else []
            n_h = int(OPT['hd'][c - 1]) if OPT['ab'] else 4
            ops += [hq.pop(0) for _ in range(n_h)]
            if c == OPT['kt']:
                ops += tch[1:]
            if c == 6:
                ops += head.arm_ops(me)
        elif c == 7:
            ops = k_tile(0) + k_tile(1)
        else:
            ops = k_tile(2) + v_tile(0) + v_tile(1)
        step = 4 if len(ops) < 16 else 3
        for j, op in enumerate(ops):
            assert b + start + step * j > last + 2
            assert not (OPT['sv'] and op[2] and op[2][0] == 'H' and b + start + step * j <= OPT['hc'])
            G.put_op(b + start + step * j, op)
        last = b + start + step * (len(ops) - 1)
    assert not hq
    rest = []
    if OPT['ab']:
        G.put(64 * 6 + 30, 'salu', f"s_mov_b32 s36, {QSCALE}")
        g = 0
        for sx in range(4):
            g = max(g, 64 * 6 + 32 + 8 * sx + 11)
            for x in q_pack(0, sx, False):
                while g < 576 and (G.m[g]['vm'] or G.m[g - 1]['vm'] or len(G.m[g]['valu']) + len(G.m[g]['ds']) + (568 <= g <= 572) >= 2):
                    g += 1
                if g < 576:
                    G.put(g, 'valu', x)
                else:
                    rest.append(x)
    if OPT['fine'] == 5:
        for c in range(8):
            G.put(64 * c + 1, 'tail', f"s_memtime {sr(62 + 2 * c, 2)}")
        G.put(575, 'tail', "s_memtime s[78:79]")
    G.put(64 * 8 + 55, 'tail', "@vm K0")
    G.put(64 * 8 + 55, 'tail', "s_barrier")
    for k in range(4):
        G.put(64 * 8 + 56 + k, 'ds', kread(0, 0, k))
    G.put(64 * 8 + 60, 'ds', kread(0, 1, 0))
    G.put(64 * 8 + 62, 'salu', f"s_load_dwordx2 {sr(SRD_M, 2)}, s[0:1], {KA['wmod']}")
    G.emit(s)
    for x in rest:
        s(x)


def kread(k, kb, sidx):
    return f"ds_read_b128 {ar(KF + 16 * (kb & 1) + 4 * sidx, 4)}, v{KAD + sidx} offset:{(k % 4) * 16384 + 4096 * kb}"


def q_pack(hh, sx, pk):
    o = []
    for tt in range(2):
        for y in range(2):
            a0 = ACC + 8 * (8 * hh + 2 * sx + y) + 4 * tt
            if pk:
                o += [f"v_pk_mul_f32 {vr(a0 + 2 * e, 2)}, {vr(a0 + 2 * e, 2)}, s[36:37]" for e in range(2)]
            else:
                o += [f"v_mul_f32 v{a0 + e}, s36, v{a0 + e}" for e in range(4)]
    if pk:
        o.append(None)
    for tt in range(2):
        q = Q + 16 * (2 * hh + tt) + 4 * sx
        for y in range(2):
            a0 = ACC + 8 * (8 * hh + 2 * sx + y) + 4 * tt
            o += [f"v_cvt_pk_bf16_f32 v{q + 2 * y + e}, v{a0 + 2 * e}, v{a0 + 2 * e + 1}" for e in range(2)]
    if pk:
        o.append(None)
    for sw in ('v_permlane32_swap_b32', 'v_permlane16_swap_b32'):
        for tt in range(2):
            q = Q + 16 * (2 * hh + tt) + 4 * sx
            o += [f"{sw} v{q + e}, v{q + 2 + e}" for e in range(2)]
    return o


def qfinish(s):
    s(f"s_mov_b32 s36, {QSCALE}")
    s(f"s_mov_b32 s37, {QSCALE}")
    for e in range(4):
        s(f"v_mov_b32 v{RL + e}, 0")
    z = [f"v_mfma_f32_32x32x16_bf16 {ar(r, 16)}, {vr(RL, 4)}, {vr(RL, 4)}, 0" for r in list(range(O, O + 128, 16)) + [L]]
    for hh in range(1 if OPT['ab'] else 0, 2):
        for sx in range(4):
            for x in q_pack(hh, sx, True):
                if x is not None:
                    s(x)
                elif z:
                    s(z.pop(0))
    return z


def cross_max_to_negm(s, M, off='0'):
    for sw in ('v_permlane16_swap_b32', 'v_permlane32_swap_b32'):
        for qb in range(4):
            s(f"v_mov_b32 v{M + 4 + qb}, v{M + qb}")
        for qb in range(4):
            s(f"{sw} v{M + qb}, v{M + 4 + qb}")
        for qb in range(4):
            s(f"v_max_f32 v{M + qb}, v{M + qb}, v{M + 4 + qb}")
    for qb in range(4):
        for i in range(4):
            s(f"v_sub_f32 v{NEGM + 4 * qb + i}, {off}, v{M + qb}")


def prepass(s, z):
    s("@lgkm 0")
    for qb in range(4):
        for sx in range(4):
            d = vr(TMP + 4 * qb, 4)
            s(f"{M16} {d}, {ar(KF + 4 * sx, 4)}, {vr(Q + 16 * qb + 4 * sx, 4)}, {'0' if sx == 0 else d}")
    for x in z:
        s(x)
    M = TMP + 16
    for qb in range(4):
        t = TMP + 4 * qb
        s(f"v_max3_f32 v{M + qb}, v{t}, v{t + 1}, v{t + 2}")
        s(f"v_max_f32 v{M + qb}, v{M + qb}, v{t + 3}")
    cross_max_to_negm(s, M, MOFF)


def interval_ops(k):
    a = k_tile(k + 2) if k + 2 <= 31 else None
    b = v_tile(k + 1) if k + 1 <= 31 else None
    if k == 30:
        a = wo_tile(0, 0)
    if k == 31:
        a, b = wo_tile(0, 1), wo_tile(1, 0)
    if k == 32:
        a, b = wo_tile(1, 1), wo_tile(2, 0)
    return a + b


def rowsum(k, q2):
    return f"v_smfmac_f32_16x16x64_bf16 {ar(L + 4 * q2, 4)}, {vr(ONES, 4)}, {vr(P + 32 * ((k - 1) & 1) + 8 * q2, 8)}, v{IDX}"


def ob(tt, ks):
    return OBT[ks & 3] + 4 * (2 * (ks >> 2) + tt)


def norm_tile(n):
    db, qb = divmod(n, 4)
    hh, tt, t, y = qb >> 1, qb & 1, db >> 1, db & 1
    tmp = S + 4 * (n & 1)
    ops = [(f"v_accvgpr_read_b32 v{tmp + e}, a{O + 4 * n + e}", None) for e in range(4)]
    ops += [(f"v_pk_mul_f32 {vr(tmp + 2 * e, 2)}, {vr(tmp + 2 * e, 2)}, {vr((RL + qb) & ~1, 2)} op_sel:[0,{qb & 1}] op_sel_hi:[1,{qb & 1}]", None) for e in range(2)]
    d = ob(tt, 4 * hh + t) + 2 * y
    ops += [(f"v_cvt_pk_bf16_f32 v{d + e}, v{tmp + 2 * e}, v{tmp + 2 * e + 1}", None) for e in range(2)]
    if y:
        pre, st, tag, _ = o_store(8 * tt + 4 * hh + t)
        ops += [(pre[0], None), (st, tag)]
    return ops


def stage(s, k):
    G = Gaps()
    qk, pv = k <= 31, k >= 1
    gi = {}
    for i in range(16):
        kb, qb = i >> 2, i & 3
        for sx in range(4):
            d = vr(S + 4 * (i & 1), 4)
            t = f"{M16} {d}, {ar(KF + 16 * (kb & 1) + 4 * sx, 4)}, {vr(Q + 16 * qb + 4 * sx, 4)}, {vr(NEGM + 4 * qb, 4) if sx == 0 else d}"
            if k == 32 and i == 0 and sx < 3:
                gi[i, sx] = G.add(rowsum(k, sx))
                continue
            gi[i, sx] = G.add(t if qk else None)
        db = i >> 1
        for x in range(4):
            q2, t = 2 * (i & 1) + (x >> 1), (x ^ (x >> 1 if OPT['sn'] & 1 else 0)) & 1
            d = ar(O + 16 * db + 4 * q2, 4)
            tx = f"{M16} {d}, {ar(VF + 8 * (db % 4) + 4 * t, 4)}, {vr(P + 32 * ((k - 1) & 1) + 8 * q2 + 4 * t, 4)}, {d}"
            gi[i, 4 + x] = G.add(tx if pv else None)
        lq = ({1: 0, 3: 1, 5: 2, 7: 3} if OPT['sg'] else {2: 0, 4: 1, 6: 2, 8: 3}) if qk else {0: 3}
        if pv and i in lq:
            q2 = lq[i]
            gi[i, 8] = G.add(rowsum(k, q2))
    for i in range(16):
        Gx = 16 * k + i
        T = Gx - 1
        if 0 <= T < 512:
            tk, ti = divmod(T, 16)
            kb, qb = ti >> 2, ti & 3
            sb = S + 4 * (ti & 1)
            for e in range(4):
                G.put(gi[i, min(e + 1, 3) if k == 0 and OPT['z0'] else e], 'valu', f"v_exp_f32 v{sb + e}, v{sb + e}")
            pd = P + 32 * (tk & 1) + 8 * qb + 2 * kb
            if OPT['x'] & 512:
                G.put(gi[i, 4], 'valu', f"v_perm_b32 v{pd}, v{sb + 1}, v{sb}, s101")
                G.put(gi[i, 6], 'valu', f"v_perm_b32 v{pd + 1}, v{sb + 3}, v{sb + 2}, s101")
            else:
                G.put(gi[i, 4], 'valu', f"v_cvt_pk_bf16_f32 v{pd}, v{sb}, v{sb + 1}")
                G.put(gi[i, 6], 'valu', f"v_cvt_pk_bf16_f32 v{pd + 1}, v{sb + 2}, v{sb + 3}")
        B, sx = divmod(Gx + 5, 4)
        if B < 128:
            if k == 0 and OPT['z0'] and i < 13:
                G.put(gi[i + 1, 0], 'ds', kread(B >> 2, B & 3, sx))
            else:
                G.put(gi[i, 6], 'ds', kread(B >> 2, B & 3, sx))
        D, t = divmod(Gx + 3 - 16, 2)
        if 0 <= D < 256:
            vk, db = divmod(D, 8)
            for u in range(2):
                G.put(gi[i, 4 + u], 'ds', tr(VF + 8 * (db % 4) + 4 * t + 2 * u, 65536 + (vk % 4) * 16384, db, 8192 * t + 4096 * u))
        if OPT['lw'] == 0:
            if qk and (pv or i == 15) and i % 2 == 1:
                G.put(gi[i, 7], 'salu', "@lgkm 3")
        elif qk and (pv or i == 14) and i % 2 == 0:
            G.put(gi[i, 0], 'salu', "@lgkm 3")
    if k >= 1:
        for j, op in enumerate(interval_ops(k)):
            if j >= 3:
                place(G, gi, 2 * (j - 3) + 1, op)
    if k <= 31:
        for j, op in enumerate(interval_ops(k + 1)[:3]):
            place(G, gi, 11 + 2 * j, op)
    if 1 <= k <= 28:
        if OPT['x'] & 128:
            pass
        elif k % 4 == 1:
            G.put(gi[2, 2], 'salu', f"s_mov_b32 m0, s{sFM}")
            G.put(gi[2, 7], 'vm', dma(FV, SRD_T[0], sF, 0).replace(' lds', ' ' + OPT['fnt'] + ' lds'), 'T')
            G.put(gi[4, 1], 'salu', f"s_add_u32 s{sFM}, s{sFM}, 4096")
            G.put(gi[4, 2], 'salu', f"s_add_u32 s{sF}, s{sF}, {64 * 9216}")
        elif k % 4:
            d = k % 4 == 3
            G.put(gi[12, 7], 'vm', f"buffer_load_dword v{TMP + k % 4}, v{TV2 if d else TV}, {sr(SRD_T[k % 4 - 1], 4)}, s{sTCH2 if d else sTCH} offen", 'T')
        else:
            G.put(gi[13, 1], 'salu', f"s_sub_u32 s{sTCH}, s{sTCH}, {4 * 9216}")
            G.put(gi[13, 2], 'salu', f"s_sub_u32 s{sTCH2}, s{sTCH2}, {4 * 1152}")
    if k == 0:
        G.put(gi[6, 7], 'salu', f"s_mov_b32 s{sTCH}, {24 * 9216}")
        G.put(gi[6, 7], 'salu', f"s_mov_b32 s{sTCH2}, {24 * 1152}")
    if k == 0:
        G.put(gi[15, 2], 'salu', f"s_mul_i32 s37, s5, 18432")
        G.put(gi[15, 3], 'salu', f"s_add_u32 s37, s37, s{sWO}")
        for x in (f"v_min_u32 v{TMP + 20}, 143, v0", f"v_lshl_add_u32 v{TMP + 20}, v{TMP + 20}, 7, s37",
                  f"v_mul_u32_u24 v{TMP + 19}, 24, v0", f"v_lshrrev_b32 v{TMP + 19}, 8, v{TMP + 19}",
                  f"v_lshl_add_u32 v{TMP + 19}, v{TMP + 19}, 7, s37"):
            G.put(gi[15, 5], 'valu', x)
    if k % 4 == 3 and k <= 28:
        G.put(gi[14, 7], 'vm', f"buffer_load_dword v{TMP + 5}, v{TMP + 19}, {sr(SRD_O, 4)}, 0 offen", 'T')
        G.put(gi[15, 5], 'valu', f"v_add_u32 v{TMP + 19}, {20 * 128}, v{TMP + 19}")
    if k == OPT['wot']:
        G.put(gi[6, 7], 'vm', f"buffer_load_dword v{TMP + 5}, v{TMP + 20}, {sr(SRD_O, 4)}, 0 offen", 'T')
    if k == 0:
        G.put(gi[14, 5], 'valu', f"v_min_u32 v{TMP + 21}, 19, v1")
        G.put(gi[14, 5], 'valu', f"v_lshl_add_u32 v{TMP + 21}, v{TMP + 21}, 7, s36")
        G.put(gi[14, 5], 'valu', f"v_lshl_add_u32 v{TMP + 22}, v1, 7, s36")
        G.put(gi[14, 3], 'salu', f"s_mov_b32 s{sTO}, s{sOX}")
        for x in (f"s_mov_b32 s{sF}, s{sFG}", f"s_lshl_b32 s{sFM}, s3, 10", f"s_add_u32 s{sFM}, s{sFM}, {tail.L_WU}",
                  "s_lshr_b32 s37, s2, 3", f"s_mul_i32 s37, s37, {-14 * 9216}", f"s_add_u32 s37, s37, {448 * 9216}"):
            G.put(gi[13, 5], 'salu', x)
        G.put(gi[14, 7], 'vm', f"buffer_load_dword v{TMP + 1}, v{TV}, {sr(SRD_T[0], 4)}, s37 offen", 'T')
    if OPT['oxt'] & 1 and k % 4 == 0 and 1 <= k <= 28:
        G.put(gi[12, 7], 'vm', f"buffer_load_dword v{TMP}, v{TMP + 21}, {sr(SRD_P, 4)}, s{sTO} offen", 'T')
        G.put(gi[13, 3], 'salu', f"s_add_u32 s{sTO}, s{sTO}, {18 * 128}")
    if OPT['oxt'] & 4 and k == 0:
        G.put(gi[14, 6], 'tail', f"s_add_u32 s{sTO}, s36, {19 * 128}")
    if OPT['oxt'] & 4 and 1 <= k <= 28:
        if k % 4 == 3:
            G.put(gi[0, 5], 'valu', f"v_min_u32 v{TMP + 21}, s{sTO}, v{TMP + 22}")
            G.put(gi[0, 7], 'vm', f"buffer_load_dword v{TMP + 4}, v{TMP + 21}, {sr(SRD_P, 4)}, s{sOX} offen", 'T')
            G.put(gi[1, 5], 'valu', f"v_add_u32 v{TMP + 21}, 8192, v{TMP + 22}")
            G.put(gi[2, 5], 'valu', f"v_min_u32 v{TMP + 21}, s{sTO}, v{TMP + 21}")
        if k % 4 == 0:
            G.put(gi[12, 7], 'vm', f"buffer_load_dword v{TMP}, v{TMP + 21}, {sr(SRD_P, 4)}, s{sOX} offen", 'T')
            G.put(gi[13, 3], 'salu', f"s_add_u32 s{sTO}, s{sTO}, {18 * 128}")
    if OPT['oxt'] & 8 and k in (29, 30):
        if k == 29:
            G.put(gi[2, 8], 'valu', f"v_lshl_add_u32 v{TMP + 22}, v1, 7, v{TMP + 22}")
        G.put(gi[12, 7], 'vm', f"buffer_load_dword v{TMP + 23 - 5 * (k - 29)}, v{TMP + 22}, {sr(SRD_P, 4)}, s{sOX} offen offset:{128 * (k - 29)}", 'T')
    if OPT['oxt'] & 2:
        for j, (kk, i) in enumerate({0: ((29, 12), (31, 12)), 1: ((29, 12), (30, 12)), 2: ((29, 2), (29, 12)), 3: ((29, 2), (30, 6))}[OPT['rt']]):
            if k == kk:
                G.put(gi[i, 3], 'salu', f"s_add_u32 s37, s{sOX}, {8192 * j}")
                G.put(gi[i, 7], 'vm', f"buffer_load_dword v{TMP + 23 - 5 * j}, v{TMP + 22}, {sr(SRD_P, 4)}, s37 offen", 'T')
    need = []
    if k + 1 <= 31:
        need.append(f'K{k + 1}')
    if k <= 31:
        need.append(f'V{k}')
    if k == 32:
        need.append('WO0')
    if k == 0:
        o, v = ffn_setup()
        for j, x in enumerate(o + v):
            for y in (x if isinstance(x, tuple) else (x,)):
                if j < len(o):
                    G.put(gi[j // 4, j % 4], 'salu', y)
                elif OPT['z0'] and 's36' not in y and j - len(o) < 20:
                    jj = j - len(o)
                    G.put(gi[0, jj >> 1] if jj < 8 else gi[jj - 7, 0], 'valu', y)
                else:
                    G.put(gi[13, 4], 'valu', y)
    if 29 <= k <= 31:
        for j, i in enumerate((0, 4, 8, 14)):
            n = 4 * (k - 29) + j
            if not OPT['x'] & 256:
                pre, t, tag, _ = ffn_load(n)
                G.put(gi[i, 3], 'salu', pre[0])
                G.put(gi[i, 7], 'vm', t, tag)
    if k == 30:
        G.put(gi[0, 5], 'valu', f"v_mov_b32 v{CNT}, 0")
        G.put(gi[2, 7], 'vm', f"buffer_load_dword v{XID}, v{CNT}, {sr(SRD_H, 4)}, s{sXF} offen offset:12 sc1", 'T')
    if OPT['cl'] and k == 0:
        for x in ("s_lshr_b32 s36, s2, 3", "s_lshl_b32 s36, s36, 7", f"v_lshrrev_b32 v{TMP + 17}, 5, v0", f"v_lshl_add_u32 v{TMP + 17}, v{TMP + 17}, 12, s36"):
            G.put(gi[15, 6], 'tail', x)
    if OPT['cl'] and 1 <= k <= 28 and k % 4 == 4 - OPT['cl']:
        G.put(gi[0, 2], 'salu', "s_getpc_b64 s[36:37]")
        G.put(gi[0, 7], 'vm', f"global_load_dword v{TMP + 4}, v{TMP + 17}, s[36:37] offset:4092", 'T')
    if k == OPT['ct']:
        for j, x in enumerate((f"s_getpc_b64 {sr(SRD_M, 2)}", "Lattn_pc2:", f"s_mov_b32 s{SRD_M + 2}, Lattn_redo-Lattn_pc2",
                               "s_lshr_b32 s37, s2, 3", "s_lshl_b32 s37, s37, 7")):
            G.put(gi[5, 0] if j < 2 else gi[5 + (j > 3), (j - 1) % 3], 'salu', x)
        G.put(gi[4, 8], 'valu', f"v_lshrrev_b32 v{TMP + 6}, 5, v0")
        G.put(gi[5, 5], 'valu', f"v_lshlrev_b32 v{TMP + 6}, 12, v{TMP + 6}")
        G.put(gi[6, 7], 'vm', f"buffer_load_dword v{TMP + 6}, v{TMP + 6}, {sr(SRD_M, 4)}, s37 offen", 'T')
    if OPT['fine'] == 7 and k >= 29:
        G.put(gi[0, 4], 'tail', f"s_memtime {sr(60 + 4 * (k - 29), 2)}")
        G.put(gi[8, 4], 'tail', f"s_memtime {sr(62 + 4 * (k - 29), 2)}")
        if k == 32:
            G.put(gi[15, 7], 'tail', "s_memtime s[76:77]")
    late_mod(G, gi, k)
    if k == 32:
        lfinish(G, gi)
    G.put(gi[10, 7], 'tail', f"@vm {','.join(need)} force")
    G.put(gi[10, 7], 'tail', "s_barrier")
    if k == 32:
        G.put(gi[11, 6], 'ds', f"ds_read_b128 {vr(TMP + 8, 4)}, v{TMP + 12}")
        for j, op in enumerate(wo_tile(2, 1) + wo_tile(3, 0)):
            i, sl = divmod(j, 2)
            G.put_op(gi[12 + i, 5 + 2 * sl], op)
    G.emit(s)


def place(G, gi, i, op):
    pre, t, tag, post = op
    for j, x in enumerate(pre):
        G.put(gi[i, 1 + j], 'salu', x)
    G.put(gi.get((i, 8), gi[i, 7]) if OPT['sg'] == 2 else gi[i, 7], 'vm', t, tag)
    for x in post:
        G.put(gi[i + 1, 1], 'salu', x)


def lfinish(G, gi):
    ops = []
    for qb in range(4):
        ops.append(f"v_accvgpr_read_b32 v{TMP + 2 * qb}, a{L + 4 * qb}")
        ops.append(f"v_accvgpr_read_b32 v{TMP + 2 * qb + 1}, a{L + 4 * qb + 1}")
    for qb in range(4):
        ops.append(f"v_add_f32 v{RL + qb}, v{TMP + 2 * qb}, v{TMP + 2 * qb + 1}")
    if OPT['l2']:
        for sw in ('v_permlane16_swap_b32', 'v_permlane32_swap_b32'):
            for qb in range(4):
                ops.append(f"v_mov_b32 v{TMP + qb}, v{RL + qb}")
            for qb in range(4):
                ops.append(f"{sw} v{RL + qb}, v{TMP + qb}")
    ops.append(f"v_add_f32 v{TMP}, v{RL}, v{RL + 1}")
    ops.append(f"v_add_f32 v{TMP + 1}, v{RL + 2}, v{RL + 3}")
    ops.append(f"v_add_f32 v{TMP}, v{TMP}, v{TMP + 1}")
    ops.append(f"v_cmp_ngt_f32 vcc, {THR}, v{TMP}")
    for qb in range(4):
        ops.append(f"v_rcp_f32 v{RL + qb}, v{RL + qb}")
    ops.append(f"v_mov_b32 v{TMP + 12}, {FLAG_LDS}")
    ops.append("s_or_b32 s36, vcc_lo, vcc_hi")
    ops.append(f"v_mov_b32 v{TMP + 2}, s36")
    ops.append(f"s_lshl_b32 s38, s3, 2")
    ops.append(f"v_add_u32 v{TMP + 3}, s38, v{TMP + 12}")
    ops.append(f"ds_write_b32 v{TMP + 3}, v{TMP + 2}")
    assert not OPT['l2']
    slots = [gi[i, sl] for i in (1, 2, 3) for sl in (4, 5, 5, 6, 6, 7, 7)][1:] + [gi[i, sl] for i in (4, 5, 6) for sl in (4, 5)]
    for n in range(OPT['ne']):
        for o, tag in norm_tile(n):
            G.put(gi[16 - OPT['ne'] // 2 + (n >> 1), 6 + (n & 1)], 'valu', o, tag)
    assert len(ops) <= len(slots), (len(ops), len(slots))
    for o, g in zip(ops, slots):
        G.put(g, 'valu', o, 'FLAG')
    G.put(gi[10, 7], 'tail', "@ds FLAG")


def oread(n, r):
    c, nb = divmod(n, 4)
    ks, u = r >> 1, r & 1
    hh, t = ks >> 2, ks & 3
    return tr(AF[n & 1] + 4 * ks + 2 * u, oreg(c) + 16384 * (t >> 1), 4 * hh + nb, 8192 * (t & 1) + 4096 * u)


def normalize(s):
    s(f"v_or3_b32 v{TMP + 8}, v{TMP + 8}, v{TMP + 9}, v{TMP + 10}")
    s(f"v_or_b32 v{TMP + 8}, v{TMP + 8}, v{TMP + 11}")
    s(f"v_readfirstlane_b32 s36, v{TMP + 8}")
    s(f"v_readfirstlane_b32 s38, v{XID}")
    s(f"v_min_u32 v{tail.vF}, 1, v1")
    s(f"v_lshlrev_b32 v{tail.vF}, 31, v{tail.vF}")
    s(f"v_mov_b32 v{tail.vZ}, s{sTAG}")
    s(f"s_getreg_b32 s39, hwreg(HW_REG_XCC_ID, 0, 4)")
    s("s_lshl_b32 s39, s39, 28")
    s(f"s_xor_b32 s39, s39, s{sTAG}")
    s("s_cmp_eq_u32 s38, s39")
    s(f"s_cselect_b32 s{sSAME}, {0 if OPT['x'] & 4 else 1}, 0")
    for r in range(16):
        s(oread(0, r))
    s(f"s_andn2_b32 s36, s36, s{sPASS}")
    s("s_cbranch_scc1 Lattn_redo")
    for n in range(OPT['ne'], 32):
        for o, tag in norm_tile(n):
            s(o, tag)


FP = [('g', i) for i in range(9)] + [('u', 7), ('u', 8), ('d', 0)]


def freg(n):
    return 128 + 4 * n if n < 8 else 240 + 4 * (n - 8)


def wd_dma(i):
    return ([f"s_add_u32 s{sF}, s{sFD}, {i * 4096}", f"s_add_u32 m0, s{sFM}, {tail.L_WD + 4096 * i - tail.L_WU - 7 * 4096}"],
            dma(FV2, SRD_T[2], sF, 0), 'F', [])


def ffn_load(n):
    m, i = FP[n]
    if m == 'd':
        srd_, v, so = SRD_T[2], FV2, f"s{sFD}, {i * 4096}"
    else:
        srd_, v, so = SRD_T[1 if m == 'g' else 0], FV, f"s{sFG}, {i * 64 * 9216}"
    return ([f"s_add_u32 s{sF}, {so}"], f"buffer_load_dwordx4 {ar(freg(n), 4)}, v{v}, {sr(srd_, 4)}, s{sF} offen", 'F', [])


def ffn_write(n):
    m, i = FP[n]
    if m == 'g':
        v, off = FW, 4096 * i
    elif m == 'u':
        v, off = (FW, tail.L_WU - tail.L_WG + 4096 * i) if i < 7 else (FV2, tail.L_WU2 + 4096 * (i - 7))
    else:
        v, off = FV2, tail.L_WD + 4096 * i
    return f"ds_write_b128 v{v}, {ar(freg(n), 4)} offset:{off}"


def mod_block(d, bad):
    return [f"s_lshr_b32 s{d}, s2, 5", f"s_lshl_b32 s{d}, s{d}, 3", f"s_and_b32 s{bad}, s2, 7", f"s_add_u32 s{d}, s{d}, s{bad}",
            f"s_lshl_b32 s{d}, s{d}, 2", f"s_bfe_u32 s{bad}, s2, 0x20003", f"s_add_u32 s{d}, s{d}, s{bad}", f"s_add_u32 s{d}, s{d}, 72",
            (f"s_cmp_lt_u32 s{d}, 216", f"s_cselect_b32 s{bad}, 0, {tail.BIG}")]


def late_mod(G, gi, k):
    def fill(ops, i0, i1, kind='valu'):
        slots = []
        for i in range(i0, i1):
            if kind == 'salu':
                slots += [gi[i, x] for x in (0, 1, 2, 3) if not G.m[gi[i, x]]['salu']]
                continue
            if not G.m[gi[i, 5]]['valu']:
                slots.append(gi[i, 5])
            if i % 2 == 0 and i != 10 and not G.m[gi[i, 7]]['vm']:
                slots += [gi[i, 7]] * 2
        assert len(slots) >= len(ops), (k, len(slots), len(ops))
        for g, x in zip(slots, ops):
            for y in (x if isinstance(x, tuple) else (x,)):
                G.put(g, kind, y)
    t0, t1, t2 = MU, MU + 1, MU + 2
    if 1 <= k <= 28:
        if k % 4 == 1 and not OPT['x'] & 16:
            G.put(gi[14, 7], 'vm', f"buffer_load_dwordx4 {vr(MR, 4)}, v{MW}, {sr(SRD_M, 4)}, s{sMW} offen", 'T')
            G.put(gi[15, 3], 'salu', f"s_add_u32 s{sMW}, s{sMW}, {128 * 6912}")
        if k % 4 == 2 and not OPT['x'] & 32:
            G.put(gi[14, 7], 'vm', f"buffer_store_dwordx4 {vr(AD, 4)}, v{AV}, {sr(SRD_H, 4)}, s{sAR} offen sc1", 'T')
            G.put(gi[15, 3], 'salu', f"s_add_u32 s{sAR}, s{sAR}, 656")
        if k % 4 == 0 and not OPT['x'] & 64:
            ops = []
            for e in range(4):
                a, b = MU + 2 * (e & 1), MU + 2 * (e & 1) + 1
                ops += [f"v_lshlrev_b32 v{a}, 16, v{MR + e}", f"v_and_b32 v{b}, 0xffff0000, v{MR + e}",
                        f"v_fmac_f32 v{MA + 2 * e}, v{MC}, v{a}", f"v_fmac_f32 v{MA + 2 * e + 1}, v{MC}, v{b}"]
            ops += [f"v_mov_b32 v{MC + i}, v{MC + i + 1}" for i in range(4)]
            fill(ops, 0, 16)
    if k == 29:
        ops = [f"v_permlane32_swap_b32 v{MA + e}, v{MA + 4 + e}" for e in range(4)]
        ops += [f"v_add_f32 v{MA + e}, v{MA + e}, v{MA + 4 + e}" for e in range(4)]
        ops += [f"v_and_b32 v{t0}, 1, v1"]
        ops += [f"v_permlane16_swap_b32 v{MA + e}, v{MA + 2 + e}" for e in range(2)]
        ops += [f"v_lshlrev_b32 v{t0}, 5, v{t0}"]
        ops += [f"v_add_f32 v{MA + e}, v{MA + e}, v{MA + 2 + e}" for e in range(2)]
        ops += [f"v_lshrrev_b32 v{t1}, 4, v1", f"v_lshl_add_u32 v{t0}, v{t1}, 3, v{t0}"]
        fill(ops, 0, 16)
        fill(["s_lshl_b32 s38, s3, 6", f"s_add_u32 s38, s38, {FLAG_LDS + 64}"], 0, 2, 'salu')
    if k == 30:
        ops = []
        for ro in (2, 4, 8):
            ops += [f"v_add_f32_dpp v{MA + e}, v{MA + e}, v{MA + e} row_ror:{ro} row_mask:0xf bank_mask:0xf" for e in range(2)]
        ops += [f"v_add_u32 v{t0}, s38, v{t0}", f"v_and_b32 v{t1}, 7, v1"]
        fill(ops, 1, 8)
        G.put(gi.get((8, 8), gi[8, 5]), 'ds', f"ds_write_b64 v{t0}, {vr(MA, 2)}", 'MW')
        G.put(gi[10, 7], 'tail', "@ds MW")
        fill([f"v_lshlrev_b32 v{t1}, 3, v{t1}", f"v_add_u32 v{t1}, {FLAG_LDS + 64}, v{t1}"], 8, 10)
        for w in range(4):
            G.put(gi[11 + w, 5], 'ds', f"ds_read_b64 {vr(MA + 2 * w, 2)}, v{t1} offset:{64 * w}")
        fill(mod_block(39, 43) + [f"s_or_b32 s43, s43, s{sPASS}", f"s_and_b32 s43, s43, {tail.BIG}", "s_sub_u32 s36, s39, 144",
                                  ("s_cmp_lt_u32 s36, 36", "s_cselect_b32 s36, 1.0, 0"), f"s_lshr_b32 s{sMW}, s39, 1", f"s_lshl_b32 s{sMW}, s{sMW}, 6",
                                  "s_and_b32 s39, s39, 1", "s_lshl_b32 s39, s39, 3", f"s_add_u32 s39, s39, s{sMW}",
                                  f"s_add_u32 s39, s39, {WS_MODP}", "s_or_b32 s39, s39, s43"], 2, 16, 'salu')
    if k == 31:
        ops = [f"v_add_f32 v{MA + e}, v{MA + e}, v{MA + 4 + e}" for e in range(4)]
        ops += [f"v_add_f32 v{MA + e}, v{MA + e}, v{MA + 2 + e}" for e in range(2)]
        ops += [f"v_cvt_pk_bf16_f32 v{t2}, v{MA}, v{MA + 1}", f"v_lshlrev_b32 v{MA}, 16, v{t2}", f"v_and_b32 v{MA + 1}, 0xffff0000, v{t2}",
                f"v_add_f32 v{MA}, s36, v{MA}", f"v_add_f32 v{MA + 1}, s36, v{MA + 1}", f"v_cvt_pk_bf16_f32 v{t2}, v{MA}, v{MA + 1}",
                f"v_lshrrev_b32 v{t0}, 1, v0", f"v_lshlrev_b32 v{t0}, 4, v{t0}", f"v_and_b32 v{t1}, 1, v0", f"v_lshl_add_u32 v{t0}, v{t1}, 2, v{t0}",
                f"v_lshrrev_b32 v{t1}, 3, v0", f"v_min_u32 v{t1}, 1, v{t1}", f"v_lshl_or_b32 v{t0}, v{t1}, 31, v{t0}"]
        fill(ops, 0, 16)
    if k == 32:
        G.put(gi[0, 7], 'vm', f"buffer_store_dword v{t2}, v{t0}, {sr(SRD_H, 4)}, s39 offen sc1", 'MS')
        for j, x in enumerate((f"v_min_u32 v{MR}, 1, v0", f"v_lshlrev_b32 v{MR}, 31, v{MR}", f"v_mov_b32 v{MR + 1}, 1")):
            G.put(gi[7 + j, 4], 'valu', x)


def ffn_setup():
    o = ["s_lshr_b32 s6, s2, 3", "s_and_b32 s7, s2, 7", "s_mul_i32 s7, s7, 18", "s_add_u32 s7, s7, s6",
         f"s_lshl_b32 s{sFG}, s7, 6", f"s_mul_i32 s{sFD}, s7, 36864",
         ("s_cmp_lt_u32 s6, 18", f"s_cselect_b32 s7, 0, {tail.BIG}"),
         f"s_or_b32 s{sFG}, s{sFG}, s7", f"s_or_b32 s{sFD}, s{sFD}, s7"]
    v = [f"v_lshrrev_b32 v{FW}, 2, v0", f"v_mul_u32_u24 v{FW}, 9216, v{FW}", f"v_and_b32 v{FV}, 3, v0",
         f"v_lshl_add_u32 v{FV}, v{FV}, 4, v{FW}", f"v_lshlrev_b32 v{FV2}, 4, v0", f"v_add_u32 v{FW}, {tail.L_WG}, v{FV2}"]
    o += ["s_and_b32 s7, s4, 1", "s_lshl_b32 s6, s7, 7",
          "s_xor_b32 s36, s4, 1", f"s_mul_i32 s36, s36, {256 * 1152}", f"s_add_u32 s{sWOb}, s36, s6",
          "s_lshl_b32 s36, s4, 8", f"s_add_u32 s{sPD}, s{sPART}, s36",
          "s_lshr_b32 s36, s4, 1", "s_lshl_b32 s36, s36, 11", "s_lshl_b32 s7, s7, 8", "s_add_u32 s36, s36, s7",
          f"s_add_u32 s{sPR}, s{sPART}, s36",
          "s_lshr_b32 s36, s4, 1", "s_lshl_b32 s36, s36, 4", "s_add_u32 s36, s36, s5", "s_lshl_b32 s36, s36, 9", "s_add_u32 s36, s36, s7",
          "s_lshl_b32 s36, s36, 8", f"s_add_u32 s{sOX}, s36, {OX}",
          f"s_add_u32 s{sWOa}, s{sWO}, s6", f"s_xor_b32 s{sXF}, s{tail.sFL}, 128", "s_lshl_b32 s36, s3, 14"]
    v += [f"v_lshl_add_u32 v{XV}, v1, 4, s36"]
    o = mod_block(sMW, 37) + [f"s_lshl_b32 s{sMW}, s{sMW}, 5", f"s_or_b32 s{sMW}, s{sMW}, s37", f"s_mov_b32 s{SRD_M + 2}, {SZ['wmod']}"] + o
    v += [f"v_mov_b32 v{MA + e}, 0" for e in range(8)]
    o = [f"s_lshl_b32 s{sAR}, s5, 4", f"s_add_u32 s{sAR}, s{sAR}, s4", f"s_lshl_b32 s{sAR}, s{sAR}, 2", f"s_add_u32 s{sAR}, s{sAR}, s3",
         f"s_mul_i32 s{sAR}, s{sAR}, 4608", f"s_add_u32 s{sAR}, s{sAR}, {WS_H2}"] + o
    v += [f"v_mov_b32 v{AD + e}, -1" for e in range(4)] + [f"v_min_u32 v{AV}, 41, v1", f"v_lshlrev_b32 v{AV}, 4, v{AV}"]
    return o, v


def o_store(f):
    pre = [f"s_add_u32 s37, s{sOX}, {4096 * (f >> 2)}"]
    return (pre, f"buffer_store_dwordx4 {vr(ob(f >> 3, f & 7), 4)}, v{XV}, {sr(SRD_P, 4)}, s37 offen offset:{1024 * (f & 3)} {OPT['ox']}", 'OS', [])


def o_load(f):
    pre = [f"s_add_u32 s37, s{sOX}, {4096 * (f >> 2)}"] if f % 4 == 0 else []
    return (pre, f"buffer_load_dwordx4 {ar(BUF + 4 * f, 4)}, v{XV}, {sr(SRD_P, 4)}, s37 offen offset:{1024 * (f & 3)} {OPT['ol']}", 'OL', [])


def oproj(s):
    G = Gaps()

    def acc(n, tt):
        c = POS[n >> 2][1]
        if c == 2 and OPT['o3']:
            return (160, 168, 208, 216)[n & 3] + 4 * tt
        return OAC + 32 * (1 if c is None else c & 1) + 8 * (n & 3) + 4 * tt
    for n in range(36):
        src, c = POS[n >> 2]
        for tt in range(2):
            for x in range(8):
                ks = 7 - x if tt and OPT['sn'] & 4 else x
                d = vr(acc(n, tt), 4)
                b = ar(BUF + 32 * tt + 4 * ks, 4) if src else vr(ob(tt, ks), 4)
                i = G.add(f"{M16} {d}, {ar(AF[n & 1] + 4 * ks, 4)}, {b}, {'0' if x == 0 and src == 0 else d}")
                if n + 1 < 36:
                    G.put(i, 'ds', oread(n + 1, 8 * tt + x))
    for _ in range(8):
        G.add(None)
    for n in range(36):
        src, c = POS[n >> 2]
        if c is not None and src == 0:
            continue
        for tt in range(2):
            e0 = 16 * n + 8 * tt + 8 + 4
            a0 = acc(n, tt)
            pk = PK + 8 * ((n >> 1) & 1) + 4 * tt + 2 * (n & 1)
            G.put(e0, 'valu', f"v_cvt_pk_bf16_f32 v{pk}, v{a0}, v{a0 + 1}")
            G.put(e0 + 1, 'valu', f"v_cvt_pk_bf16_f32 v{pk + 1}, v{a0 + 2}, v{a0 + 3}")
            if n & 1:
                base, off = (sPD, 16384) if c is None else (sPR, 512 * c)
                G.put(e0 + 1, 'salu', f"s_add_u32 s38, s{base}, {tt * 8 * PAIR + off + ((n >> 1) & 1) * 128}")
                G.put(e0 + 2, 'vm', f"buffer_store_dwordx4 {vr(pk - 2, 4)}, v{STV}, {sr(SRD_P, 4)}, s38 offen {OPT['st']}", 'STD' if c is None else f'ST{c}')
    for c in range(8):
        b = 64 * c + 47
        G.put(b, 'tail', f"@vm WO{c + 1}")
        if c in (2, 7):
            G.put(b, 'tail', "@lgkm 0")
        G.put(b, 'tail', "s_barrier")
        if c == 0:
            ops = wo_tile(3, 1)
        elif c <= 5:
            ops = wo_tile(c + 3, 0) + wo_tile(c + 3, 1)
        else:
            ops = []
        for j, op in enumerate(ops):
            G.put_op(b + 9 + 8 * (j >> 1) + 2 * (j & 1), op)

    def spread(ops, lo, hi, step=2):
        free = [i for i in range(lo, hi) if i % step == step - 2 and not G.m[i]['vm'] and not G.m[i]['valu'] and not G.m[i + 1]['valu']]
        assert len(free) >= len(ops), (len(free), len(ops))
        for j, op in enumerate(ops):
            G.put_op(free[j * len(free) // len(ops)], op)
    fx, px, cx = OPT['fx'], OPT['px'], OPT['cx']
    assert fx < OPT['at'] < 176
    G.put(fx - 1, 'tail', "@vm OS")
    G.put(fx - 1, 'tail', f"s_cmp_eq_u32 s{sSAME}, 0")
    G.put(fx - 1, 'tail', "s_cbranch_scc1 Lattn_wb")
    G.put(fx - 1, 'tail', "Lattn_wbdone:")
    G.put(fx, 'vm', f"buffer_store_dword v{tail.vZ}, v{tail.vF}, {sr(SRD_H, 4)}, s{tail.sFL} offen offset:8 sc1")
    G.put(fx + 1, 'salu', f"s_xor_b32 s{sOX}, s{sOX}, 65536")
    spread([([], f"buffer_atomic_add v{MR + 1}, v{MR}, {sr(SRD_D, 4)}, 0 offen sc1", None, [])], OPT['at'], OPT['at'] + 12)
    spread([([], x_poll(), None, [])], px, px + 8)
    G.put(cx - 2, 'valu', f"v_readfirstlane_b32 s36, v{tail.POLL}")
    G.put(cx, 'tail', f"s_cmp_lg_u32 s36, s{sTAG}")
    G.put(cx, 'tail', "s_cbranch_scc1 Lattn_xspin")
    G.put(cx, 'tail', "Lattn_xgot:")
    spread([o_load(f) for f in range(16)], cx + 3, OPT['ex'])
    for j, x in enumerate(tail.pointer_loads()):
        G.put(fx + 3 + 2 * j, 'tail', x)
    L, ldx, ld0, ld1 = tail.prepare()
    g0 = 200

    def flag(f, groups):
        spread([([tail.flag_store()[0], "@vm ST" + groups[-1]], tail.flag_store()[1], None, [])], f, f + 12)

    def poll(p):
        assert p > g0
        spread([(tail.flag_poll()[:1], tail.flag_poll()[1], None, [])], p, p + 12)
    if OPT['s0']:
        flag(OPT['f0'], OPT['s0'])
        poll(OPT['p0'])
        c0 = OPT['c0']
        fc = tail.flag_try() if OPT['nb'] else tail.flag_check(0)
        assert c0 > 404 or not OPT['nb']
        G.put(c0 - 2, 'valu', fc[0])
        for x in fc[1:]:
            G.put(c0, 'tail', x)
        spread(tail.part_loads(OPT['s0'], tail.sB0 if OPT['nb'] else None), c0 + 2, c0 + 2 + 18 * len(OPT['s0']))
    flag(OPT['f1'], OPT['s1'])
    poll(OPT['p1'])
    if OPT['f3']:
        assert OPT['f3'] > OPT['f1'] + 12
        spread([(["@vm ST2"], tail.mid_store(), None, [])], OPT['f3'], OPT['f3'] + 12)
        spread([([], tail.mid_poll(), None, [])], 564, 576)
    ca = OPT['ca']
    assert ca > g0
    spread([([], f"buffer_load_dword v{CNT}, v{CNT}, {sr(SRD_D, 4)}, 0 offen sc1", None, [])], ca - 60, ca - 40)
    G.put(ca - 2, 'valu', f"v_readfirstlane_b32 s37, v{CNT}")
    for x in ("s_cmp_lt_u32 s37, 256", "s_cbranch_scc1 Lattn_armwait", "Lattn_armed:"):
        G.put(ca, 'tail', x)
    if OPT['wdp'] == 5:
        spread([wd_dma(i) for i in range(1, 9)], OPT['wd0'], OPT['wd0'] + 48, 4)
    spread(ldx, OPT['xp'], OPT['xp'] + 40)
    if OPT['o3']:
        ld0, ld1 = ld1[:5], ld1[5:11] + ld0 + ld1[11:]
    spread(ld0, ca + 2, ca + 44)
    spread(ld1, max(64 * 7 + 8, ca + 46), 536)
    g = max(72, OPT['at'] + 14)
    for x in L:
        if isinstance(x, int):
            assert x != 190 or g < g0
            g = max(g, x, OPT['ex'] + 4)
            continue
        x = x if isinstance(x, tuple) else (x,)
        kind = 'salu' if x[0].startswith('s_') else 'valu'
        while G.m[g][kind] or G.m[g]['vm'] or (kind == 'salu' and G.m[g]['valu']) or (kind == 'valu' and G.m[g - 1]['vm']):
            g += 1
        for y in x:
            G.put(g, kind, y)
        if 's[36:37]' in x[0] or 's[54:55]' in x[0]:
            assert g < min(OPT['ca'], OPT['c0']) - 4
    assert g < 64 * 7 + 6
    if OPT['fine'] == 3:
        for c in range(8):
            G.put(64 * c + 63, 'tail', f"s_memtime {sr(62 + 2 * c, 2)}")
    G.emit(s)


def x_poll():
    return f"buffer_load_dword v{tail.POLL}, v{tail.vF}, {sr(SRD_H, 4)}, s{sXF} offen offset:8 sc1"


def pair_cold(a):
    a("Lattn_wb:")
    a("buffer_wbl2 sc1")
    a("s_waitcnt vmcnt(0)")
    a("s_branch Lattn_wbdone")
    a("Lattn_xspin:")
    a(f"s_mov_b32 s37, {tail.SPIN}")
    a("Lattn_xloop:")
    a(x_poll())
    a("s_waitcnt vmcnt(0)")
    a(f"v_readfirstlane_b32 s36, v{tail.POLL}")
    a("s_sub_u32 s37, s37, 1")
    a("s_cbranch_scc1 Lattn_xgot")
    a(f"s_cmp_lg_u32 s36, s{sTAG}")
    a("s_cbranch_scc1 Lattn_xloop")
    a("s_branch Lattn_xgot")


def redo():
    s = Stream()
    s("Lattn_redo:")
    s(f"s_load_dwordx2 {sr(SRD_M, 2)}, s[0:1], {KA['wmod']}")
    s(f"v_xor_b32 v{KAD}, 64, v{KAD + 1}")
    s(f"v_xor_b32 v{KAD + 2}, 64, v{KAD + 3}")
    s("@drain")
    s("s_barrier")
    M = TMP + 16
    for qb in range(4):
        s(f"v_mov_b32 v{M + qb}, 0xff800000")
    s(f"s_mov_b32 s{sK}, 0")
    s(f"s_mov_b32 s{sPASS}, -1")
    s("Lattn_redo_loop:")
    for op in k_tile(0):
        emit_op(s, op)
    s("@drain")
    s("s_barrier")
    for kb in range(4):
        for sx in range(4):
            s(kread(0, kb, sx))
        for qb in range(4):
            for sx in range(4):
                d = vr(TMP + 4 * qb, 4)
                s(f"{M16} {d}, {ar(KF + 16 * (kb & 1) + 4 * sx, 4)}, {vr(Q + 16 * qb + 4 * sx, 4)}, {'0' if sx == 0 else d}")
        for qb in range(4):
            t = TMP + 4 * qb
            s(f"v_max3_f32 v{M + qb}, v{M + qb}, v{t}, v{t + 1}")
            s(f"v_max3_f32 v{M + qb}, v{M + qb}, v{t + 2}, v{t + 3}")
    s("s_barrier")
    s(f"s_cmp_lt_u32 s{sK}, 524288")
    s("s_cbranch_scc1 Lattn_redo_loop")
    cross_max_to_negm(s, M)
    s(f"s_mov_b32 s{sK}, 0")
    s(f"s_mov_b32 s{sV}, 0")
    for op in k_tile(0) + k_tile(1) + k_tile(2) + v_tile(0) + v_tile(1):
        emit_op(s, op)
    for r in list(range(O, O + 128)) + list(range(L, L + 16)):
        s(f"v_accvgpr_write_b32 a{r}, 0")
    s("@drain")
    s("s_barrier")
    for sx in range(4):
        s(kread(0, 0, sx))
    s(kread(0, 1, 0))
    s("@drain")
    s("s_branch Lattn_stage0")
    s.resolve()
    return [t for _, ls in s.split() for t in ls]


def merge_body(copies):
    out = []
    assert len({len(c) for c in copies}) == 1
    for lines in zip(*copies):
        if len(set(lines)) == 1:
            out.append(lines[0])
        else:
            ms = [re.fullmatch(r's_waitcnt (\w+)\((\d+)\)', l) for l in lines]
            assert all(ms) and len({m.group(1) for m in ms}) == 1, lines
            out.append(f"s_waitcnt {ms[0].group(1)}({min(int(m.group(2)) for m in ms)})")
    return out


def insn_sizes(lines):
    src = '.amdgcn_target "amdgcn-amd-amdhsa--gfx950"\n.text\n' + '\n'.join(lines) + '\n'
    with tempfile.TemporaryDirectory() as d:
        open(d + '/t.s', 'w').write(src)
        subprocess.run(['clang', '-x', 'assembler', '-target', 'amdgcn-amd-amdhsa', '-mcpu=gfx950', '-c', d + '/t.s', '-o', d + '/t.o'], check=True)
        dis = subprocess.run(['llvm-objdump', '-d', '--mcpu=gfx950', d + '/t.o'], check=True, capture_output=True, text=True).stdout
    sz = [4 * len(m.group(1).split()) for m in re.finditer(r'// [0-9A-F]{12}: ((?:[0-9A-F]{8} ?)+)', dis)]
    it = iter(sz)
    out = [0 if l.endswith(':') else next(it) for l in lines]
    assert next(it, None) is None
    return out


def page_tour(lines):
    i0 = lines.index('Lhead_tour:')
    if not OPT['tour']:
        assert not OPT['cl']
        return lines
    sz = insn_sizes(lines)
    end = lines.index('Lattn_redo:')
    out = []; pos = 4; page = 1
    chains = ([], []); cur = 0

    def enter(c):
        pre = ['    s_mov_b64 exec, 0']
        for w in range(3):
            pre += [f'    s_cmp_eq_u32 s3, {w}', f'    s_cbranch_scc1 Ltour{c}_{w}']
        return pre + [f'    s_branch Ltour{c}_3']
    for i in range(i0 + 1, len(lines)):
        l = lines[i]
        if l == 'Lattn_loop:':
            while pos % 32 != OPT['lal']:
                out.append('    s_nop 0'); pos += 4
        want = None
        if i < end and pos >= 4096 * page and not l.endswith(':'):
            prev = lines[i - 1].split()[0]
            if prev.startswith('v_mfma') and not l.split()[0].startswith('s_') or pos - 4096 * page >= 40:
                want = cur; page += 1
        if lines[i - 1][:-1] in ('Ltail_spin1', 'Ltail_spin2', 'Ltail_spin3', 'Ltail_idle'):
            want = cur
        if lines[i - 1][:-1] in ('Ltail_spin0', 'Lattn_xspin', 'Lhead_again'):
            want = 0
        if want is not None:
            n = len(chains[want]); chains[want].append(pos)
            out.append(f'Ltour{want}_{n}:'); out.append((want, n)); pos += 4
        if l == 'Ltail_tour:':
            out += enter(1) + ['Lmain1:', '    s_mov_b64 exec, -1']; pos += 36; cur = 1
            continue
        out.append(l); pos += sz[i]
        if 's_getpc_b64 s[36:37]' in l:
            reach = pos + 4092 + 32768
    assert not OPT['cl'] or reach <= pos
    assert cur == 0 or len(chains[1]) >= 4
    print('code bytes', pos, 'stubs', len(chains[0]), len(chains[1]), file=sys.stderr)
    out = [f"    s_cbranch_execz {'Ltour%d_%d' % (x[0], x[1] + 4) if x[1] + 4 < len(chains[x[0]]) else 'Lmain%d' % x[0]}"
           if isinstance(x, tuple) else x for x in out]
    return lines[:i0] + enter(0) + ['.p2align 12', 'Lmain0:', '    s_mov_b64 exec, -1'] + out


def k_attn(diag=False):
    s = Stream()
    head.head(s, diag, sys.modules[__name__])
    stamp(s, diag, 1)
    qproj(s, diag)
    stamp(s, diag, 2)
    prepass(s, qfinish(s))
    s("@mark pre")
    s("Lattn_stage0:")
    s(f"s_mov_b32 s{sCNT}, 7")
    if OPT['x'] & 512:
        s("s_mov_b32 s101, 0x07060302")
    for k in range(33):
        s(f"@mark st{k}")
        stage(s, k)
    s("@mark post")
    normalize(s)
    s("@mark oproj")
    oproj(s)
    s("@mark tail")
    tail.post(s, diag, [ffn_write(n) for n in range(12)], emit_op)
    s.resolve()
    parts = dict(s.split())
    for k in range(1, 5):
        parts[f'body{k}'] = merge_body([parts[f'st{j}'] for j in range(k, 29, 4)])
    a = Asm()

    def put(name):
        for t in parts[name]:
            a(t)
    put('_head'); stamp(a, diag, 3); put('pre'); put('st0')
    stamp(a, diag, 4)
    a("Lattn_loop:")
    for k in range(1, 5):
        put(f'body{k}')
    a(f"s_sub_u32 s{sCNT}, s{sCNT}, 1")
    a(f"s_cmp_lg_u32 s{sCNT}, 0")
    a("s_cbranch_scc1 Lattn_loop")
    stamp(a, diag, 5)
    for k in range(29, 33):
        put(f'st{k}')
    stamp(a, diag, 6)
    put('post')
    if OPT['fine'] == 3:
        stamp(a, diag, 0)
    stamp(a, diag, 7)
    put('oproj')
    if diag:
        stamp(a, diag, 8)
        if OPT['fine'] != 5:
            stamp(a, diag, 9)
        a("s_memrealtime s[98:99]")
        a("s_waitcnt lgkmcnt(0)")
        for i in range(10):
            a(f"s_sub_u32 s7, s{60 + 2 * i}, s60")
            a(f"v_accvgpr_write_b32 a{224 + i}, s7")
        a("v_accvgpr_write_b32 a234, s96")
        a("v_accvgpr_write_b32 a235, s98")
    put('tail')
    tail.body(a, diag, [wd_dma(i) for i in range(1, 9)], emit_op)
    if diag:
        tail.dump_stamps(a, 8, WS_STAMP + 0x20000)
        a.srd(SRD_V, 50, 1024 * 64, WS_STAMP)
        for i in range(3):
            a(f"buffer_store_dwordx4 {ar(224 + 4 * i, 4)}, v2, {sr(SRD_V, 4)}, s36 offen offset:{16 * i}")
    a("s_endpgm")
    pair_cold(a)
    head.cold(a, sys.modules[__name__])
    if OPT['s0'] and not OPT['nb']:
        tail.flag_spin(a, 0)
    tail.flag_spin(a, 1)
    tail.flag_spin(a, 2)
    if OPT['f3']:
        tail.flag_spin(a, 3)
    for t in redo():
        a(t)
    a("Lattn_armwait:")
    a(f"s_mov_b32 s36, {tail.SPIN}")
    a("Lattn_armloop:")
    a(f"v_mov_b32 v{CNT}, 0")
    a(f"buffer_load_dword v{CNT}, v{CNT}, {sr(SRD_D, 4)}, 0 offen sc1")
    a("s_waitcnt vmcnt(0)")
    a(f"v_readfirstlane_b32 s37, v{CNT}")
    a("s_sub_u32 s36, s36, 1")
    a("s_cbranch_scc1 Lattn_armed")
    a("s_cmp_lt_u32 s37, 256")
    a("s_cbranch_scc1 Lattn_armloop")
    a("s_branch Lattn_armed")
    a("Lattn_end:")
    a("s_endpgm")
    a.L = page_tour(a.L)
    return a.text(), 512, dict(grid=256, block=256, lds=163840), s.stats
```

```python
from dsl import *
from tail import unpack, pack, rnd1, red, srd, BIG, SPIN, SPIN_NAN

L_RED, L_MOD = 0, 1024
vC, vW, vX, vP, vM, vG, vQ2, vQ, vT = 64, 65, 66, 67, 68, 69, 70, 71, 72
CV, WV, XR = 80, 88, 108
AC, UT = 128, 136
X, D, C1, SA = 144, 168, 192, 216
PF = 240
vK, vV = 120, 121


def silu(s, r, t):
    d, q, e = t, t + 1, t + 2
    s(f"v_mul_f32 v{d}, 0xbfb8aa3b, v{r}")
    s(f"v_min_f32 v{d}, 0x42fc0000, v{d}")
    s(f"v_exp_f32 v{d}, v{d}")
    s(f"v_add_f32 v{d}, 1.0, v{d}")
    s(f"v_rcp_f32 v{q}, v{d}")
    s(f"v_mul_f32 v{e}, v{r}, v{q}")
    s(f"v_fma_f32 v{d}, -v{e}, v{d}, v{r}")
    s(f"v_fma_f32 v{r}, v{d}, v{q}, v{e}")


def interleave(s, fns):
    lists = []
    for f in fns:
        l = []
        f(l.append)
        lists.append(l)
    for i in range(max(map(len, lists))):
        for l in lists:
            if i < len(l):
                s(l[i])


def sum24(s, dst, t, f):
    for e in range(0, 24, 2):
        f(t if e & 2 else dst, e, e < 4)
    s(f"v_pk_add_f32 {vr(dst, 2)}, {vr(dst, 2)}, {vr(t, 2)}")
    s(f"v_add_f32 v{dst}, v{dst}, v{dst + 1}")


def head(s, diag, K):
    st = lambda i: OPT['fine'] == 1 and K.stamp(s, diag, i, True)
    s2 = lambda i: OPT['fine'] == 2 and K.stamp(s, diag, i, True)
    SC, SM, SX, SW = K.SRD_K, K.SRD_V, K.SRD_O, K.SRD_H
    s("s_cmp_ge_u32 s2, 256")
    s("s_cbranch_scc1 Lattn_end")
    if OPT['scr']:
        s("s_and_b32 s3, s2, 7")
        s("s_lshl_b32 s3, s3, 5")
        s("s_lshr_b32 s2, s2, 3")
        s("s_or_b32 s2, s2, s3")
    s(f"s_load_dwordx2 {sr(SC, 2)}, s[0:1], {KA['c']}")
    s(f"s_load_dwordx2 {sr(SM, 2)}, s[0:1], {KA['wmod']}")
    s(f"s_load_dwordx2 {sr(SX, 2)}, s[0:1], {KA['x']}")
    s(f"s_load_dwordx2 s[50:51], s[0:1], {KA['ws']}")
    s(f"s_load_dwordx8 s[52:59], s[0:1], {KA['k']}")
    s(f"s_load_dwordx4 s[80:83], s[0:1], {KA['wg']}")
    s(f"s_load_dwordx2 s[84:85], s[0:1], {KA['wd']}")
    s(f"s_load_dwordx2 {sr(K.SRD_D, 2)}, s[0:1], {KA['dbg']}")
    s(f"s_load_dwordx2 {sr(K.SRD_P, 2)}, s[0:1], {KA['wr']}")
    if diag:
        s("s_memrealtime s[96:97]")
    K.stamp(s, diag, 0)
    s("s_getpc_b64 s[32:33]")
    s("Lattn_pc:")
    s("s_mov_b32 s34, Lattn_end-Lattn_pc")
    s("s_mov_b32 s35, 0x20000")
    s("s_lshr_b32 s6, s2, 3")
    s("s_lshl_b32 s7, s6, 6")
    s("v_lshrrev_b32 v3, 6, v0")
    s("v_and_b32 v1, 63, v0")
    s("v_lshrrev_b32 v2, 2, v0")
    s("v_lshlrev_b32 v2, 11, v2")
    s("v_readfirstlane_b32 s3, v3")
    s(f"buffer_load_dword v{PF}, v2, s[32:35], s7 offen", 'PF')
    s("s_and_b32 s7, s2, 7")
    s("s_lshl_b32 s4, s7, 1")
    s("s_and_b32 s5, s6, 1")
    s("s_add_u32 s4, s4, s5")
    s("s_lshr_b32 s5, s2, 4")
    s("s_lshr_b32 s38, s6, 2")
    s("s_lshl_b32 s38, s38, 3")
    s("s_add_u32 s38, s38, s7")
    s("s_cmp_lt_u32 s38, 18")
    s(f"s_cselect_b32 s39, 0, {BIG}")
    s("s_lshl_b32 s38, s38, 2")
    s("s_and_b32 s36, s6, 3")
    s("s_add_u32 s38, s38, s36")
    s(f"s_mov_b32 s{SM + 2}, {SZ['wmod']}")
    s(f"s_mul_i32 s92, s6, {18 * 6912}")
    s("s_lshl_b32 s36, s7, 7")
    s("s_add_u32 s92, s92, s36")
    s("s_cmp_lt_u32 s7, 2")
    s("s_cselect_b32 s36, 53, 35")
    s("v_lshrrev_b32 v2, 2, v0")
    s("v_min_u32 v2, s36, v2")
    s("v_mul_u32_u24 v3, 57, v2")
    s("v_lshrrev_b32 v3, 10, v3")
    s(f"v_mul_i32_i24 v3, {1024 - 18 * 6912}, v3")
    s(f"v_mul_u32_u24 v2, 6912, v2")
    s(f"v_add_u32 v{vT}, v2, v3")
    s(f"s_mov_b32 s{SM + 3}, 0x20000")
    s(f"s_mov_b32 s{SC + 2}, {SZ['c']}")
    s(f"s_mov_b32 s{SC + 3}, 0x20000")
    s(f"s_mov_b32 s{SX + 2}, {SZ['x']}")
    s(f"s_mov_b32 s{SX + 3}, 0x20000")
    s(f"v_and_b32 v{vC}, 0xfe, v0")
    s(f"v_mul_u32_u24 v{vW}, 3456, v{vC}")
    s("v_and_b32 v2, 1, v0")
    s(f"v_lshl_add_u32 v{vW}, v2, 4, v{vW}")
    s("s_lshl_b32 s36, s38, 5")
    s("s_or_b32 s36, s36, s39")
    s("v_and_b32 v4, 31, v1")
    s("v_lshrrev_b32 v5, 5, v1")
    s("v_cmp_gt_u32 vcc, 24, v4")
    s(f"v_mov_b32 v6, {BIG}")
    s("s_lshl_b32 s7, s5, 4")
    s("s_add_u32 s7, s7, s4")
    s("s_lshl_b32 s7, s7, 2")
    s("s_add_u32 s7, s7, s3")
    s("v_cndmask_b32 v6, v6, 0, vcc")
    s("s_mul_i32 s49, s7, 2304")
    s("v_lshrrev_b32 v7, 2, v4")
    s("v_lshl_add_u32 v7, v7, 6, v6")
    s("v_and_b32 v2, 3, v4")
    s("v_lshl_add_u32 v7, v2, 3, v7")
    s("v_mul_u32_u24 v2, 1152, v5")
    s(f"v_add_u32 v{vX}, v7, v2")
    if OPT['tw']:
        mx = [1, 3, 3, 2, 2, 7, 0, 2, 2, 2, 0, 1, 1, 0, 7, 7]
        tab = sum(m << (4 * i) for i, m in enumerate(mx))
        s("s_lshl_b32 s40, s6, 2")
        s("s_add_u32 s40, s40, s3")
        s("s_and_b32 s41, s40, 15")
        s("s_lshr_b32 s40, s40, 4")
        s(f"s_mov_b32 s44, {tab & 0xffffffff}")
        s(f"s_mov_b32 s45, {tab >> 32}")
        s("s_lshl_b32 s42, s41, 2")
        s("s_lshr_b64 s[44:45], s[44:45], s42")
        s("s_and_b32 s44, s44, 15")
        s("s_min_u32 s40, s40, s44")
        s("s_cmp_eq_u32 s41, 5")
        s("s_cselect_b32 s42, 16, 0")
        s("s_cselect_b32 s41, 14, s41")
        s("s_cmp_eq_u32 s41, 15")
        s("s_cselect_b32 s42, 8, s42")
        s("s_cselect_b32 s41, 14, s41")
        s("s_add_u32 s40, s40, s42")
        s("s_lshl_b32 s40, s40, 21")
        s("s_lshl_b32 s41, s41, 3")
        s("s_load_dwordx2 s[46:47], s[0:1], s41")
    st(1)
    s("s_waitcnt lgkmcnt(0)")
    if OPT['tw']:
        s(f"s_load_dword s{K.sTAG}, s[46:47], s40")
    s2(1)
    s(f"s_load_dword s{K.sEP}, s[50:51], {WS_EPOCH}")
    if OPT['co'] == 0:
        s(f"buffer_load_dword v{PF + 1}, v{vT}, {sr(SM, 4)}, s92 offen", 'PF')
    for i in range(5):
        s(f"buffer_load_ushort v{CV + i}, v{vC}, {sr(SC, 4)}, 0 offen offset:{256 * i}")
    if OPT['co'] == 1:
        s(f"buffer_load_dword v{PF + 1}, v{vT}, {sr(SM, 4)}, s92 offen", 'PF')
    s2(2)

    def ldx():
        for i in range(3):
            for u in range(2):
                s(f"buffer_load_dwordx2 {vr(XR + 4 * i + 2 * u, 2)}, v{vX}, {sr(SX, 4)}, s49 offen offset:{384 * i + 32 * u}")
        srd(s, K.SRD_O, 58, SZ['wo'])
    if OPT['xl'] == 0:
        ldx()
    s2(3)
    for i in range(5):
        s(f"buffer_load_dwordx4 {vr(WV + 4 * i, 4)}, v{vW}, {sr(SM, 4)}, s36 offen")
        if i < 4:
            s(f"s_add_u32 s36, s36, {128 * 6912}")
    nA = OPT['nq1']
    srd(s, K.SRD_Q, 56, SZ['wq'])
    s(f"s_lshl_b32 s{K.sWQ}, s4, 9")
    for d, sh, rows, r0 in ((vQ, 2, 4 * nA, 0), (vQ2, 1, 4 * (9 - nA), 64 * nA)):
        s(f"s_mul_i32 s36, s5, {rows * 8192}")
        s(f"s_add_u32 s36, s36, {r0 * 8192}")
        s(f"v_lshrrev_b32 v2, {sh}, v0")
        s(f"v_min_u32 v2, {4 * rows - 1}, v2")
        s("v_lshrrev_b32 v3, 2, v2")
        s("v_and_b32 v2, 3, v2")
        s("v_lshl_add_u32 v2, v2, 7, s36")
        s(f"v_lshl_add_u32 v{d}, v3, 13, v2")
    s2(4)
    s(f"s_add_u32 s92, s49, {WS_H}")
    s("v_lshl_add_u32 v7, v5, 4, v6")
    s(f"v_lshl_add_u32 v{vP}, v4, 5, v7")
    s("v_min_u32 v4, 23, v4")
    s(f"v_lshlrev_b32 v{vM}, 4, v4")
    srd(s, SW, 50, WS_PART)
    s(f"s_mov_b32 s{K.SRD_D + 2}, 256")
    s(f"s_mov_b32 s{K.SRD_D + 3}, 0x20000")
    s("s_cmp_ge_u32 s38, 36")
    s("s_cselect_b32 s93, 1.0, 0")
    s("s_lshl_b32 s36, s38, 7")
    s(f"v_lshl_add_u32 v{vG}, v0, 3, s36")
    s(f"v_cmp_gt_u32 s[36:37], {16 if OPT['fl'] & 1 else 8}, v0")
    s(f"v_mov_b32 v2, {BIG}")
    s("v_mov_b32 v3, s39")
    s("v_cndmask_b32 v2, v2, v3, s[36:37]")
    s(f"v_or_b32 v{vG}, v{vG}, v2")
    if OPT['wr']:
        s(f"s_mov_b32 s{K.SRD_P + 2}, {SZ['wr']}")
        s(f"s_mov_b32 s{K.SRD_P + 3}, 0x20000")
        s("v_lshlrev_b32 v2, 7, v0")
        s("v_mov_b32 v3, s39")
        s(f"v_xor_b32 v3, {BIG}, v3")
        s("v_or_b32 v2, v2, v3")
        s(f"buffer_load_dword v{PF + 3}, v2, {sr(K.SRD_P, 4)}, 0 offen", 'PF')
    s("s_mul_i32 s36, s5, 3072")
    s("s_lshl_b32 s37, s5, 11")
    s(f"v_lshrrev_b32 v{vK}, 3, v0")
    s(f"v_min_u32 v{vK}, 23, v{vK}")
    s(f"v_lshl_add_u32 v{vK}, v{vK}, 7, s36")
    s(f"v_lshrrev_b32 v{vV}, 4, v0")
    s(f"v_lshl_add_u32 v{vV}, v{vV}, 7, s37")
    K.setup(s)
    if OPT['xl'] == 1:
        ldx()
    st(2)
    s2(5)
    for i in range(5):
        s(f"v_lshlrev_b32 v{CV + i}, 16, v{CV + i}")
    interleave(s, [(lambda e, i=i: (silu(e, CV + i, X + 4 * i), rnd1(e, CV + i))) for i in range(5)])
    if OPT['xl'] == 2:
        ldx()
    s2(6)
    if OPT['qt'] == 1:
        s(f"buffer_load_dword v{PF + 2}, v{vQ}, {sr(K.SRD_Q, 4)}, s{K.sWQ} offen", 'PF')
    if OPT['kt'] == -1:
        for op in touch_ops(K)[1:]:
            K.emit_op(s, op)
    for i in range(5):
        unpack(s, UT, WV + 4 * i, 4)
        if OPT['xl'] == 3 + i:
            ldx()
        c2 = (CV + i) & ~1
        o = (CV + i) & 1
        for e in range(0, 8, 2):
            if i == 0:
                s(f"v_pk_mul_f32 {vr(AC + e, 2)}, {vr(UT + e, 2)}, {vr(c2, 2)} op_sel:[0,{o}] op_sel_hi:[1,{o}]")
            else:
                s(f"v_pk_fma_f32 {vr(AC + e, 2)}, {vr(UT + e, 2)}, {vr(c2, 2)}, {vr(AC + e, 2)} op_sel:[0,{o},0] op_sel_hi:[1,{o},1]")
    s2(7)
    if OPT['qt'] == 0:
        s(f"buffer_load_dword v{PF + 2}, v{vQ}, {sr(K.SRD_Q, 4)}, s{K.sWQ} offen", 'PF')
    for e in range(4):
        s(f"v_permlane32_swap_b32 v{AC + e}, v{AC + 4 + e}")
    s(f"v_and_b32 v{vT}, 1, v1")
    for e in (0, 2):
        s(f"v_pk_add_f32 {vr(AC + e, 2)}, {vr(AC + e, 2)}, {vr(AC + 4 + e, 2)}")
    s(f"v_lshlrev_b32 v{vT}, 5, v{vT}")
    s(f"v_lshrrev_b32 v{vT + 1}, 4, v1")
    for e in range(2):
        s(f"v_permlane16_swap_b32 v{AC + e}, v{AC + 2 + e}")
    s(f"v_lshl_add_u32 v{vT}, v{vT + 1}, 3, v{vT}")
    s(f"v_pk_add_f32 {vr(AC, 2)}, {vr(AC, 2)}, {vr(AC + 2, 2)}")
    s("s_lshl_b32 s36, s3, 6")
    s(f"v_add_u32 v{vT}, s36, v{vT}")
    red(s, [AC, AC + 1], [], (2, 4, 8), False, False)
    s(f"ds_write_b64 v{vT}, {vr(AC, 2)} offset:{L_RED}")
    s(f"v_and_b32 v{vT + 1}, 7, v1")
    s(f"v_lshlrev_b32 v{vT + 1}, 3, v{vT + 1}")
    s("@lgkm 0")
    s("s_barrier")
    for w in range(4):
        s(f"ds_read_b64 {vr(AC + 2 * w, 2)}, v{vT + 1} offset:{L_RED + 64 * w}")
    s(f"s_add_u32 s{K.sTAG}, s{K.sEP}, 0x9e3779b9")
    s(f"v_mov_b32 v{UT + 1}, s{K.sTAG}")
    s(f"s_mov_b32 s37, {WS_GR}")
    s(f"v_pk_add_f32 {vr(AC, 2)}, {vr(AC, 2)}, {vr(AC + 2, 2)}")
    s(f"v_pk_add_f32 {vr(AC + 4, 2)}, {vr(AC + 4, 2)}, {vr(AC + 6, 2)}")
    s(f"v_pk_add_f32 {vr(AC, 2)}, {vr(AC, 2)}, {vr(AC + 4, 2)}")
    pack(s, UT, AC, 1)
    unpack(s, AC, UT, 1)
    s(f"v_add_f32 v{AC}, s93, v{AC}")
    s(f"v_add_f32 v{AC + 1}, s93, v{AC + 1}")
    pack(s, UT, AC, 1)
    s(f"buffer_store_dwordx2 {vr(UT, 2)}, v{vG}, {sr(SW, 4)}, s37 offen sc1")
    st(3)
    s2(8)
    if OPT['wl']:
        s("s_lshl_b32 s36, s5, 13")
        s(f"s_add_u32 s36, s36, {WS_HFLAG}")
        s("s_lshl_b32 s38, s4, 9")
        s("s_add_u32 s38, s38, s36")
        s("s_lshl_b32 s36, s3, 7")
        s("s_add_u32 s38, s38, s36")
        s("v_min_u32 v2, 1, v1")
        s("v_lshlrev_b32 v2, 31, v2")
        if OPT['wl'] == 1:
            s(f"buffer_store_dword v2, v2, {sr(SW, 4)}, s38 offen offset:4 sc1")
        else:
            s(f"buffer_load_dword v3, v2, {sr(SW, 4)}, s38 offen offset:4 sc1")
    G0, a0, a1, g0, g1 = WV, 122, 123, 124, 125
    s("s_mul_i32 s36, s3, 72")
    s(f"v_add_u32 v{a0}, s36, v1")
    s(f"v_and_b32 v{a1}, 7, v1")
    s("s_add_u32 s36, s36, 64")
    s(f"v_add_u32 v{a1}, s36, v{a1}")
    s(f"s_movk_i32 s36, {L_MOD}")
    for a_, d in ((a0, g0), (a1, g1)):
        s(f"v_and_b32 v{vT + 4}, 3, v{a_}")
        s(f"v_lshlrev_b32 v{vT + 4}, 4, v{vT + 4}")
        s(f"v_lshrrev_b32 v{a_}, 2, v{a_}")
        s(f"v_lshl_add_u32 v{d}, v{a_}, 7, v{vT + 4}")
        s(f"v_and_b32 v{vT + 5}, 1, v{a_}")
        s(f"v_lshl_add_u32 v{vT + 4}, v{vT + 5}, 3, v{vT + 4}")
        s(f"v_lshrrev_b32 v{a_}, 1, v{a_}")
        s(f"v_lshl_add_u32 v{a_}, v{a_}, 6, v{vT + 4}")
        s(f"v_add_u32 v{a_}, s36, v{a_}")

    def touch_a():
        s(f"buffer_load_dword v{PF + 2}, v{vQ}, {sr(K.SRD_Q, 4)}, s{K.sWQ} offen", 'PF')

    def poll_m():
        s(f"buffer_load_dwordx4 {vr(G0, 4)}, v{g0}, {sr(SW, 4)}, s37 offen {OPT['pm']}")
        s(f"buffer_load_dwordx4 {vr(G0 + 4, 4)}, v{g1}, {sr(SW, 4)}, s37 offen {OPT['pm']}")

    def check_m():
        for r in (1, 3, 5, 7):
            s(f"v_xor_b32 v{G0 + r}, s{K.sTAG}, v{G0 + r}")
        s(f"v_or3_b32 v{G0 + 1}, v{G0 + 1}, v{G0 + 3}, v{G0 + 5}")
        s(f"v_or_b32 v{G0 + 1}, v{G0 + 1}, v{G0 + 7}")
        s(f"v_cmp_ne_u32 vcc, 0, v{G0 + 1}")

    def early(n):
        if OPT['pp'] == n:
            poll_m()
            if OPT['qt'] == 4:
                touch_a()
    if OPT['tp'] in (0, 4):
        s("Lhead_tour:")
    unpack(s, X, XR, 12)
    early(0)
    if OPT['qt'] == 2:
        s(f"buffer_load_dword v{PF + 2}, v{vQ}, {sr(K.SRD_Q, 4)}, s{K.sWQ} offen", 'PF')
    m, v, t = vT, vT + 2, vT + 4

    def f_sum(acc, e, first):
        if e < 4:
            s(f"v_pk_add_f32 {vr(acc, 2)}, {vr(X + e, 2)}, {vr(X + e + 4, 2)}")
        elif e >= 8:
            s(f"v_pk_add_f32 {vr(acc, 2)}, {vr(acc, 2)}, {vr(X + e, 2)}")
    sum24(s, m, t, f_sum)
    red(s, [m], [t], (8, 4, 2, 1), True, False)
    s(f"v_mul_f32 v{m}, 0x3ae38e39, v{m}")
    early(1)
    for e in range(0, 24, 2):
        s(f"v_pk_add_f32 {vr(D + e, 2)}, {vr(X + e, 2)}, {vr(m, 2)} op_sel_hi:[1,0] neg_lo:[0,1] neg_hi:[0,1]")

    def f_sq(acc, e, first):
        if first:
            s(f"v_pk_mul_f32 {vr(acc, 2)}, {vr(D + e, 2)}, {vr(D + e, 2)}")
        else:
            s(f"v_pk_fma_f32 {vr(acc, 2)}, {vr(D + e, 2)}, {vr(D + e, 2)}, {vr(acc, 2)}")
    sum24(s, v, t, f_sq)
    s(f"v_cndmask_b32 v{v}, 0, v{v}, vcc")
    red(s, [v], [t], (8, 4, 2, 1), True, False)
    s(f"v_mul_f32 v{v}, 0x3ae38e39, v{v}")
    early(2)
    s(f"v_cvt_pk_bf16_f32 v{t}, v{m}, v{v}")
    s(f"v_and_b32 v{v}, 0xffff0000, v{t}")
    s(f"v_lshlrev_b32 v{m}, 16, v{t}")
    s(f"v_add_f32 v{v}, 0x3727c5ac, v{v}")
    rnd1(s, v)
    s(f"v_sqrt_f32 v{v}, v{v}")
    for e in range(0, 24, 2):
        s(f"v_pk_add_f32 {vr(D + e, 2)}, {vr(X + e, 2)}, {vr(m, 2)} op_sel_hi:[1,0] neg_lo:[0,1] neg_hi:[0,1]")
    rnd1(s, v)
    s(f"v_rcp_f32 v{v}, v{v}")
    pack(s, XR, D, 12)
    unpack(s, D, XR, 12)
    for e in range(0, 24, 2):
        s(f"v_pk_mul_f32 {vr(D + e, 2)}, {vr(D + e, 2)}, {vr(v, 2)} op_sel_hi:[1,0]")
    pack(s, XR, D, 12)
    unpack(s, D, XR, 12)
    if OPT['qt'] == 3:
        s(f"buffer_load_dword v{PF + 2}, v{vQ}, {sr(K.SRD_Q, 4)}, s{K.sWQ} offen", 'PF')
    for c in range(OPT['nq0']):
        for op in K.wq_tile(c, 0) + K.wq_tile(c, 1):
            K.emit_op(s, op)
    if OPT['tp'] == 2:
        s("Lhead_tour:")
    s(f"s_mov_b32 s38, {SPIN}")
    st(4)
    if OPT['pp'] >= 0:
        check_m()
        s("s_cbranch_vccz Lhead_gotm")
    s("Lhead_pollm:")
    s("@hide")
    poll_m()
    s("s_waitcnt vmcnt(0)")
    s("s_sub_u32 s38, s38, 1")
    s("s_cbranch_scc1 Lhead_gotm")
    check_m()
    s("s_cbranch_vccnz Lhead_pollm")
    s("@show")
    s("Lhead_gotm:")
    if OPT['qt'] == 5:
        touch_a()
    s(f"ds_write2_b32 v{a0}, v{G0}, v{G0 + 2} offset0:0 offset1:1")
    s(f"ds_write2_b32 v{a1}, v{G0 + 4}, v{G0 + 6} offset0:0 offset1:1")
    s("@lgkm 0")
    s("s_barrier")
    st(5)
    for i in range(3):
        s(f"ds_read_b128 {vr(X + 4 * i, 4)}, v{vM} offset:{L_MOD + 1152 + 384 * i}")
        s(f"ds_read_b128 {vr(X + 12 + 4 * i, 4)}, v{vM} offset:{L_MOD + 384 * i}")
    for i in range(3):
        unpack(s, C1 + 8 * i, X + 4 * i, 4)
        for e in range(8 * i, 8 * i + 8, 2):
            s(f"v_pk_mul_f32 {vr(D + e, 2)}, {vr(D + e, 2)}, {vr(C1 + e, 2)}")
        pack(s, XR + 4 * i, D + 8 * i, 4)
        unpack(s, SA + 8 * i, X + 12 + 4 * i, 4)
        unpack(s, D + 8 * i, XR + 4 * i, 4)
        for e in range(8 * i, 8 * i + 8, 2):
            s(f"v_pk_add_f32 {vr(D + e, 2)}, {vr(D + e, 2)}, {vr(SA + e, 2)}")
        pack(s, XR + 4 * i, D + 8 * i, 4)
        s(f"buffer_store_dwordx4 {vr(XR + 4 * i, 4)}, v{vP}, {sr(SW, 4)}, s92 offen offset:{768 * i} sc1", 'HS')
    if OPT['tp'] == 3:
        s("Lhead_tour:")
    if OPT['tp'] == 4:
        s("Lhead_tour2:")
    s("s_lshl_b32 s36, s5, 13")
    s(f"s_add_u32 s36, s36, {WS_HFLAG}")
    s("s_lshl_b32 s37, s4, 9")
    s("s_add_u32 s37, s37, s36")
    s("s_lshl_b32 s38, s3, 7")
    s("s_add_u32 s37, s37, s38")
    s("s_lshl_b32 s38, s3, 11")
    s("s_add_u32 s36, s36, s38")
    s(f"v_min_u32 v{vT}, 1, v1")
    s(f"v_lshlrev_b32 v{vT}, 31, v{vT}")
    s(f"v_and_b32 v{vT + 1}, 15, v1")
    s(f"v_lshlrev_b32 v{vT + 1}, 7, v{vT + 1}")
    s("v_cmp_gt_u32 vcc, 162, v0")
    for e in range(4):
        s(f"v_mov_b32 v{WV + e}, -1")
    s("s_mul_i32 s39, s2, 2592")
    s(f"s_add_u32 s39, s39, {WS_Y}")
    s(f"v_lshl_add_u32 v{vT + 2}, v0, 4, s39")
    s("s_lshl_b32 s39, s2, 7")
    s(f"s_add_u32 s39, s39, {WS_KEY}")
    s(f"v_mov_b32 v{vT + 3}, s39")
    s(f"v_cndmask_b32 v{vT + 2}, v{vT + 3}, v{vT + 2}, vcc")
    s("s_lshl_b32 s92, s5, 13")
    s(f"s_add_u32 s92, s92, {WS_FLAG}")
    s("s_add_u32 s92, s92, s38")
    s("s_lshl_b32 s38, s4, 7")
    s("s_add_u32 s92, s92, s38")
    s("s_getreg_b32 s38, hwreg(HW_REG_XCC_ID, 0, 4)")
    s("s_lshl_b32 s38, s38, 28")
    s(f"s_xor_b32 s38, s38, s{K.sTAG}")
    s(f"v_mov_b32 v{vT + 4}, s38")
    for i in range(5):
        s(f"v_mov_b32 v{K.MC + i}, v{CV + i}")
    s(f"v_mov_b32 v{K.MW}, v{vW}")
    if OPT['fl'] & 2:
        s("v_and_b32 v126, 31, v1")
        s("v_lshlrev_b32 v126, 2, v126")
    qops = [op for c in range(OPT['nq0'], OPT['nq2']) for op in K.wq_tile(c, 0) + K.wq_tile(c, 1)]
    for op in qops[:OPT['na']]:
        K.emit_op(s, op)
    s("@vm HS")
    s(f"buffer_store_dword v{UT + 1}, v{126 if OPT['fl'] & 2 else vT}, {sr(SW, 4)}, s37 offen sc1")
    st(6)
    if OPT['kt'] == -2:
        for op in touch_ops(K)[1:]:
            K.emit_op(s, op)
    for op in qops[OPT['na']:]:
        K.emit_op(s, op)
    if OPT['tp'] == 1:
        s("Lhead_tour:")
    assert nA >= OPT['nq2']
    st(7)
    if OPT['sv']:
        for c in range(3):
            for op in K.h_loads(c):
                K.emit_op(s, op)
        return
    s(f"s_mov_b32 s38, {SPIN}")
    s("Lhead_pollh:")
    s(h_poll(K))
    s("s_sub_u32 s38, s38, 1")
    s("s_cbranch_scc1 Lhead_goth")
    s("@drain")
    s(f"v_cmp_ne_u32 vcc, s{K.sTAG}, v{vT + 3}")
    s("s_cbranch_vccnz Lhead_pollh")
    s("Lhead_goth:")
    s("@drain")
    st(8)
    for c in range(1):
        for op in K.h_loads(c):
            K.emit_op(s, op)


def h_poll(K):
    return f"buffer_load_dword v{vT + 3}, v{vT + 1}, {sr(K.SRD_H, 4)}, s36 offen {OPT['ph']}"


def h_probe(K):
    o = [f"{K.M16} v[96:99], {vr(K.ONES, 4)}, {ar(K.HF + 4 * f, 4)}, {'0' if f == 0 else 'v[96:99]'}" for f in range(12)]
    return o + ["v_cmp_u_f32 vcc, v96, v96"]


def cold(a, K):
    if not OPT['sv']:
        return
    a("Lhead_again:")
    a(f"s_mov_b32 s38, {SPIN_NAN}")
    a("Lhead_againl:")
    for c in range(3):
        for op in K.h_loads(c):
            a(op[1])
    a("s_waitcnt vmcnt(0)")
    p = h_probe(K)
    for x in p[:-1]:
        a(x)
    a("s_sub_u32 s38, s38, 1")
    a("s_nop 7")
    a(p[-1])
    a("s_cbranch_scc1 Lhead_valid")
    a("s_cbranch_vccnz Lhead_againl")
    a("s_branch Lhead_valid")
    a("Lhead_hspin:")
    a(f"s_mov_b32 s38, {SPIN}")
    a("Lhead_hspinl:")
    a(h_poll(K))
    a("s_waitcnt vmcnt(0)")
    a(f"v_cmp_ne_u32 vcc, s{K.sTAG}, v{vT + 3}")
    a("s_sub_u32 s38, s38, 1")
    a("s_cbranch_scc1 Lhead_goth")
    a("s_cbranch_vccnz Lhead_hspinl")
    a("s_branch Lhead_goth")


def touch_ops(K):
    ops = [f"buffer_load_dword v{vT + 5}, v{vQ2}, {sr(K.SRD_Q, 4)}, s{K.sWQ} offen"]
    if True:
        ops += [f"buffer_load_dword v{vT + 6}, v{vK}, {sr(K.SRD_K, 4)}, 0 offen",
                f"buffer_load_dword v{vT + 7}, v{vV}, {sr(K.SRD_V, 4)}, 0 offen"]
    return [([], t, 'PF', []) for t in ops]


def arm_ops(K):
    SW = K.SRD_H
    ops = [f"buffer_store_dword v{vT + 4}, v{vT}, {sr(SW, 4)}, s92 offen offset:12 sc1",
           f"buffer_store_dwordx4 {vr(WV, 4)}, v{vT + 2}, {sr(SW, 4)}, 0 offen sc1"]
    return [([], t, 'ARM', []) for t in ops]
```

```python
import sys, os
sys.path.insert(0, os.path.dirname(os.path.abspath(__file__)))
from dsl import *
import attn


DOC = """; Generated by gen/gen.py (hand-written generator: gen/head.py, gen/attn.py, gen/tail.py, gen/sched.py).
;
; One launch, 256 workgroups x 4 waves, one workgroup per CU (all co-resident). Workgroup = (kv head, 128 tokens).
; Hand-offs are write-through stores followed by a flag, or words armed with a NaN pattern inside this launch. Flags
; carry a tag derived from a counter in d_ws (only there to tell them from an earlier launch's); d_debug[0] counts
"""


def add_timeline(body, idx, name):
    lines = body.split('\n')
    end = f"L{name}_end:"
    epi = f"""    s_waitcnt vmcnt(0)
    s_memrealtime s[92:93]
    s_load_dwordx2 s[84:85], s[0:1], {KA['ws']}
    s_mov_b64 exec, -1
    v_mov_b32 v1, 0
    s_waitcnt lgkmcnt(0)
    s_add_u32 s84, s84, {WS_STAMP + 65536 + idx * 4096}
    s_addc_u32 s85, s85, 0
    s_mov_b32 s86, 4096
    s_mov_b32 s87, 0x20000
    s_lshl_b32 s88, s2, 3
    v_mov_b32 v2, s100
    v_mov_b32 v3, s92
    buffer_store_dwordx2 v[2:3], v1, s[84:87], s88 offen
    s_endpgm"""
    i = next(k for k, l in enumerate(lines) if l.strip() == 's_endpgm')
    lines[i] = epi
    return "    s_memrealtime s[100:101]\n" + '\n'.join(lines)


def build(diag=False):
    ks = []
    for name, fn in ((NAME, lambda: attn.k_attn(diag)),):
        r = fn()
        if len(r) > 3:
            print(name, r[3], file=sys.stderr)
        body = r[0]
        if diag or OPT['tl']:
            body = add_timeline(body, len(ks), name)
        ks.append((name + '_kernel', body, r[1], r[2]))
    ref = open(os.path.join(os.path.dirname(os.path.abspath(__file__)), '..', NAME + '.s.ref')).read()
    head = [l for l in ref.split('\n') if l.startswith(';') and 'launch' not in l.replace('launch list', '').replace('later launches', '') and 'grid=' not in l]
    out = '\n'.join(head) + '\n'
    out += DOC
    for label, _, _, g in ks:
        out += f"; @launch {'kernel=' + label + ' ' if len(ks) > 1 or diag else ''}grid=({g['grid']},1,1) block=({g['block']},1,1) lds={g['lds']}\n"
    out += '.amdgcn_target "amdgcn-amd-amdhsa--gfx950"\n.text\n'
    for label, body, _, _ in ks:
        out += kernel_text(label, body)
    out += '.section .rodata,"a"\n'
    for label, _, nv, _ in ks:
        out += kd_text(label, nv, min(256, (nv + 3) // 4 * 4))
    return out


if __name__ == '__main__':
    diag = '--diag' in sys.argv
    for x in sys.argv[1:]:
        if x.startswith('--') and '=' in x:
            k, v = x[2:].split('=')
            assert k in OPT, k
            OPT[k] = type(OPT[k])(v.replace('+', ' '))
    dst = [x for x in sys.argv[1:] if not x.startswith('--')]
    dst = dst[0] if dst else os.path.join(os.path.dirname(os.path.abspath(__file__)), '..', NAME + '.s')
    open(dst, 'w').write(build(diag))
```

```python
import re, sys, subprocess, tempfile
from dsl import *
from sched import Stream
import tail, head

M16 = 'v_mfma_f32_16x16x32_bf16'
KAD = 8
TA = (12, 20, 28)
DK, DV, DQ, DO = 36, 40, 42, 46
IDX, HV, ONES, STV = 50, 51, 52, 56
RL = 58
Q = 64
ACC = 128
P = 128
NEGM = 192
S = 208
TMP = 216
OBT = (128, 144, 192, 176)
OACC = 192
PK = 224
O = 0
HF = 0
class _AF:
    def __getitem__(self, i):
        return (0 if OPT['wdp'] == 7 else 208, 160)[i]


AF = _AF()
VF = 160
L = 192
KF = 208
sK, sV, sW, sCNT, sWQ, sWO, sH, sPART, sPASS, sT = 40, 41, 42, 43, 44, 45, 46, 47, 48, 49
SRD_K, SRD_V, SRD_Q, SRD_O, SRD_H, SRD_P, SRD_C = 8, 12, 16, 20, 24, 28, 32
SRD_T, sTCH, sTCH2, TV, TV2 = (32, 80, 84), 39, 38, 57, 62
sFG, sFD, sF = 58, 59, 57
FV, FV2, FW = 254, 255, 51
sWOa, sWOb, sPD, sPR, sOX, sXF, sSAME = 7, 46, 56, 93, 55, 54, 53
sTO, sFM = 52, 6
sAR, AD, AV = 53, 248, 232
SRD_M, sMW = 16, 44
MC, MW, MR, MU, MA = 2, 7, 240, 244, 224
XV, XID = 252, 253
OAC, BUF = 64, 64
sH1 = 43
SRD_D, sEP, sTAG = 88, 94, 95
CNT = 63
QSCALE = 0x3e0293ee
THR = 0x63800000
MOFF = 0xc1c00000
FLAG_LDS = 131072


def tr(dst, base, db, off):
    w = base >> 16
    return f"ds_read_b64_tr_b16 {ar(dst, 2)}, v{TA[w] + db} offset:{(base & 0xffff) + off}"


def dma(voff, srd, soff, p):
    o = f" offset:{1024 * p}" if p else ""
    if srd in (SRD_K, SRD_V) and OPT['kv']:
        o += ' ' + OPT['kv']
    return f"buffer_load_dwordx4 v{voff}, {sr(srd, 4)}, s{soff} offen{o} lds"


def m0(base):
    return f"s_add_u32 m0, s{sW}, {base}"


def tile_ops(kind, base, tag, soff_expr=None):
    ops = []
    for p in range(4):
        pre = []
        if p == 0:
            if soff_expr:
                pre.append(soff_expr)
            pre.append(m0(base))
        if kind == 'K':
            t = dma(DK + p, SRD_K, sK, p)
        elif kind == 'V':
            t = dma(DV + (p & 1), SRD_V, sV, p)
        elif kind == 'Q':
            t = dma(DQ + p, SRD_Q, sT, p)
        else:
            t = dma(DO + p, SRD_O, sT, p)
        post = []
        if p == 3 and kind == 'K':
            post.append(f"s_add_u32 s{sK}, s{sK}, 16384")
        if p == 3 and kind == 'V':
            post.append(f"s_add_u32 s{sV}, s{sV}, 16384")
        ops.append((pre, t, tag, post))
    return ops


def k_tile(k):
    return tile_ops('K', (k % 4) * 16384, f'K{k}')


def v_tile(k):
    return tile_ops('V', 65536 + (k % 4) * 16384, f'V{k}')


def qreg(c):
    return ((c + 1) % 5) * 32768


def qpos(p):
    if p < 5 or not OPT['ab']:
        return [(0, p), (1, p)]
    return [((p - 5) >> 1, 5 + 2 * ((p - 5) & 1) + t) for t in range(2)]


def wq_tile(p, tau):
    hh, c = qpos(p)[tau]
    return tile_ops('Q', qreg(p) + 16384 * tau, f'WQ{p}', f"s_add_u32 s{sT}, s{sWQ}, {c * 64 * 8192 + 256 * hh}")


def oreg(c):
    return (0, 2, 1, 3)[c % 4] * 32768


class _Pos:
    def __getitem__(self, p):
        if OPT['o3']:
            return [(0, None), (0, 0), (0, 1), (0, 2), (1, 0), (1, 1), (1, 2), (0, 3), (1, 3)][p]
        return [(0, None), (0, 0), (0, 1), (1, 0), (1, 1), (0, 2), (1, 2), (0, 3), (1, 3)][p]


POS = _Pos()


def wo_tile(p, tau):
    src, c = POS[p]
    base, col = (sWO, 1024) if c is None else ((sWOa, sWOb)[src], 256 * c)
    return tile_ops('O', oreg(p) + 16384 * tau, f'WO{p}', f"s_add_u32 s{sT}, s{base}, {64 * tau * 1152 + col}")


def h_loads(c):
    ops = []
    for tt in range(2):
        for ks in range(2):
            ops.append(([], f"buffer_load_dwordx4 {ar(HF + 16 * c + 8 * ks + 4 * tt, 4)}, v{HV}, {sr(SRD_H, 4)}, s{sH1 if tt else sH} offen offset:{128 * (2 * c + ks)} sc1", f'H{c}', []))
    return ops


def emit_op(s, op):
    pre, t, tag, post = op
    for x in pre:
        s(x)
    s(t, tag)
    for x in post:
        s(x)


class Gaps:
    def __init__(self):
        self.m = []

    def add(self, text):
        self.m.append(dict(m=text, salu=[], ds=[], vm=[], valu=[], tail=[]))
        return len(self.m) - 1

    def put(self, i, kind, text, tag=None):
        self.m[i][kind].append((text, tag))

    def put_op(self, i, op):
        pre, t, tag, post = op
        for j, x in enumerate(pre):
            self.put(i - len(pre) + j, 'salu', x)
        self.put(i, 'vm', t, tag)
        for x in post:
            self.put(min(i + 1, len(self.m) - 1), 'salu' if i + 1 < len(self.m) else 'tail', x)

    def emit(self, s):
        for i, g in enumerate(self.m[:-1]):
            if OPT['clr'] and g['m'] and g['vm'] and g['ds']:
                self.m[i + 1]['ds'] = g['ds'] + self.m[i + 1]['ds']
                g['ds'] = []
        for g in self.m:
            if g['m']:
                s(g['m'])
            for kind in ('salu', 'ds', 'vm', 'valu', 'tail'):
                for text, tag in g[kind]:
                    s(text, tag)


def stamp(s, diag, i, fine=False):
    if diag and ((OPT['fine'] != 0) == fine or i in (0, 9)):
        s(f"s_memtime {sr(60 + 2 * i, 2)}")


def setup(s):
    s(f"s_lshl_b32 s{sW}, s3, 12")
    s("v_lshrrev_b32 v2, 4, v1")
    s("v_and_b32 v3, 15, v1")
    s("v_lshrrev_b32 v5, 1, v3")
    s("v_mul_u32_u24 v5, 2304, v5")
    s("v_lshl_add_u32 v5, v2, 5, v5")
    s("v_and_b32 v6, 1, v3")
    s(f"v_lshl_add_u32 v{HV}, v6, 4, v5")
    s("s_lshl_b32 s6, s5, 2")
    s("s_add_u32 s6, s6, s3")
    s(f"s_mul_i32 s{sH}, s6, 36864")
    s(f"s_add_u32 s{sH}, s{sH}, {WS_H}")
    s(f"s_add_u32 s{sH1}, s{sH}, 18432")
    s(f"s_mul_i32 s{sWO}, s4, {256 * 1152}")
    s("s_lshl_b32 s7, s3, 4")
    s("v_add_u32 v4, s7, v2")
    s("v_lshlrev_b32 v5, 1, v2")
    s("v_xor_b32 v5, v5, v3")
    s("v_xor_b32 v6, 8, v5")
    s("v_lshlrev_b32 v7, 13, v4")
    s(f"v_lshl_add_u32 v{DQ}, v5, 4, v7")
    s(f"v_lshl_add_u32 v{DQ + 1}, v6, 4, v7")
    s(f"v_add_u32 v{DQ + 2}, {2 * (32768 - 1024)}, v{DQ}")
    s(f"v_add_u32 v{DQ + 3}, {3 * (32768 - 1024)}, v{DQ + 1}")
    s(f"v_add_u32 v{DQ + 1}, {32768 - 1024}, v{DQ + 1}")
    s("s_lshl_b32 s7, s4, 19")
    s(f"s_add_u32 s{SRD_K}, s52, s7")
    s(f"s_addc_u32 s{SRD_K + 1}, s53, 0")
    s(f"s_mov_b32 s{SRD_K + 2}, 524288")
    s(f"s_mov_b32 s{SRD_K + 3}, 0x20000")
    s(f"s_add_u32 s{SRD_V}, s54, s7")
    s(f"s_addc_u32 s{SRD_V + 1}, s55, 0")
    s(f"s_mov_b32 s{SRD_V + 2}, 524288")
    s(f"s_mov_b32 s{SRD_V + 3}, 0x20000")
    a = Asm()
    a.srd(SRD_P, 50, PART_BYTES, WS_PART)
    s(a.text())
    s("v_lshlrev_b32 v7, 8, v4")
    s(f"v_lshl_add_u32 v{DV}, v5, 4, v7")
    s(f"v_lshl_add_u32 v{DV + 1}, v6, 4, v7")
    s(f"v_xor_b32 v{TMP + 8}, v3, v2")
    s(f"v_lshl_add_u32 v{DK}, v{TMP + 8}, 4, v7")
    for p in range(1, 4):
        s(f"v_xor_b32 v{DK + p}, {64 * p}, v{DK}")
    for e, ch in ((0, 5), (1, 6)):
        s(f"v_lshrrev_b32 v7, 3, v{ch}")
        s("v_lshl_add_u32 v7, v7, 7, v4")
        s("v_mul_u32_u24 v7, 1152, v7")
        s(f"v_and_b32 v{TMP + 9}, 7, v{ch}")
        s(f"v_lshl_add_u32 v{DO + e}, v{TMP + 9}, 4, v7")
    s(f"v_add_u32 v{DO + 2}, {2 * (4608 - 1024)}, v{DO}")
    s(f"v_add_u32 v{DO + 3}, {3 * (4608 - 1024)}, v{DO + 1}")
    s(f"v_add_u32 v{DO + 1}, {4608 - 1024}, v{DO + 1}")
    s("v_lshlrev_b32 v7, 8, v3")
    s(f"v_lshl_add_u32 v{KAD}, v{TMP + 8}, 4, v7")
    for k in range(1, 4):
        s(f"v_xor_b32 v{KAD + k}, {64 * k}, v{KAD}")
    s("v_lshrrev_b32 v5, 2, v1")
    s("v_and_b32 v6, 7, v5")
    s("v_lshlrev_b32 v6, 5, v6")
    s("v_lshl_add_u32 v6, v5, 8, v6")
    s("v_and_b32 v7, 3, v1")
    s(f"v_lshl_add_u32 v{TA[0]}, v7, 3, v6")
    for db in range(1, 8):
        s(f"v_xor_b32 v{TA[0] + db}, {32 * db}, v{TA[0]}")
    for w in (1, 2):
        for db in range(8):
            s(f"v_add_u32 v{TA[w] + db}, {65536 * w}, v{TA[0] + db}")
    if OPT['l2']:
        s("v_cmp_gt_u32 s[36:37], 2, v3")
        s("v_mov_b32 v5, 0x3f803f80")
        s("s_nop 0")
        for i in range(4):
            s(f"v_cndmask_b32 v{ONES + i}, 0, v5, s[36:37]")
    else:
        for i in range(4):
            s(f"v_mov_b32 v{ONES + i}, 0x3f803f80")
    s("v_and_b32 v5, 1, v1")
    s("v_mul_u32_u24 v5, 0xaaaa, v5")
    s("v_add_u32 v5, 0x4444, v5")
    s(f"v_lshl_add_u32 v{IDX}, v5, 16, v5")
    s("v_lshrrev_b32 v5, 1, v3")
    s(f"v_mul_u32_u24 v5, {PAIR}, v5")
    s("v_lshl_add_u32 v5, v2, 5, v5")
    s("v_and_b32 v6, 1, v3")
    s(f"v_lshl_add_u32 v{STV}, v6, 4, v5")
    s(f"s_mul_i32 s{sPART}, s6, {16 * PAIR}")
    a = Asm()
    a.srd(SRD_T[0], 82, SZ['wu'])
    a.srd(SRD_T[1], 80, SZ['wg'])
    a.srd(SRD_T[2], 84, SZ['wd'])
    s(a.text())
    s("s_lshr_b32 s7, s2, 3")
    s("s_mul_i32 s7, s7, 18")
    s("s_add_u32 s7, s7, s3")
    s("s_and_b32 s36, s2, 7")
    s("s_mul_i32 s37, s36, 576")
    s("s_add_u32 s37, s37, s7")
    s("s_mul_i32 s37, s37, 1152")
    s("s_mul_i32 s7, s7, 9216")
    s("s_mul_i32 s36, s36, 1152")
    s("s_add_u32 s7, s7, s36")
    s("v_min_u32 v5, 17, v1")
    s(f"v_lshl_add_u32 v{TV}, v5, 6, s7")
    s(f"v_lshl_add_u32 v{TV2}, v5, 6, s37")
    s(f"s_mov_b32 s{sK}, 0")
    s(f"s_mov_b32 s{sV}, 0")
    s(f"s_mov_b32 s{sPASS}, 0")


def qproj(s, diag):
    def rd(n, r):
        c, d = divmod(n, 16)
        ks, u = r >> 1, r & 1
        return tr(VF + 8 * (n % 4) + 4 * ks + 2 * u, qreg(c) + 16384 * (d >> 3), d & 7, 8192 * ks + 4096 * u)
    if OPT['fine'] == 5:
        s("s_memtime s[60:61]")
    s("@vm WQ0")
    s("s_barrier")
    for n in range(3):
        for r in range(4):
            s(rd(n, r))
    me = sys.modules[__name__]
    if OPT['sv']:
        for x in head.h_probe(me):
            s(x)
        s("s_cbranch_vccnz Lhead_again")
        s("Lhead_valid:")
        stamp(s, diag and OPT['fine'] == 1, 8, True)
    else:
        for op in h_loads(1):
            emit_op(s, op)
    G = Gaps()
    for n in range(144):
        hh, c = qpos(n >> 4)[(n >> 3) & 1]
        d = 8 * hh + (n & 7)
        order = [(0, 0), (0, 1), (1, 0), (1, 1)]
        if OPT['sn'] & 2:
            order = [(n & 1, 0), (n & 1, 1), (~n & 1, 1), (~n & 1, 0)]
        for x, (tt, ks) in enumerate(order):
            acc = vr(ACC + 8 * d + 4 * tt, 4)
            cin = '0' if (c == 0 and x % 2 == 0) else acc
            i = G.add(f"{M16} {acc}, {ar(VF + 8 * (n % 4) + 4 * ks, 4)}, {ar(HF + 16 * c + 8 * ks + 4 * tt, 4)}, {cin}")
            if n + 3 < 144:
                G.put(i, 'ds', rd(n + 3, x))
    last = -9
    hq = [op for c in range(3, 9) for op in h_loads(c)]
    for c in range(9):
        b = 64 * c
        if c < 8:
            G.put(b + 51, 'tail', f"@vm WQ{c + 1}")
            G.put(b + 51, 'tail', "s_barrier")
        start = -9
        me = sys.modules[__name__]
        tch = head.touch_ops(me)
        if c == 0:
            start = 3
            ops = (wq_tile(2, 0) + wq_tile(2, 1) if OPT['nq2'] == 2 else []) + ([] if OPT['sv'] else h_loads(2)) + (tch if OPT['kt'] == 0 else tch[:1])
            if OPT['sv']:
                ops.insert(-1, ([], head.h_poll(me), None, []))
                G.put(OPT['hc'] - 2, 'valu', f"v_cmp_ne_u32 vcc, s{sTAG}, v{head.vT + 3}")
                G.put(OPT['hc'], 'tail', "s_cbranch_vccnz Lhead_hspin")
                G.put(OPT['hc'], 'tail', "Lhead_goth:")
        elif c <= 6:
            start = max(-9, OPT['qs'] - OPT['qd'] * (c - 1))
            ops = wq_tile(c + 2, 0) + wq_tile(c + 2, 1) if c + 2 >= OPT['nq2'] else []
            n_h = int(OPT['hd'][c - 1]) if OPT['ab'] else 4
            ops += [hq.pop(0) for _ in range(n_h)]
            if c == OPT['kt']:
                ops += tch[1:]
            if c == 6:
                ops += head.arm_ops(me)
        elif c == 7:
            ops = k_tile(0) + k_tile(1)
        else:
            ops = k_tile(2) + v_tile(0) + v_tile(1)
        step = 4 if len(ops) < 16 else 3
        for j, op in enumerate(ops):
            assert b + start + step * j > last + 2
            assert not (OPT['sv'] and op[2] and op[2][0] == 'H' and b + start + step * j <= OPT['hc'])
            G.put_op(b + start + step * j, op)
        last = b + start + step * (len(ops) - 1)
    assert not hq
    rest = []
    if OPT['ab']:
        G.put(64 * 6 + 30, 'salu', f"s_mov_b32 s36, {QSCALE}")
        g = 0
        for sx in range(4):
            g = max(g, 64 * 6 + 32 + 8 * sx + 11)
            for x in q_pack(0, sx, False):
                while g < 576 and (G.m[g]['vm'] or G.m[g - 1]['vm'] or len(G.m[g]['valu']) + len(G.m[g]['ds']) + (568 <= g <= 572) >= 2):
                    g += 1
                if g < 576:
                    G.put(g, 'valu', x)
                else:
                    rest.append(x)
    if OPT['fine'] == 5:
        for c in range(8):
            G.put(64 * c + 1, 'tail', f"s_memtime {sr(62 + 2 * c, 2)}")
        G.put(575, 'tail', "s_memtime s[78:79]")
    G.put(64 * 8 + 55, 'tail', "@vm K0")
    G.put(64 * 8 + 55, 'tail', "s_barrier")
    for k in range(4):
        G.put(64 * 8 + 56 + k, 'ds', kread(0, 0, k))
    G.put(64 * 8 + 60, 'ds', kread(0, 1, 0))
    G.put(64 * 8 + 62, 'salu', f"s_load_dwordx2 {sr(SRD_M, 2)}, s[0:1], {KA['wmod']}")
    G.emit(s)
    for x in rest:
        s(x)


def kread(k, kb, sidx):
    return f"ds_read_b128 {ar(KF + 16 * (kb & 1) + 4 * sidx, 4)}, v{KAD + sidx} offset:{(k % 4) * 16384 + 4096 * kb}"


def q_pack(hh, sx, pk):
    o = []
    for tt in range(2):
        for y in range(2):
            a0 = ACC + 8 * (8 * hh + 2 * sx + y) + 4 * tt
            if pk:
                o += [f"v_pk_mul_f32 {vr(a0 + 2 * e, 2)}, {vr(a0 + 2 * e, 2)}, s[36:37]" for e in range(2)]
            else:
                o += [f"v_mul_f32 v{a0 + e}, s36, v{a0 + e}" for e in range(4)]
    if pk:
        o.append(None)
    for tt in range(2):
        q = Q + 16 * (2 * hh + tt) + 4 * sx
        for y in range(2):
            a0 = ACC + 8 * (8 * hh + 2 * sx + y) + 4 * tt
            o += [f"v_cvt_pk_bf16_f32 v{q + 2 * y + e}, v{a0 + 2 * e}, v{a0 + 2 * e + 1}" for e in range(2)]
    if pk:
        o.append(None)
    for sw in ('v_permlane32_swap_b32', 'v_permlane16_swap_b32'):
        for tt in range(2):
            q = Q + 16 * (2 * hh + tt) + 4 * sx
            o += [f"{sw} v{q + e}, v{q + 2 + e}" for e in range(2)]
    return o


def qfinish(s):
    s(f"s_mov_b32 s36, {QSCALE}")
    s(f"s_mov_b32 s37, {QSCALE}")
    for e in range(4):
        s(f"v_mov_b32 v{RL + e}, 0")
    z = [f"v_mfma_f32_32x32x16_bf16 {ar(r, 16)}, {vr(RL, 4)}, {vr(RL, 4)}, 0" for r in list(range(O, O + 128, 16)) + [L]]
    for hh in range(1 if OPT['ab'] else 0, 2):
        for sx in range(4):
            for x in q_pack(hh, sx, True):
                if x is not None:
                    s(x)
                elif z:
                    s(z.pop(0))
    return z


def cross_max_to_negm(s, M, off='0'):
    for sw in ('v_permlane16_swap_b32', 'v_permlane32_swap_b32'):
        for qb in range(4):
            s(f"v_mov_b32 v{M + 4 + qb}, v{M + qb}")
        for qb in range(4):
            s(f"{sw} v{M + qb}, v{M + 4 + qb}")
        for qb in range(4):
            s(f"v_max_f32 v{M + qb}, v{M + qb}, v{M + 4 + qb}")
    for qb in range(4):
        for i in range(4):
            s(f"v_sub_f32 v{NEGM + 4 * qb + i}, {off}, v{M + qb}")


def prepass(s, z):
    s("@lgkm 0")
    for qb in range(4):
        for sx in range(4):
            d = vr(TMP + 4 * qb, 4)
            s(f"{M16} {d}, {ar(KF + 4 * sx, 4)}, {vr(Q + 16 * qb + 4 * sx, 4)}, {'0' if sx == 0 else d}")
    for x in z:
        s(x)
    M = TMP + 16
    for qb in range(4):
        t = TMP + 4 * qb
        s(f"v_max3_f32 v{M + qb}, v{t}, v{t + 1}, v{t + 2}")
        s(f"v_max_f32 v{M + qb}, v{M + qb}, v{t + 3}")
    cross_max_to_negm(s, M, MOFF)


def interval_ops(k):
    a = k_tile(k + 2) if k + 2 <= 31 else None
    b = v_tile(k + 1) if k + 1 <= 31 else None
    if k == 30:
        a = wo_tile(0, 0)
    if k == 31:
        a, b = wo_tile(0, 1), wo_tile(1, 0)
    if k == 32:
        a, b = wo_tile(1, 1), wo_tile(2, 0)
    return a + b


def rowsum(k, q2):
    return f"v_smfmac_f32_16x16x64_bf16 {ar(L + 4 * q2, 4)}, {vr(ONES, 4)}, {vr(P + 32 * ((k - 1) & 1) + 8 * q2, 8)}, v{IDX}"


def ob(tt, ks):
    return OBT[ks & 3] + 4 * (2 * (ks >> 2) + tt)


def norm_tile(n):
    db, qb = divmod(n, 4)
    hh, tt, t, y = qb >> 1, qb & 1, db >> 1, db & 1
    tmp = S + 4 * (n & 1)
    ops = [(f"v_accvgpr_read_b32 v{tmp + e}, a{O + 4 * n + e}", None) for e in range(4)]
    ops += [(f"v_pk_mul_f32 {vr(tmp + 2 * e, 2)}, {vr(tmp + 2 * e, 2)}, {vr((RL + qb) & ~1, 2)} op_sel:[0,{qb & 1}] op_sel_hi:[1,{qb & 1}]", None) for e in range(2)]
    d = ob(tt, 4 * hh + t) + 2 * y
    ops += [(f"v_cvt_pk_bf16_f32 v{d + e}, v{tmp + 2 * e}, v{tmp + 2 * e + 1}", None) for e in range(2)]
    if y:
        pre, st, tag, _ = o_store(8 * tt + 4 * hh + t)
        ops += [(pre[0], None), (st, tag)]
    return ops


def stage(s, k):
    G = Gaps()
    qk, pv = k <= 31, k >= 1
    gi = {}
    for i in range(16):
        kb, qb = i >> 2, i & 3
        for sx in range(4):
            d = vr(S + 4 * (i & 1), 4)
            t = f"{M16} {d}, {ar(KF + 16 * (kb & 1) + 4 * sx, 4)}, {vr(Q + 16 * qb + 4 * sx, 4)}, {vr(NEGM + 4 * qb, 4) if sx == 0 else d}"
            if k == 32 and i == 0 and sx < 3:
                gi[i, sx] = G.add(rowsum(k, sx))
                continue
            gi[i, sx] = G.add(t if qk else None)
        db = i >> 1
        for x in range(4):
            q2, t = 2 * (i & 1) + (x >> 1), (x ^ (x >> 1 if OPT['sn'] & 1 else 0)) & 1
            if OPT['pvo'] == 1:
                q2, t = 2 * (i & 1) + (0, 1, 1, 0)[x], x >> 1
            if OPT['pvo'] == 2:
                q2, t = 2 * (i & 1) + (x & 1), x >> 1
            d = ar(O + 16 * db + 4 * q2, 4)
            if OPT['pvo'] == 3:
                d = ar(O + 16 * db + 8 * (i & 1) + 4 * (k & 1), 4)
            tx = f"{M16} {d}, {ar(VF + 8 * (db % 4) + 4 * t, 4)}, {vr(P + 32 * ((k - 1) & 1) + 8 * q2 + 4 * t, 4)}, {d}"
            gi[i, 4 + x] = G.add(tx if pv else None)
        lq = ({1: 0, 3: 1, 5: 2, 7: 3} if OPT['sg'] else {2: 0, 4: 1, 6: 2, 8: 3}) if qk else {0: 3}
        if pv and i in lq and not (OPT['va'] >> lq[i]) & 1:
            q2 = lq[i]
            gi[i, 8] = G.add(rowsum(k, q2))
    for i in range(16):
        Gx = 16 * k + i
        T = Gx - 1
        if 0 <= T < 512:
            tk, ti = divmod(T, 16)
            kb, qb = ti >> 2, ti & 3
            sb = S + 4 * (ti & 1)
            for e in range(4):
                G.put(gi[i, min(e + 1, 3) if k == 0 and OPT['z0'] else e], 'valu', f"v_exp_f32 v{sb + e}, v{sb + e}")
            pd = P + 32 * (tk & 1) + 8 * qb + 2 * kb
            if OPT['x'] & 512:
                G.put(gi[i, 4], 'valu', f"v_perm_b32 v{pd}, v{sb + 1}, v{sb}, s101")
                G.put(gi[i, 6], 'valu', f"v_perm_b32 v{pd + 1}, v{sb + 3}, v{sb + 2}, s101")
            else:
                G.put(gi[i, 4], 'valu', f"v_cvt_pk_bf16_f32 v{pd}, v{sb}, v{sb + 1}")
                G.put(gi[i, 6], 'valu', f"v_cvt_pk_bf16_f32 v{pd + 1}, v{sb + 2}, v{sb + 3}")
            if (OPT['va'] >> qb) & 1 and 1 <= k <= 28:
                G.put(gi[i, 5], 'valu', f"v_add_f32 v42, v{sb}, v{sb + 1}")
                G.put(gi[i, 7], 'valu', f"v_add_f32 v43, v{sb + 2}, v{sb + 3}")
                G.put(gi[i, 7], 'valu', f"v_add_f32 v{RL + qb}, v{RL + qb}, v42")
                G.put(gi[min(i + 1, 15), 5], 'valu', f"v_add_f32 v{RL + qb}, v{RL + qb}, v43")
        B, sx = divmod(Gx + 5, 4)
        if B < 128:
            if k == 0 and OPT['z0'] and i < 13:
                G.put(gi[i + 1, 0], 'ds', kread(B >> 2, B & 3, sx))
            else:
                G.put(gi[i, 6], 'ds', kread(B >> 2, B & 3, sx))
        D, t = divmod(Gx + 3 - 16, 2)
        if 0 <= D < 256:
            vk, db = divmod(D, 8)
            for u in range(2):
                G.put(gi[i, 4 + u], 'ds', tr(VF + 8 * (db % 4) + 4 * t + 2 * u, 65536 + (vk % 4) * 16384, db, 8192 * t + 4096 * u))
        if OPT['lw'] == 0:
            if qk and (pv or i == 15) and i % 2 == 1:
                G.put(gi[i, 7], 'salu', "@lgkm 3")
        elif qk and (pv or i == 14) and i % 2 == 0:
            G.put(gi[i, 0], 'salu', "@lgkm 3")
    if k >= 1:
        for j, op in enumerate(interval_ops(k)):
            if j >= 3:
                place(G, gi, 2 * (j - 3) + 1, op)
    if k <= 31:
        for j, op in enumerate(interval_ops(k + 1)[:3]):
            place(G, gi, 11 + 2 * j, op)
    if 1 <= k <= 28:
        if OPT['x'] & 128:
            pass
        elif k % 4 == 1:
            G.put(gi[2, 2], 'salu', f"s_mov_b32 m0, s{sFM}")
            G.put(gi[2, 7], 'vm', dma(FV, SRD_T[0], sF, 0).replace(' lds', ' ' + OPT['fnt'] + ' lds'), 'T')
            G.put(gi[4, 1], 'salu', f"s_add_u32 s{sFM}, s{sFM}, 4096")
            G.put(gi[4, 2], 'salu', f"s_add_u32 s{sF}, s{sF}, {64 * 9216}")
        elif k % 4:
            d = k % 4 == 3
            G.put(gi[12, 7], 'vm', f"buffer_load_dword v{TMP + k % 4}, v{TV2 if d else TV}, {sr(SRD_T[k % 4 - 1], 4)}, s{sTCH2 if d else sTCH} offen", 'T')
        else:
            G.put(gi[13, 1], 'salu', f"s_sub_u32 s{sTCH}, s{sTCH}, {4 * 9216}")
            G.put(gi[13, 2], 'salu', f"s_sub_u32 s{sTCH2}, s{sTCH2}, {4 * 1152}")
    if k == 0:
        G.put(gi[6, 7], 'salu', f"s_mov_b32 s{sTCH}, {24 * 9216}")
        G.put(gi[6, 7], 'salu', f"s_mov_b32 s{sTCH2}, {24 * 1152}")
    if k == 0:
        G.put(gi[15, 2], 'salu', f"s_mul_i32 s37, s5, 18432")
        G.put(gi[15, 3], 'salu', f"s_add_u32 s37, s37, s{sWO}")
        for x in (f"v_min_u32 v{TMP + 20}, 143, v0", f"v_lshl_add_u32 v{TMP + 20}, v{TMP + 20}, 7, s37",
                  f"v_mul_u32_u24 v{TMP + 19}, 24, v0", f"v_lshrrev_b32 v{TMP + 19}, 8, v{TMP + 19}",
                  f"v_lshl_add_u32 v{TMP + 19}, v{TMP + 19}, 7, s37"):
            G.put(gi[15, 5], 'valu', x)
    if k % 4 == 3 and k <= 28 and not OPT['x'] & 1024:
        G.put(gi[14, 7], 'vm', f"buffer_load_dword v{TMP + 5}, v{TMP + 19}, {sr(SRD_O, 4)}, 0 offen", 'T')
        G.put(gi[15, 5], 'valu', f"v_add_u32 v{TMP + 19}, {20 * 128}, v{TMP + 19}")
    if k == OPT['wot']:
        G.put(gi[6, 7], 'vm', f"buffer_load_dword v{TMP + 5}, v{TMP + 20}, {sr(SRD_O, 4)}, 0 offen", 'T')
    if k == 0:
        G.put(gi[14, 5], 'valu', f"v_min_u32 v{TMP + 21}, 19, v1")
        G.put(gi[14, 5], 'valu', f"v_lshl_add_u32 v{TMP + 21}, v{TMP + 21}, 7, s36")
        G.put(gi[14, 5], 'valu', f"v_lshl_add_u32 v{TMP + 22}, v1, 7, s36")
        G.put(gi[14, 3], 'salu', f"s_mov_b32 s{sTO}, s{sOX}")
        for x in (f"s_mov_b32 s{sF}, s{sFG}", f"s_lshl_b32 s{sFM}, s3, 10", f"s_add_u32 s{sFM}, s{sFM}, {tail.L_WU}",
                  "s_lshr_b32 s37, s2, 3", f"s_mul_i32 s37, s37, {-14 * 9216}", f"s_add_u32 s37, s37, {448 * 9216}"):
            G.put(gi[13, 5], 'salu', x)
        G.put(gi[14, 7], 'vm', f"buffer_load_dword v{TMP + 1}, v{TV}, {sr(SRD_T[0], 4)}, s37 offen", 'T')
    if OPT['oxt'] & 1 and k % 4 == 0 and 1 <= k <= 28:
        G.put(gi[12, 7], 'vm', f"buffer_load_dword v{TMP}, v{TMP + 21}, {sr(SRD_P, 4)}, s{sTO} offen", 'T')
        G.put(gi[13, 3], 'salu', f"s_add_u32 s{sTO}, s{sTO}, {18 * 128}")
    if OPT['oxt'] & 4 and k == 0:
        G.put(gi[14, 6], 'tail', f"s_add_u32 s{sTO}, s36, {19 * 128}")
    if OPT['oxt'] & 4 and 1 <= k <= 28:
        if k % 4 == 3:
            G.put(gi[0, 5], 'valu', f"v_min_u32 v{TMP + 21}, s{sTO}, v{TMP + 22}")
            G.put(gi[0, 7], 'vm', f"buffer_load_dword v{TMP + 4}, v{TMP + 21}, {sr(SRD_P, 4)}, s{sOX} offen", 'T')
            G.put(gi[1, 5], 'valu', f"v_add_u32 v{TMP + 21}, 8192, v{TMP + 22}")
            G.put(gi[2, 5], 'valu', f"v_min_u32 v{TMP + 21}, s{sTO}, v{TMP + 21}")
        if k % 4 == 0:
            G.put(gi[12, 7], 'vm', f"buffer_load_dword v{TMP}, v{TMP + 21}, {sr(SRD_P, 4)}, s{sOX} offen", 'T')
            G.put(gi[13, 3], 'salu', f"s_add_u32 s{sTO}, s{sTO}, {18 * 128}")
    if OPT['oxt'] & 8 and k in (29, 30):
        if k == 29:
            G.put(gi[2, 8], 'valu', f"v_lshl_add_u32 v{TMP + 22}, v1, 7, v{TMP + 22}")
        G.put(gi[12, 7], 'vm', f"buffer_load_dword v{TMP + 23 - 5 * (k - 29)}, v{TMP + 22}, {sr(SRD_P, 4)}, s{sOX} offen offset:{128 * (k - 29)}", 'T')
    if OPT['oxt'] & 2:
        for j, (kk, i) in enumerate({0: ((29, 12), (31, 12)), 1: ((29, 12), (30, 12)), 2: ((29, 2), (29, 12)), 3: ((29, 2), (30, 6))}[OPT['rt']]):
            if k == kk:
                G.put(gi[i, 3], 'salu', f"s_add_u32 s37, s{sOX}, {8192 * j}")
                G.put(gi[i, 7], 'vm', f"buffer_load_dword v{TMP + 23 - 5 * j}, v{TMP + 22}, {sr(SRD_P, 4)}, s37 offen", 'T')
    need = []
    if k + 1 <= 31:
        need.append(f'K{k + 1}')
    if k <= 31:
        need.append(f'V{k}')
    if k == 32:
        need.append('WO0')
    if k == 0:
        o, v = ffn_setup()
        for j, x in enumerate(o + v):
            for y in (x if isinstance(x, tuple) else (x,)):
                if j < len(o):
                    G.put(gi[j // 4, j % 4], 'salu', y)
                elif OPT['z0'] and 's36' not in y and j - len(o) < 20:
                    jj = j - len(o)
                    G.put(gi[0, jj >> 1] if jj < 8 else gi[jj - 7, 0], 'valu', y)
                else:
                    G.put(gi[13, 4], 'valu', y)
    if 29 <= k <= 31:
        for j, i in enumerate((0, 4, 8, 14)):
            n = 4 * (k - 29) + j
            if not OPT['x'] & 256:
                pre, t, tag, _ = ffn_load(n)
                G.put(gi[i, 7], 'salu', pre[0])
                G.put(gi[i, 7], 'vm', t, tag)
    if k == 30:
        G.put(gi[0, 5], 'valu', f"v_mov_b32 v{CNT}, 0")
        G.put(gi[2, 7], 'vm', f"buffer_load_dword v{XID}, v{CNT}, {sr(SRD_H, 4)}, s{sXF} offen offset:12 sc1", 'T')
    if OPT['cl'] and k == 0:
        for x in ("s_lshr_b32 s36, s2, 3", "s_lshl_b32 s36, s36, 7", f"v_lshrrev_b32 v{TMP + 17}, 5, v0", f"v_lshl_add_u32 v{TMP + 17}, v{TMP + 17}, 12, s36"):
            G.put(gi[15, 6], 'tail', x)
    if OPT['cl'] and 1 <= k <= 28 and k % 4 == 4 - OPT['cl']:
        G.put(gi[0, 2], 'salu', "s_getpc_b64 s[36:37]")
        G.put(gi[0, 7], 'vm', f"global_load_dword v{TMP + 4}, v{TMP + 17}, s[36:37] offset:4092", 'T')
    if k == OPT['ct']:
        for j, x in enumerate((f"s_getpc_b64 {sr(SRD_M, 2)}", "Lattn_pc2:", f"s_mov_b32 s{SRD_M + 2}, Lattn_redo-Lattn_pc2",
                               "s_lshr_b32 s37, s2, 3", "s_lshl_b32 s37, s37, 7")):
            G.put(gi[5, 0] if j < 2 else gi[5 + (j > 3), (j - 1) % 3], 'salu', x)
        G.put(gi.get((4, 8), gi[4, 6]), 'valu', f"v_lshrrev_b32 v{TMP + 6}, 5, v0")
        G.put(gi[5, 5], 'valu', f"v_lshlrev_b32 v{TMP + 6}, 12, v{TMP + 6}")
        G.put(gi[6, 7], 'vm', f"buffer_load_dword v{TMP + 6}, v{TMP + 6}, {sr(SRD_M, 4)}, s37 offen", 'T')
    if OPT['fine'] == 7 and k >= 29:
        G.put(gi[0, 4], 'tail', f"s_memtime {sr(60 + 4 * (k - 29), 2)}")
        G.put(gi[8, 4], 'tail', f"s_memtime {sr(62 + 4 * (k - 29), 2)}")
        if k == 32:
            G.put(gi[15, 7], 'tail', "s_memtime s[76:77]")
    late_mod(G, gi, k)
    if k == 32 and OPT['wdp'] == 6 and OPT['wd0'] < 0:
        for j in range(8):
            pre, t, tag, _ = ffn_load(12 + j)
            G.put(gi[8 + j, 4], 'tail', pre[0])
            G.put(gi[8 + j, 4], 'tail', t, tag)
    if OPT['wdp'] == 7 and k >= 31:
        assert OPT['ne'] >= 8
        for j in range(4):
            pre, t, tag, _ = ffn_load(12 + 4 * (k - 31) + j)
            i = 12 + j if k == 31 else j
            G.put(gi[i, 4 if k == 31 else 5], 'salu', pre[0])
            G.put(gi[i, 6], 'vm', t, tag)
    if k == 32:
        lfinish(G, gi)
    G.put(gi[10, 7], 'tail', f"@vm {','.join(need)} force")
    G.put(gi[10, 7], 'tail', "s_barrier")
    if k == 32:
        G.put(gi[11, 6], 'ds', f"ds_read_b128 {vr(TMP + 8, 4)}, v{TMP + 12}")
        for j, op in enumerate(wo_tile(2, 1) + wo_tile(3, 0)):
            i, sl = divmod(j, 2)
            G.put_op(gi[12 + i, 5 + 2 * sl], op)
    G.emit(s)


def place(G, gi, i, op):
    pre, t, tag, post = op
    for j, x in enumerate(pre):
        G.put(gi[i, 1 + j], 'salu', x)
    G.put(gi.get((i, 8), gi[i, 7]) if OPT['sg'] == 2 else gi[i, 7], 'vm', t, tag)
    for x in post:
        G.put(gi[i + 1, 1], 'salu', x)


def lfinish(G, gi):
    ops = []
    for qb in range(4):
        ops.append(f"v_accvgpr_read_b32 v{TMP + 2 * qb}, a{L + 4 * qb}")
        ops.append(f"v_accvgpr_read_b32 v{TMP + 2 * qb + 1}, a{L + 4 * qb + 1}")
    for qb in range(4):
        ops.append(f"v_add_f32 v{RL + qb}, v{TMP + 2 * qb}, v{TMP + 2 * qb + 1}")
    if OPT['l2']:
        for sw in ('v_permlane16_swap_b32', 'v_permlane32_swap_b32'):
            for qb in range(4):
                ops.append(f"v_mov_b32 v{TMP + qb}, v{RL + qb}")
            for qb in range(4):
                ops.append(f"{sw} v{RL + qb}, v{TMP + qb}")
    ops.append(f"v_add_f32 v{TMP}, v{RL}, v{RL + 1}")
    ops.append(f"v_add_f32 v{TMP + 1}, v{RL + 2}, v{RL + 3}")
    ops.append(f"v_add_f32 v{TMP}, v{TMP}, v{TMP + 1}")
    ops.append(f"v_cmp_ngt_f32 vcc, {THR}, v{TMP}")
    for qb in range(4):
        ops.append(f"v_rcp_f32 v{RL + qb}, v{RL + qb}")
    ops.append(f"v_mov_b32 v{TMP + 12}, {FLAG_LDS}")
    ops.append("s_or_b32 s36, vcc_lo, vcc_hi")
    ops.append(f"v_mov_b32 v{TMP + 2}, s36")
    ops.append(f"s_lshl_b32 s38, s3, 2")
    ops.append(f"v_add_u32 v{TMP + 3}, s38, v{TMP + 12}")
    ops.append(f"ds_write_b32 v{TMP + 3}, v{TMP + 2}")
    slots = [gi[i, sl] for i in (1, 2, 3) for sl in ((4, 5, 6, 7) * 3 if OPT['l2'] else (4, 5, 5, 6, 6, 7, 7))]
    slots = sorted(slots)[0 if OPT['l2'] else 1:] + [gi[i, sl] for i in (4, 5, 6) for sl in (4, 5)]
    for n in range(OPT['ne']):
        for o, tag in norm_tile(n):
            G.put(gi[16 - OPT['ne'] // 2 + (n >> 1), 6 + (n & 1)], 'valu', o, tag)
    assert len(ops) <= len(slots), (len(ops), len(slots))
    for o, g in zip(ops, slots):
        G.put(g, 'valu', o, 'FLAG')
    G.put(gi[10, 7], 'tail', "@ds FLAG")


def oread(n, r):
    c, nb = divmod(n, 4)
    ks, u = r >> 1, r & 1
    hh, t = ks >> 2, ks & 3
    return tr(AF[n & 1] + 4 * ks + 2 * u, oreg(c) + 16384 * (t >> 1), 4 * hh + nb, 8192 * (t & 1) + 4096 * u)


def normalize(s):
    s(f"v_or3_b32 v{TMP + 8}, v{TMP + 8}, v{TMP + 9}, v{TMP + 10}")
    s(f"v_or_b32 v{TMP + 8}, v{TMP + 8}, v{TMP + 11}")
    s(f"v_readfirstlane_b32 s36, v{TMP + 8}")
    s(f"v_readfirstlane_b32 s38, v{XID}")
    s(f"v_min_u32 v{tail.vF}, 1, v1")
    s(f"v_lshlrev_b32 v{tail.vF}, 31, v{tail.vF}")
    s(f"v_mov_b32 v{tail.vZ}, s{sTAG}")
    s(f"s_getreg_b32 s39, hwreg(HW_REG_XCC_ID, 0, 4)")
    s("s_lshl_b32 s39, s39, 28")
    s(f"s_xor_b32 s39, s39, s{sTAG}")
    s("s_cmp_eq_u32 s38, s39")
    s(f"s_cselect_b32 s{sSAME}, {0 if OPT['x'] & 4 else 1}, 0")
    for r in range(16):
        s(oread(0, r))
    s(f"s_andn2_b32 s36, s36, s{sPASS}" if not OPT['abl'] else "s_and_b32 s36, s36, 0")
    s("s_cbranch_scc1 Lattn_redo")
    for n in range(OPT['ne'], 32):
        for o, tag in norm_tile(n):
            s(o, tag)


FP = [('g', i) for i in range(9)] + [('u', 7), ('u', 8)] + [('d', i) for i in range(9)]


def freg(n):
    return 128 + 4 * n if n < 8 else 240 + 4 * (n - 8) if n < 12 else (KF if OPT['wdp'] == 7 else 0) + 4 * (n - 12)


def wd_dma(i):
    return ([f"s_add_u32 s{sF}, s{sFD}, {i * 4096}", f"s_add_u32 m0, s{sFM}, {tail.L_WD + 4096 * i - tail.L_WU - 7 * 4096}"],
            dma(FV2, SRD_T[2], sF, 0), 'F', [])


def ffn_load(n):
    m, i = FP[n]
    if m == 'd':
        srd_, v, so = SRD_T[2], FV2, f"s{sFD}, {i * 4096}"
    else:
        srd_, v, so = SRD_T[1 if m == 'g' else 0], FV, f"s{sFG}, {i * 64 * 9216}"
    return ([f"s_add_u32 s{sF}, {so}"], f"buffer_load_dwordx4 {ar(freg(n), 4)}, v{v}, {sr(srd_, 4)}, s{sF} offen", 'F', [])


def ffn_write(n):
    m, i = FP[n]
    if m == 'g':
        v, off = FW, 4096 * i
    elif m == 'u':
        v, off = (FW, tail.L_WU - tail.L_WG + 4096 * i) if i < 7 else (FV2, tail.L_WU2 + 4096 * (i - 7))
    elif i == 0:
        v, off = FV2, tail.L_WD
    else:
        v, off = FV, 4096 * (i - 1)
    return f"ds_write_b128 v{v}, {ar(freg(n), 4)} offset:{off}"


def mod_block(d, bad):
    return [f"s_lshr_b32 s{d}, s2, 5", f"s_lshl_b32 s{d}, s{d}, 3", f"s_and_b32 s{bad}, s2, 7", f"s_add_u32 s{d}, s{d}, s{bad}",
            f"s_lshl_b32 s{d}, s{d}, 2", f"s_bfe_u32 s{bad}, s2, 0x20003", f"s_add_u32 s{d}, s{d}, s{bad}", f"s_add_u32 s{d}, s{d}, 72",
            (f"s_cmp_lt_u32 s{d}, 216", f"s_cselect_b32 s{bad}, 0, {tail.BIG}")]


def late_mod(G, gi, k):
    def fill(ops, i0, i1, kind='valu'):
        slots = []
        for i in range(i0, i1):
            if kind == 'salu':
                slots += [gi[i, x] for x in (0, 1, 2, 3) if not G.m[gi[i, x]]['salu']]
                continue
            if not G.m[gi[i, 5]]['valu']:
                slots.append(gi[i, 5])
            if i % 2 == 0 and i != 10 and not G.m[gi[i, 7]]['vm']:
                slots += [gi[i, 7]] * 2
        assert len(slots) >= len(ops), (k, len(slots), len(ops))
        for g, x in zip(slots, ops):
            for y in (x if isinstance(x, tuple) else (x,)):
                G.put(g, kind, y)
    t0, t1, t2 = MU, MU + 1, MU + 2
    if 1 <= k <= 28:
        if k % 4 == 1 and not OPT['x'] & 16:
            G.put(gi[14, 7], 'vm', f"buffer_load_dwordx4 {vr(MR, 4)}, v{MW}, {sr(SRD_M, 4)}, s{sMW} offen", 'T')
            G.put(gi[15, 3], 'salu', f"s_add_u32 s{sMW}, s{sMW}, {128 * 6912}")
        if k % 4 == 2 and not OPT['x'] & 32:
            G.put(gi[14, 7], 'vm', f"buffer_store_dwordx4 {vr(AD, 4)}, v{AV}, {sr(SRD_H, 4)}, s{sAR} offen sc1", 'T')
            G.put(gi[15, 3], 'salu', f"s_add_u32 s{sAR}, s{sAR}, 656")
        if k % 4 == 0 and not OPT['x'] & 64:
            ops = []
            for e in range(4):
                a, b = MU + 2 * (e & 1), MU + 2 * (e & 1) + 1
                ops += [f"v_lshlrev_b32 v{a}, 16, v{MR + e}", f"v_and_b32 v{b}, 0xffff0000, v{MR + e}",
                        f"v_fmac_f32 v{MA + 2 * e}, v{MC}, v{a}", f"v_fmac_f32 v{MA + 2 * e + 1}, v{MC}, v{b}"]
            ops += [f"v_mov_b32 v{MC + i}, v{MC + i + 1}" for i in range(4)]
            fill(ops, 0, 16)
    if k == 29:
        ops = [f"v_permlane32_swap_b32 v{MA + e}, v{MA + 4 + e}" for e in range(4)]
        ops += [f"v_add_f32 v{MA + e}, v{MA + e}, v{MA + 4 + e}" for e in range(4)]
        ops += [f"v_and_b32 v{t0}, 1, v1"]
        ops += [f"v_permlane16_swap_b32 v{MA + e}, v{MA + 2 + e}" for e in range(2)]
        ops += [f"v_lshlrev_b32 v{t0}, 5, v{t0}"]
        ops += [f"v_add_f32 v{MA + e}, v{MA + e}, v{MA + 2 + e}" for e in range(2)]
        ops += [f"v_lshrrev_b32 v{t1}, 4, v1", f"v_lshl_add_u32 v{t0}, v{t1}, 3, v{t0}"]
        fill(ops, 0, 16)
        fill(["s_lshl_b32 s38, s3, 6", f"s_add_u32 s38, s38, {FLAG_LDS + 64}"], 0, 2, 'salu')
    if k == 30:
        ops = []
        for ro in (2, 4, 8):
            ops += [f"v_add_f32_dpp v{MA + e}, v{MA + e}, v{MA + e} row_ror:{ro} row_mask:0xf bank_mask:0xf" for e in range(2)]
        ops += [f"v_add_u32 v{t0}, s38, v{t0}", f"v_and_b32 v{t1}, 7, v1"]
        fill(ops, 1, 8)
        G.put(gi.get((8, 8), gi[8, 5]), 'ds', f"ds_write_b64 v{t0}, {vr(MA, 2)}", 'MW')
        G.put(gi[10, 7], 'tail', "@ds MW")
        fill([f"v_lshlrev_b32 v{t1}, 3, v{t1}", f"v_add_u32 v{t1}, {FLAG_LDS + 64}, v{t1}"], 8, 10)
        for w in range(4):
            G.put(gi[11 + w, 5], 'ds', f"ds_read_b64 {vr(MA + 2 * w, 2)}, v{t1} offset:{64 * w}")
        fill(mod_block(39, 43) + [f"s_or_b32 s43, s43, s{sPASS}", f"s_and_b32 s43, s43, {tail.BIG}", "s_sub_u32 s36, s39, 144",
                                  ("s_cmp_lt_u32 s36, 36", "s_cselect_b32 s36, 1.0, 0"), f"s_lshr_b32 s{sMW}, s39, 1", f"s_lshl_b32 s{sMW}, s{sMW}, 6",
                                  "s_and_b32 s39, s39, 1", "s_lshl_b32 s39, s39, 3", f"s_add_u32 s39, s39, s{sMW}",
                                  f"s_add_u32 s39, s39, {WS_MODP}", "s_or_b32 s39, s39, s43"], 2, 16, 'salu')
    if k == 31:
        ops = [f"v_add_f32 v{MA + e}, v{MA + e}, v{MA + 4 + e}" for e in range(4)]
        ops += [f"v_add_f32 v{MA + e}, v{MA + e}, v{MA + 2 + e}" for e in range(2)]
        ops += [f"v_cvt_pk_bf16_f32 v{t2}, v{MA}, v{MA + 1}", f"v_lshlrev_b32 v{MA}, 16, v{t2}", f"v_and_b32 v{MA + 1}, 0xffff0000, v{t2}",
                f"v_add_f32 v{MA}, s36, v{MA}", f"v_add_f32 v{MA + 1}, s36, v{MA + 1}", f"v_cvt_pk_bf16_f32 v{t2}, v{MA}, v{MA + 1}",
                f"v_lshrrev_b32 v{t0}, 1, v0", f"v_lshlrev_b32 v{t0}, 4, v{t0}", f"v_and_b32 v{t1}, 1, v0", f"v_lshl_add_u32 v{t0}, v{t1}, 2, v{t0}",
                f"v_lshrrev_b32 v{t1}, 3, v0", f"v_min_u32 v{t1}, 1, v{t1}", f"v_lshl_or_b32 v{t0}, v{t1}, 31, v{t0}"]
        fill(ops, 0, 16)
    if k == 32:
        G.put(gi[0, 7], 'vm', f"buffer_store_dword v{t2}, v{t0}, {sr(SRD_H, 4)}, s39 offen sc1", 'MS')
        for j, x in enumerate((f"v_min_u32 v{MR}, 1, v0", f"v_lshlrev_b32 v{MR}, 31, v{MR}", f"v_mov_b32 v{MR + 1}, 1")):
            G.put(gi[7 + j, 4], 'valu', x)


def ffn_setup():
    o = ["s_lshr_b32 s6, s2, 3", "s_and_b32 s7, s2, 7", "s_mul_i32 s7, s7, 18", "s_add_u32 s7, s7, s6",
         f"s_lshl_b32 s{sFG}, s7, 6", f"s_mul_i32 s{sFD}, s7, 36864",
         ("s_cmp_lt_u32 s6, 18", f"s_cselect_b32 s7, 0, {tail.BIG}"),
         f"s_or_b32 s{sFG}, s{sFG}, s7", f"s_or_b32 s{sFD}, s{sFD}, s7"]
    v = [f"v_lshrrev_b32 v{FW}, 2, v0", f"v_mul_u32_u24 v{FW}, 9216, v{FW}", f"v_and_b32 v{FV}, 3, v0",
         f"v_lshl_add_u32 v{FV}, v{FV}, 4, v{FW}", f"v_lshlrev_b32 v{FV2}, 4, v0", f"v_add_u32 v{FW}, {tail.L_WG}, v{FV2}"]
    o += ["s_and_b32 s7, s4, 1", "s_lshl_b32 s6, s7, 7",
          "s_xor_b32 s36, s4, 1", f"s_mul_i32 s36, s36, {256 * 1152}", f"s_add_u32 s{sWOb}, s36, s6",
          "s_lshl_b32 s36, s4, 8", f"s_add_u32 s{sPD}, s{sPART}, s36",
          "s_lshr_b32 s36, s4, 1", "s_lshl_b32 s36, s36, 11", "s_lshl_b32 s7, s7, 8", "s_add_u32 s36, s36, s7",
          f"s_add_u32 s{sPR}, s{sPART}, s36",
          "s_lshr_b32 s36, s4, 1", "s_lshl_b32 s36, s36, 4", "s_add_u32 s36, s36, s5", "s_lshl_b32 s36, s36, 9", "s_add_u32 s36, s36, s7",
          "s_lshl_b32 s36, s36, 8", f"s_add_u32 s{sOX}, s36, {OX}",
          f"s_add_u32 s{sWOa}, s{sWO}, s6", f"s_xor_b32 s{sXF}, s{tail.sFL}, 128", "s_lshl_b32 s36, s3, 14"]
    v += [f"v_lshl_add_u32 v{XV}, v1, 4, s36"]
    o = mod_block(sMW, 37) + [f"s_lshl_b32 s{sMW}, s{sMW}, 5", f"s_or_b32 s{sMW}, s{sMW}, s37", f"s_mov_b32 s{SRD_M + 2}, {SZ['wmod']}"] + o
    v += [f"v_mov_b32 v{MA + e}, 0" for e in range(8)]
    o = [f"s_lshl_b32 s{sAR}, s5, 4", f"s_add_u32 s{sAR}, s{sAR}, s4", f"s_lshl_b32 s{sAR}, s{sAR}, 2", f"s_add_u32 s{sAR}, s{sAR}, s3",
         f"s_mul_i32 s{sAR}, s{sAR}, 4608", f"s_add_u32 s{sAR}, s{sAR}, {WS_H2}"] + o
    v += [f"v_mov_b32 v{AD + e}, -1" for e in range(4)] + [f"v_min_u32 v{AV}, 41, v1", f"v_lshlrev_b32 v{AV}, 4, v{AV}"]
    return o, v


def o_slot(f):
    return 4 * (f & 3) + 2 * ((f >> 2) & 1) + (f >> 3) if OPT['oa'] else f


def o_store(f):
    a = o_slot(f)
    pre = [f"s_add_u32 s37, s{sOX}, {4096 * (a >> 2)}"]
    return (pre, f"buffer_store_dwordx4 {vr(ob(f >> 3, f & 7), 4)}, v{XV}, {sr(SRD_P, 4)}, s37 offen offset:{1024 * (a & 3)} {OPT['ox']}", 'OS', [])


def o_loads():
    ops = []
    for f in sorted(range(16), key=o_slot):
        a = o_slot(f)
        pre = [f"s_add_u32 s37, s{sOX}, {4096 * (a >> 2)}"] if a % 4 == 0 else []
        ops.append((pre, f"buffer_load_dwordx4 {ar(BUF + 4 * f, 4)}, v{XV}, {sr(SRD_P, 4)}, s37 offen offset:{1024 * (a & 3)} {OPT['ol']}", 'OL', []))
    return ops


def oproj(s):
    G = Gaps()

    def acc(n, tt):
        c = POS[n >> 2][1]
        if c == 2 and OPT['o3']:
            return (160, 168, 208, 216)[n & 3] + 4 * tt
        return OAC + 32 * (1 if c is None else c & 1) + 8 * (n & 3) + 4 * tt
    for n in range(36):
        src, c = POS[n >> 2]
        for tt in range(2):
            for x in range(8):
                ks = 7 - x if tt and OPT['sn'] & 4 else x
                d = vr(acc(n, tt), 4)
                b = ar(BUF + 32 * tt + 4 * ks, 4) if src else vr(ob(tt, ks), 4)
                i = G.add(f"{M16} {d}, {ar(AF[n & 1] + 4 * ks, 4)}, {b}, {'0' if x == 0 and src == 0 else d}")
                if n + 1 < 36:
                    G.put(i, 'ds', oread(n + 1, 8 * tt + x))
    for _ in range(8):
        G.add(None)
    for n in range(36):
        src, c = POS[n >> 2]
        if c is not None and src == 0:
            continue
        for tt in range(2):
            e0 = 16 * n + 8 * tt + 8 + 4
            a0 = acc(n, tt)
            pk = PK + 8 * ((n >> 1) & 1) + 4 * tt + 2 * (n & 1)
            G.put(e0, 'valu', f"v_cvt_pk_bf16_f32 v{pk}, v{a0}, v{a0 + 1}")
            G.put(e0 + 1, 'valu', f"v_cvt_pk_bf16_f32 v{pk + 1}, v{a0 + 2}, v{a0 + 3}")
            if n & 1:
                base, off = (sPD, 16384) if c is None else (sPR, 512 * c)
                G.put(e0 + 1, 'salu', f"s_add_u32 s38, s{base}, {tt * 8 * PAIR + off + ((n >> 1) & 1) * 128}")
                G.put(e0 + 2, 'vm', f"buffer_store_dwordx4 {vr(pk - 2, 4)}, v{STV}, {sr(SRD_P, 4)}, s38 offen {OPT['st']}", 'STD' if c is None else f'ST{c}')
    for c in range(8):
        b = 64 * c + 47
        G.put(b, 'tail', f"@vm WO{c + 1}")
        if c in (2, 7):
            G.put(b, 'tail', "@lgkm 0")
        G.put(b, 'tail', "s_barrier")
        if c == 0:
            ops = wo_tile(3, 1)
        elif c <= 5:
            ops = wo_tile(c + 3, 0) + wo_tile(c + 3, 1)
        else:
            ops = []
        for j, op in enumerate(ops):
            G.put_op(b + 9 + 8 * (j >> 1) + 2 * (j & 1), op)

    def spread(ops, lo, hi, step=2):
        free = [i for i in range(lo, hi) if i % step == step - 2 and not G.m[i]['vm'] and not G.m[i]['valu'] and not G.m[i + 1]['valu']]
        assert len(free) >= len(ops), (len(free), len(ops))
        for j, op in enumerate(ops):
            G.put_op(free[j * len(free) // len(ops)], op)
    fx, px, cx = OPT['fx'], OPT['px'], OPT['cx']
    assert fx < OPT['at'] < 176
    G.put(fx - 1, 'tail', "@vm OS")
    G.put(fx - 1, 'tail', f"s_cmp_eq_u32 s{sSAME}, 0")
    G.put(fx - 1, 'tail', "s_cbranch_scc1 Lattn_wb")
    G.put(fx - 1, 'tail', "Lattn_wbdone:")
    G.put(fx, 'vm', f"buffer_store_dword v{tail.vZ}, v{tail.vF}, {sr(SRD_H, 4)}, s{tail.sFL} offen offset:8 sc1")
    G.put(fx + 1, 'salu', f"s_xor_b32 s{sOX}, s{sOX}, 65536")
    spread([([], f"buffer_atomic_add v{MR + 1}, v{MR}, {sr(SRD_D, 4)}, 0 offen sc1", None, [])], OPT['at'], OPT['at'] + 12)
    spread([([], x_poll(), None, [])], px, px + 8)
    G.put(cx - 2, 'valu', f"v_readfirstlane_b32 s36, v{tail.POLL}")
    G.put(cx, 'tail', f"s_cmp_lg_u32 s36, s{sTAG}")
    G.put(cx, 'tail', "s_cbranch_scc1 Lattn_xspin")
    G.put(cx, 'tail', "Lattn_xgot:")
    spread(o_loads(), cx + 3, OPT['ex'])
    for j, x in enumerate(tail.pointer_loads()):
        G.put(fx + 3 + 2 * j, 'tail', x)
    L, ldx, ld0, ld1 = tail.prepare()
    g0 = 200

    def flag(f, groups):
        spread([([tail.flag_store()[0], "@vm ST" + groups[-1]], tail.flag_store()[1], None, [])], f, f + 12)

    def poll(p):
        assert p > g0
        spread([(tail.flag_poll()[:1], tail.flag_poll()[1], None, [])], p, p + 12)
    if OPT['s0']:
        flag(OPT['f0'], OPT['s0'])
        poll(OPT['p0'])
        c0 = OPT['c0']
        fc = tail.flag_try() if OPT['nb'] else tail.flag_check(0)
        assert c0 > 404 or not OPT['nb']
        G.put(c0 - 2, 'valu', fc[0])
        for x in fc[1:]:
            G.put(c0, 'tail', x)
        spread(tail.part_loads(OPT['s0'], tail.sB0 if OPT['nb'] else None), c0 + 2, c0 + 2 + 18 * len(OPT['s0']))
    flag(OPT['f1'], OPT['s1'])
    poll(OPT['p1'])
    if OPT['f3']:
        assert OPT['f3'] > OPT['f1'] + 12
        spread([(["@vm ST2"], tail.mid_store(), None, [])], OPT['f3'], OPT['f3'] + 12)
        spread([([], tail.mid_poll(), None, [])], 564, 576)
    ca = OPT['ca']
    assert ca > g0
    spread([([], f"buffer_load_dword v{CNT}, v{CNT}, {sr(SRD_D, 4)}, 0 offen sc1", None, [])], ca - 60, ca - 40)
    G.put(ca - 2, 'valu', f"v_readfirstlane_b32 s37, v{CNT}")
    for x in ("s_cmp_lt_u32 s37, 256", "s_cbranch_scc1 Lattn_armwait", "Lattn_armed:"):
        G.put(ca, 'tail', x)
    if OPT['wdp'] == 5:
        spread([wd_dma(i) for i in range(1, 9)], OPT['wd0'], OPT['wd0'] + 48, 4)
    if OPT['wdp'] == 6 and OPT['wd0'] >= 0:
        spread([ffn_load(n) for n in range(12, 20)], OPT['wd0'], OPT['wd1'])
    spread(ldx, OPT['xp'], OPT['xp'] + 40)
    if OPT['o3']:
        ld0, ld1 = ld1[:5], ld1[5:11] + ld0 + ld1[11:]
    spread(ld0, ca + 2, ca + 44)
    spread(ld1, max(64 * 7 + 8, ca + 46), 536)
    g = max(72, OPT['at'] + 14)
    for x in L:
        if isinstance(x, int):
            assert x != 190 or g < g0
            g = max(g, x, OPT['ex'] + 4)
            continue
        x = x if isinstance(x, tuple) else (x,)
        kind = 'salu' if x[0].startswith('s_') else 'valu'
        while G.m[g][kind] or G.m[g]['vm'] or (kind == 'salu' and G.m[g]['valu']) or (kind == 'valu' and G.m[g - 1]['vm']):
            g += 1
        for y in x:
            G.put(g, kind, y)
        if 's[36:37]' in x[0] or 's[54:55]' in x[0]:
            assert g < min(OPT['ca'], OPT['c0']) - 4
    assert g < 64 * 7 + 6
    if OPT['fine'] == 3:
        for c in range(8):
            G.put(64 * c + 63, 'tail', f"s_memtime {sr(62 + 2 * c, 2)}")
    G.emit(s)


def x_poll():
    return f"buffer_load_dword v{tail.POLL}, v{tail.vF}, {sr(SRD_H, 4)}, s{sXF} offen offset:8 sc1"


def pair_cold(a):
    a("Lattn_wb:")
    a("buffer_wbl2 sc1")
    a("s_waitcnt vmcnt(0)")
    a("s_branch Lattn_wbdone")
    a("Lattn_xspin:")
    a(f"s_mov_b32 s37, {tail.SPIN}")
    a("Lattn_xloop:")
    a(x_poll())
    a("s_waitcnt vmcnt(0)")
    a(f"v_readfirstlane_b32 s36, v{tail.POLL}")
    a("s_sub_u32 s37, s37, 1")
    a("s_cbranch_scc1 Lattn_xgot")
    a(f"s_cmp_lg_u32 s36, s{sTAG}")
    a("s_cbranch_scc1 Lattn_xloop")
    a("s_branch Lattn_xgot")


def redo():
    s = Stream()
    s("Lattn_redo:")
    s(f"s_load_dwordx2 {sr(SRD_M, 2)}, s[0:1], {KA['wmod']}")
    s(f"v_xor_b32 v{KAD}, 64, v{KAD + 1}")
    s(f"v_xor_b32 v{KAD + 2}, 64, v{KAD + 3}")
    s("@drain")
    s("s_barrier")
    M = TMP + 16
    for qb in range(4):
        s(f"v_mov_b32 v{M + qb}, 0xff800000")
    s(f"s_mov_b32 s{sK}, 0")
    s(f"s_mov_b32 s{sPASS}, -1")
    s("Lattn_redo_loop:")
    for op in k_tile(0):
        emit_op(s, op)
    s("@drain")
    s("s_barrier")
    for kb in range(4):
        for sx in range(4):
            s(kread(0, kb, sx))
        for qb in range(4):
            for sx in range(4):
                d = vr(TMP + 4 * qb, 4)
                s(f"{M16} {d}, {ar(KF + 16 * (kb & 1) + 4 * sx, 4)}, {vr(Q + 16 * qb + 4 * sx, 4)}, {'0' if sx == 0 else d}")
        for qb in range(4):
            t = TMP + 4 * qb
            s(f"v_max3_f32 v{M + qb}, v{M + qb}, v{t}, v{t + 1}")
            s(f"v_max3_f32 v{M + qb}, v{M + qb}, v{t + 2}, v{t + 3}")
    s("s_barrier")
    s(f"s_cmp_lt_u32 s{sK}, 524288")
    s("s_cbranch_scc1 Lattn_redo_loop")
    cross_max_to_negm(s, M)
    s(f"s_mov_b32 s{sK}, 0")
    s(f"s_mov_b32 s{sV}, 0")
    for op in k_tile(0) + k_tile(1) + k_tile(2) + v_tile(0) + v_tile(1):
        emit_op(s, op)
    for r in list(range(O, O + 128)) + list(range(L, L + 16)):
        s(f"v_accvgpr_write_b32 a{r}, 0")
    s("@drain")
    s("s_barrier")
    for sx in range(4):
        s(kread(0, 0, sx))
    s(kread(0, 1, 0))
    s("@drain")
    s("s_branch Lattn_stage0")
    s.resolve()
    return [t for _, ls in s.split() for t in ls]


def merge_body(copies):
    out = []
    assert len({len(c) for c in copies}) == 1
    for lines in zip(*copies):
        if len(set(lines)) == 1:
            out.append(lines[0])
        else:
            ms = [re.fullmatch(r's_waitcnt (\w+)\((\d+)\)', l) for l in lines]
            assert all(ms) and len({m.group(1) for m in ms}) == 1, lines
            out.append(f"s_waitcnt {ms[0].group(1)}({min(int(m.group(2)) for m in ms)})")
    return out


def insn_sizes(lines):
    src = '.amdgcn_target "amdgcn-amd-amdhsa--gfx950"\n.text\n' + '\n'.join(lines) + '\n'
    with tempfile.TemporaryDirectory() as d:
        open(d + '/t.s', 'w').write(src)
        subprocess.run(['clang', '-x', 'assembler', '-target', 'amdgcn-amd-amdhsa', '-mcpu=gfx950', '-c', d + '/t.s', '-o', d + '/t.o'], check=True)
        dis = subprocess.run(['llvm-objdump', '-d', '--mcpu=gfx950', d + '/t.o'], check=True, capture_output=True, text=True).stdout
    sz = [4 * len(m.group(1).split()) for m in re.finditer(r'// [0-9A-F]{12}: ((?:[0-9A-F]{8} ?)+)', dis)]
    it = iter(sz)
    out = [0 if l.endswith(':') else next(it) for l in lines]
    assert next(it, None) is None
    return out


def page_tour(lines):
    i0 = lines.index('Lhead_tour:')
    if not OPT['tour']:
        assert not OPT['cl']
        return lines
    sz = insn_sizes(lines)
    end = lines.index('Lattn_redo:')
    out = []; pos = 4; page = 1
    chains = ([], []); cur = 0

    def enter(c):
        pre = ['    s_mov_b64 exec, 0']
        for w in range(3):
            pre += [f'    s_cmp_eq_u32 s3, {w}', f'    s_cbranch_scc1 Ltour{c}_{w}']
        return pre + [f'    s_branch Ltour{c}_3']
    for i in range(i0 + 1, len(lines)):
        l = lines[i]
        if l == 'Lattn_loop:':
            while pos % 32 != OPT['lal']:
                out.append('    s_nop 0'); pos += 4
        want = None
        if i < end and pos >= 4096 * page and not l.endswith(':'):
            prev = lines[i - 1].split()[0]
            if prev.startswith('v_mfma') and not l.split()[0].startswith('s_') or pos - 4096 * page >= 40:
                want = cur; page += 1
        if lines[i - 1][:-1] in ('Ltail_spin1', 'Ltail_spin2', 'Ltail_spin3', 'Ltail_idle'):
            want = cur
        if lines[i - 1][:-1] in ('Ltail_spin0', 'Lattn_xspin', 'Lhead_again'):
            want = 0
        if want is not None:
            n = len(chains[want]); chains[want].append(pos)
            out.append(f'Ltour{want}_{n}:'); out.append((want, n)); pos += 4
        if l == 'Ltail_tour:':
            out += enter(1) + ['Lmain1:', '    s_mov_b64 exec, -1']; pos += 36; cur = 1
            continue
        out.append(l); pos += sz[i]
        if 's_getpc_b64 s[36:37]' in l:
            reach = pos + 4092 + 32768
    assert not OPT['cl'] or reach <= pos
    assert cur == 0 or len(chains[1]) >= 4
    print('code bytes', pos, 'stubs', len(chains[0]), len(chains[1]), file=sys.stderr)
    out = [f"    s_cbranch_execz {'Ltour%d_%d' % (x[0], x[1] + 4) if x[1] + 4 < len(chains[x[0]]) else 'Lmain%d' % x[0]}"
           if isinstance(x, tuple) else x for x in out]
    return lines[:i0] + enter(0) + ['.p2align 12', 'Lmain0:', '    s_mov_b64 exec, -1'] + out


def PARK():
    return 80 if OPT['wdp'] == 7 else 224


def k_attn(diag=False):
    s = Stream()
    head.head(s, diag, sys.modules[__name__])
    stamp(s, diag, 1)
    qproj(s, diag)
    stamp(s, diag, 2)
    prepass(s, qfinish(s))
    s("@mark pre")
    s("Lattn_stage0:")
    s(f"s_mov_b32 s{sCNT}, 7")
    if OPT['x'] & 512:
        s("s_mov_b32 s101, 0x07060302")
    for k in range(33):
        s(f"@mark st{k}")
        stage(s, k)
    s("@mark post")
    normalize(s)
    s("@mark oproj")
    oproj(s)
    s("@mark tail")
    tail.post(s, diag, [ffn_write(n) for n in range(12)] + ([f"v_add_u32 v{FV}, {tail.L_WD + 4096}, v{FV2}"] + [ffn_write(n) for n in range(12, 20)] if OPT['wdp'] >= 6 else []), emit_op)
    s.resolve()
    parts = dict(s.split())
    for k in range(1, 5):
        parts[f'body{k}'] = merge_body([parts[f'st{j}'] for j in range(k, 29, 4)])
    a = Asm()

    def put(name):
        for t in parts[name]:
            a(t)
    put('_head'); stamp(a, diag, 3); put('pre'); put('st0')
    stamp(a, diag, 4)
    a("Lattn_loop:")
    if OPT['fine'] == 8:
        a("s_memrealtime s[62:63]")
        a.L = a.L[:-2] + [a.L[-1], a.L[-2]]
    for k in range(1, 5):
        for t in parts[f'body{k}']:
            ab = OPT['abl']
            if ab & 1 and t.startswith('v_exp'): continue
            if ab & 2 and t.startswith('v_cvt'): continue
            if ab & 4 and t.startswith('ds_read_b128'): continue
            if ab & 8 and t.startswith('ds_read_b64_tr'): continue
            if ab & 16 and t.endswith(' lds'): continue
            if ab & 32 and t.startswith('v_smfmac'): continue
            if ab & 64 and t.startswith('s_barrier'): continue
            a(t)
    a(f"s_sub_u32 s{sCNT}, s{sCNT}, 1")
    a(f"s_cmp_lg_u32 s{sCNT}, 0")
    a("s_cbranch_scc1 Lattn_loop")
    if OPT['fine'] == 8:
        a("s_memrealtime s[64:65]")
    stamp(a, diag, 5)
    for k in range(29, 33):
        put(f'st{k}')
    stamp(a, diag, 6)
    put('post')
    if OPT['fine'] == 3:
        stamp(a, diag, 0)
    stamp(a, diag, 7)
    put('oproj')
    if diag:
        stamp(a, diag, 8)
        if OPT['fine'] != 5:
            stamp(a, diag, 9)
        a("s_memrealtime s[98:99]")
        a("s_waitcnt lgkmcnt(0)")
        if OPT['fine'] == 8:
            a("s_mov_b32 s60, 0")
        for i in range(10):
            a(f"s_sub_u32 s7, s{60 + 2 * i}, s60")
            a(f"v_accvgpr_write_b32 a{PARK() + i}, s7")
        a(f"v_accvgpr_write_b32 a{PARK() + 10}, s96")
        a(f"v_accvgpr_write_b32 a{PARK() + 11}, s98")
    put('tail')
    tail.body(a, diag, [wd_dma(i) for i in range(1, 9)], emit_op)
    if diag:
        tail.dump_stamps(a, 8, WS_STAMP + 0x20000)
        a.srd(SRD_V, 50, 1024 * 64, WS_STAMP)
        for i in range(3):
            a(f"buffer_store_dwordx4 {ar(PARK() + 4 * i, 4)}, v2, {sr(SRD_V, 4)}, s36 offen offset:{16 * i}")
    a("s_endpgm")
    pair_cold(a)
    head.cold(a, sys.modules[__name__])
    if OPT['s0'] and not OPT['nb']:
        tail.flag_spin(a, 0)
    tail.flag_spin(a, 1)
    tail.flag_spin(a, 2)
    if OPT['f3']:
        tail.flag_spin(a, 3)
    for t in redo():
        a(t)
    a("Lattn_armwait:")
    a(f"s_mov_b32 s36, {tail.SPIN}")
    a("Lattn_armloop:")
    a(f"v_mov_b32 v{CNT}, 0")
    a(f"buffer_load_dword v{CNT}, v{CNT}, {sr(SRD_D, 4)}, 0 offen sc1")
    a("s_waitcnt vmcnt(0)")
    a(f"v_readfirstlane_b32 s37, v{CNT}")
    a("s_sub_u32 s36, s36, 1")
    a("s_cbranch_scc1 Lattn_armed")
    a("s_cmp_lt_u32 s37, 256")
    a("s_cbranch_scc1 Lattn_armloop")
    a("s_branch Lattn_armed")
    a("Lattn_end:")
    a("s_endpgm")
    a.L = page_tour(a.L)
    return a.text(), 512, dict(grid=256, block=256, lds=163840), s.stats
```

```python
from dsl import *
from tail import unpack, pack, rnd1, red, srd, BIG, SPIN, SPIN_NAN

L_RED, L_MOD = 0, 1024
vC, vW, vX, vP, vM, vG, vQ2, vQ, vT = 64, 65, 66, 67, 68, 69, 70, 71, 72
CV, WV, XR = 80, 88, 108
AC, UT = 128, 136
X, D, C1, SA = 144, 168, 192, 216
PF = 240
vK, vV = 120, 121


def silu(s, r, t):
    d, q, e = t, t + 1, t + 2
    s(f"v_mul_f32 v{d}, 0xbfb8aa3b, v{r}")
    s(f"v_min_f32 v{d}, 0x42fc0000, v{d}")
    s(f"v_exp_f32 v{d}, v{d}")
    s(f"v_add_f32 v{d}, 1.0, v{d}")
    s(f"v_rcp_f32 v{q}, v{d}")
    s(f"v_mul_f32 v{e}, v{r}, v{q}")
    s(f"v_fma_f32 v{d}, -v{e}, v{d}, v{r}")
    s(f"v_fma_f32 v{r}, v{d}, v{q}, v{e}")


def interleave(s, fns):
    lists = []
    for f in fns:
        l = []
        f(l.append)
        lists.append(l)
    for i in range(max(map(len, lists))):
        for l in lists:
            if i < len(l):
                s(l[i])


def sum24(s, dst, t, f):
    for e in range(0, 24, 2):
        f(t if e & 2 else dst, e, e < 4)
    s(f"v_pk_add_f32 {vr(dst, 2)}, {vr(dst, 2)}, {vr(t, 2)}")
    s(f"v_add_f32 v{dst}, v{dst}, v{dst + 1}")


def head(s, diag, K):
    st = lambda i: OPT['fine'] == 1 and K.stamp(s, diag, i, True)
    s2 = lambda i: OPT['fine'] == 2 and K.stamp(s, diag, i, True)
    SC, SM, SX, SW = K.SRD_K, K.SRD_V, K.SRD_O, K.SRD_H
    s("s_cmp_ge_u32 s2, 256")
    s("s_cbranch_scc1 Lattn_end")
    if OPT['scr']:
        s("s_and_b32 s3, s2, 7")
        s("s_lshl_b32 s3, s3, 5")
        s("s_lshr_b32 s2, s2, 3")
        s("s_or_b32 s2, s2, s3")
    s(f"s_load_dwordx2 {sr(SC, 2)}, s[0:1], {KA['c']}")
    s(f"s_load_dwordx2 {sr(SM, 2)}, s[0:1], {KA['wmod']}")
    s(f"s_load_dwordx2 {sr(SX, 2)}, s[0:1], {KA['x']}")
    s(f"s_load_dwordx2 s[50:51], s[0:1], {KA['ws']}")
    s(f"s_load_dwordx8 s[52:59], s[0:1], {KA['k']}")
    s(f"s_load_dwordx8 s[80:87], s[0:1], {KA['wg']}")
    s(f"s_load_dwordx2 {sr(K.SRD_D, 2)}, s[0:1], {KA['dbg']}")
    if OPT['wr']:
        s(f"s_load_dwordx2 {sr(K.SRD_P, 2)}, s[0:1], {KA['wr']}")
    if diag and OPT['fine'] != 8:
        s("s_memrealtime s[96:97]")
        K.stamp(s, diag, 0)
    s("s_getpc_b64 s[32:33]")
    s("Lattn_pc:")
    s("s_mov_b32 s34, Lattn_end-Lattn_pc")
    s("s_mov_b32 s35, 0x20000")
    s("s_lshr_b32 s6, s2, 3")
    s("s_lshl_b32 s7, s6, 6")
    s("v_lshrrev_b32 v3, 6, v0")
    s("v_and_b32 v1, 63, v0")
    s("v_lshrrev_b32 v2, 2, v0")
    s("v_lshlrev_b32 v2, 11, v2")
    s("v_readfirstlane_b32 s3, v3")
    s(f"buffer_load_dword v{PF}, v2, s[32:35], s7 offen", 'PF')
    s("s_and_b32 s7, s2, 7")
    s("s_lshl_b32 s4, s7, 1")
    s("s_and_b32 s5, s6, 1")
    s("s_add_u32 s4, s4, s5")
    s("s_lshr_b32 s5, s2, 4")
    s("s_lshr_b32 s38, s6, 2")
    s("s_lshl_b32 s38, s38, 3")
    s("s_add_u32 s38, s38, s7")
    s("s_cmp_lt_u32 s38, 18")
    s(f"s_cselect_b32 s39, 0, {BIG}")
    s("s_lshl_b32 s38, s38, 2")
    s("s_and_b32 s36, s6, 3")
    s("s_add_u32 s38, s38, s36")
    s(f"s_mov_b32 s{SM + 2}, {SZ['wmod']}")
    s(f"s_mul_i32 s92, s6, {18 * 6912}")
    s("s_lshl_b32 s36, s7, 7")
    s("s_add_u32 s92, s92, s36")
    s("s_cmp_lt_u32 s7, 2")
    s("s_cselect_b32 s36, 53, 35")
    s("v_lshrrev_b32 v2, 2, v0")
    s("v_min_u32 v2, s36, v2")
    s("v_mul_u32_u24 v3, 57, v2")
    s("v_lshrrev_b32 v3, 10, v3")
    s(f"v_mul_i32_i24 v3, {1024 - 18 * 6912}, v3")
    s(f"v_mul_u32_u24 v2, 6912, v2")
    s(f"v_add_u32 v{vT}, v2, v3")
    s(f"s_mov_b32 s{SM + 3}, 0x20000")
    s(f"s_mov_b32 s{SC + 2}, {SZ['c']}")
    s(f"s_mov_b32 s{SC + 3}, 0x20000")
    s(f"s_mov_b32 s{SX + 2}, {SZ['x']}")
    s(f"s_mov_b32 s{SX + 3}, 0x20000")
    s(f"v_and_b32 v{vC}, 0xfe, v0")
    s(f"v_mul_u32_u24 v{vW}, 3456, v{vC}")
    s("v_and_b32 v2, 1, v0")
    s(f"v_lshl_add_u32 v{vW}, v2, 4, v{vW}")
    s("s_lshl_b32 s36, s38, 5")
    s("s_or_b32 s36, s36, s39")
    if OPT['tw']:
        mx = [1, 3, 3, 2, 2, 7, 0, 2, 2, 2, 0, 1, 1, 0, 7, 7]
        tab = sum(m << (4 * i) for i, m in enumerate(mx))
        s("s_lshl_b32 s40, s6, 2")
        s("s_add_u32 s40, s40, s3")
        s("s_and_b32 s41, s40, 15")
        s("s_lshr_b32 s40, s40, 4")
        s(f"s_mov_b32 s44, {tab & 0xffffffff}")
        s(f"s_mov_b32 s45, {tab >> 32}")
        s("s_lshl_b32 s42, s41, 2")
        s("s_lshr_b64 s[44:45], s[44:45], s42")
        s("s_and_b32 s44, s44, 15")
        s("s_min_u32 s40, s40, s44")
        s("s_cmp_eq_u32 s41, 5")
        s("s_cselect_b32 s42, 16, 0")
        s("s_cselect_b32 s41, 14, s41")
        s("s_cmp_eq_u32 s41, 15")
        s("s_cselect_b32 s42, 8, s42")
        s("s_cselect_b32 s41, 14, s41")
        s("s_add_u32 s40, s40, s42")
        s("s_lshl_b32 s40, s40, 21")
        s("s_lshl_b32 s41, s41, 3")
        s("s_load_dwordx2 s[46:47], s[0:1], s41")
    st(1)
    s("s_waitcnt lgkmcnt(0)")
    if OPT['tw']:
        s(f"s_load_dword s{K.sTAG}, s[46:47], s40")
    s2(1)
    s(f"s_load_dword s{K.sEP}, s[50:51], {WS_EPOCH}")
    if OPT['co'] == 0:
        s(f"buffer_load_dword v{PF + 1}, v{vT}, {sr(SM, 4)}, s92 offen", 'PF')
    for i in range(5):
        s(f"buffer_load_ushort v{CV + i}, v{vC}, {sr(SC, 4)}, 0 offen offset:{256 * i}")
    if OPT['co'] == 1:
        s(f"buffer_load_dword v{PF + 1}, v{vT}, {sr(SM, 4)}, s92 offen", 'PF')
    s2(2)

    def ldx():
        for i in range(3):
            for u in range(2):
                s(f"buffer_load_dwordx2 {vr(XR + 4 * i + 2 * u, 2)}, v{vX}, {sr(SX, 4)}, s49 offen offset:{384 * i + 32 * u}")
        srd(s, K.SRD_O, 58, SZ['wo'])
    assert OPT['xl'] > 0
    s2(3)
    for i in range(5):
        s(f"buffer_load_dwordx4 {vr(WV + 4 * i, 4)}, v{vW}, {sr(SM, 4)}, s36 offen")
        if i < 4:
            s(f"s_add_u32 s36, s36, {128 * 6912}")
    s("v_and_b32 v4, 31, v1")
    s("v_lshrrev_b32 v5, 5, v1")
    s("v_cmp_gt_u32 vcc, 24, v4")
    s(f"v_mov_b32 v6, {BIG}")
    s("s_lshl_b32 s7, s5, 4")
    s("s_add_u32 s7, s7, s4")
    s("s_lshl_b32 s7, s7, 2")
    s("s_add_u32 s7, s7, s3")
    s("v_cndmask_b32 v6, v6, 0, vcc")
    s("s_mul_i32 s49, s7, 2304")
    s("v_lshrrev_b32 v7, 2, v4")
    s("v_lshl_add_u32 v7, v7, 6, v6")
    s("v_and_b32 v2, 3, v4")
    s("v_lshl_add_u32 v7, v2, 3, v7")
    s("v_mul_u32_u24 v2, 1152, v5")
    s(f"v_add_u32 v{vX}, v7, v2")
    nA = OPT['nq1']
    srd(s, K.SRD_Q, 56, SZ['wq'])
    s(f"s_lshl_b32 s{K.sWQ}, s4, 9")
    for d, sh, rows, r0 in ((vQ, 2 if nA <= 4 else 1, 4 * nA, 0), (vQ2, 1, 4 * (9 - nA), 64 * nA)):
        s(f"s_mul_i32 s36, s5, {rows * 8192}")
        s(f"s_add_u32 s36, s36, {r0 * 8192}")
        s(f"v_lshrrev_b32 v2, {sh}, v0")
        s(f"v_min_u32 v2, {4 * rows - 1}, v2")
        s("v_lshrrev_b32 v3, 2, v2")
        s("v_and_b32 v2, 3, v2")
        s("v_lshl_add_u32 v2, v2, 7, s36")
        s(f"v_lshl_add_u32 v{d}, v3, 13, v2")
    s2(4)
    s(f"s_add_u32 s92, s49, {WS_H}")
    s("v_lshl_add_u32 v7, v5, 4, v6")
    s(f"v_lshl_add_u32 v{vP}, v4, 5, v7")
    s("v_min_u32 v4, 23, v4")
    s(f"v_lshlrev_b32 v{vM}, 4, v4")
    srd(s, SW, 50, WS_PART)
    s(f"s_mov_b32 s{K.SRD_D + 2}, 256")
    s(f"s_mov_b32 s{K.SRD_D + 3}, 0x20000")
    s("s_cmp_ge_u32 s38, 36")
    s("s_cselect_b32 s93, 1.0, 0")
    s("s_lshl_b32 s36, s38, 7")
    s(f"v_lshl_add_u32 v{vG}, v0, 3, s36")
    s(f"v_cmp_gt_u32 s[36:37], {16 if OPT['fl'] & 1 else 8}, v0")
    s(f"v_mov_b32 v2, {BIG}")
    s("v_mov_b32 v3, s39")
    s("v_cndmask_b32 v2, v2, v3, s[36:37]")
    s(f"v_or_b32 v{vG}, v{vG}, v2")
    if OPT['wr']:
        s(f"s_mov_b32 s{K.SRD_P + 2}, {SZ['wr']}")
        s(f"s_mov_b32 s{K.SRD_P + 3}, 0x20000")
        s("v_lshlrev_b32 v2, 7, v0")
        s("v_mov_b32 v3, s39")
        s(f"v_xor_b32 v3, {BIG}, v3")
        s("v_or_b32 v2, v2, v3")
        s(f"buffer_load_dword v{PF + 3}, v2, {sr(K.SRD_P, 4)}, 0 offen", 'PF')
    s("s_mul_i32 s36, s5, 3072")
    s("s_lshl_b32 s37, s5, 11")
    s(f"v_lshrrev_b32 v{vK}, 3, v0")
    s(f"v_min_u32 v{vK}, 23, v{vK}")
    s(f"v_lshl_add_u32 v{vK}, v{vK}, 7, s36")
    s(f"v_lshrrev_b32 v{vV}, 4, v0")
    s(f"v_lshl_add_u32 v{vV}, v{vV}, 7, s37")
    K.setup(s)
    if OPT['xl'] == 1:
        ldx()
    st(2)
    s2(5)
    for i in range(5):
        s(f"v_lshlrev_b32 v{CV + i}, 16, v{CV + i}")
    interleave(s, [(lambda e, i=i: (silu(e, CV + i, X + 4 * i), rnd1(e, CV + i))) for i in range(5)])
    if OPT['xl'] == 2:
        ldx()
    s2(6)
    if OPT['qt'] == 1:
        s(f"buffer_load_dword v{PF + 2}, v{vQ}, {sr(K.SRD_Q, 4)}, s{K.sWQ} offen", 'PF')
    if OPT['kt'] == -1:
        for op in touch_ops(K)[1:]:
            K.emit_op(s, op)
    for i in range(5):
        unpack(s, UT, WV + 4 * i, 4)
        if OPT['xl'] == 3 + i:
            ldx()
        c2 = (CV + i) & ~1
        o = (CV + i) & 1
        for e in range(0, 8, 2):
            if i == 0:
                s(f"v_pk_mul_f32 {vr(AC + e, 2)}, {vr(UT + e, 2)}, {vr(c2, 2)} op_sel:[0,{o}] op_sel_hi:[1,{o}]")
            else:
                s(f"v_pk_fma_f32 {vr(AC + e, 2)}, {vr(UT + e, 2)}, {vr(c2, 2)}, {vr(AC + e, 2)} op_sel:[0,{o},0] op_sel_hi:[1,{o},1]")
    s2(7)
    if OPT['qt'] == 0:
        s(f"buffer_load_dword v{PF + 2}, v{vQ}, {sr(K.SRD_Q, 4)}, s{K.sWQ} offen", 'PF')
    for e in range(4):
        s(f"v_permlane32_swap_b32 v{AC + e}, v{AC + 4 + e}")
    s(f"v_and_b32 v{vT}, 1, v1")
    for e in (0, 2):
        s(f"v_pk_add_f32 {vr(AC + e, 2)}, {vr(AC + e, 2)}, {vr(AC + 4 + e, 2)}")
    s(f"v_lshlrev_b32 v{vT}, 5, v{vT}")
    s(f"v_lshrrev_b32 v{vT + 1}, 4, v1")
    for e in range(2):
        s(f"v_permlane16_swap_b32 v{AC + e}, v{AC + 2 + e}")
    s(f"v_lshl_add_u32 v{vT}, v{vT + 1}, 3, v{vT}")
    s(f"v_pk_add_f32 {vr(AC, 2)}, {vr(AC, 2)}, {vr(AC + 2, 2)}")
    s("s_lshl_b32 s36, s3, 6")
    s(f"v_add_u32 v{vT}, s36, v{vT}")
    red(s, [AC, AC + 1], [], (2, 4, 8), False, False)
    s(f"ds_write_b64 v{vT}, {vr(AC, 2)} offset:{L_RED}")
    s(f"v_and_b32 v{vT + 1}, 7, v1")
    s(f"v_lshlrev_b32 v{vT + 1}, 3, v{vT + 1}")
    s("@lgkm 0")
    s("s_barrier")
    for w in range(4):
        s(f"ds_read_b64 {vr(AC + 2 * w, 2)}, v{vT + 1} offset:{L_RED + 64 * w}")
    s(f"s_add_u32 s{K.sTAG}, s{K.sEP}, 0x9e3779b9")
    s(f"v_mov_b32 v{UT + 1}, s{K.sTAG}")
    s(f"s_mov_b32 s37, {WS_GR}")
    s(f"v_pk_add_f32 {vr(AC, 2)}, {vr(AC, 2)}, {vr(AC + 2, 2)}")
    s(f"v_pk_add_f32 {vr(AC + 4, 2)}, {vr(AC + 4, 2)}, {vr(AC + 6, 2)}")
    s(f"v_pk_add_f32 {vr(AC, 2)}, {vr(AC, 2)}, {vr(AC + 4, 2)}")
    pack(s, UT, AC, 1)
    unpack(s, AC, UT, 1)
    s(f"v_add_f32 v{AC}, s93, v{AC}")
    s(f"v_add_f32 v{AC + 1}, s93, v{AC + 1}")
    pack(s, UT, AC, 1)
    s(f"buffer_store_dwordx2 {vr(UT, 2)}, v{vG}, {sr(SW, 4)}, s37 offen sc1")
    st(3)
    s2(8)
    if OPT['wl']:
        s("s_lshl_b32 s36, s5, 13")
        s(f"s_add_u32 s36, s36, {WS_HFLAG}")
        s("s_lshl_b32 s38, s4, 9")
        s("s_add_u32 s38, s38, s36")
        s("s_lshl_b32 s36, s3, 7")
        s("s_add_u32 s38, s38, s36")
        s("v_min_u32 v2, 1, v1")
        s("v_lshlrev_b32 v2, 31, v2")
        if OPT['wl'] == 1:
            s(f"buffer_store_dword v2, v2, {sr(SW, 4)}, s38 offen offset:4 sc1")
        else:
            s(f"buffer_load_dword v3, v2, {sr(SW, 4)}, s38 offen offset:4 sc1")
    G0, a0, a1, g0, g1 = WV, 122, 123, 124, 125
    s("s_mul_i32 s36, s3, 72")
    s(f"v_add_u32 v{a0}, s36, v1")
    s(f"v_and_b32 v{a1}, 7, v1")
    s("s_add_u32 s36, s36, 64")
    s(f"v_add_u32 v{a1}, s36, v{a1}")
    s(f"s_movk_i32 s36, {L_MOD}")
    for a_, d in ((a0, g0), (a1, g1)):
        s(f"v_and_b32 v{vT + 4}, 3, v{a_}")
        s(f"v_lshlrev_b32 v{vT + 4}, 4, v{vT + 4}")
        s(f"v_lshrrev_b32 v{a_}, 2, v{a_}")
        s(f"v_lshl_add_u32 v{d}, v{a_}, 7, v{vT + 4}")
        s(f"v_and_b32 v{vT + 5}, 1, v{a_}")
        s(f"v_lshl_add_u32 v{vT + 4}, v{vT + 5}, 3, v{vT + 4}")
        s(f"v_lshrrev_b32 v{a_}, 1, v{a_}")
        s(f"v_lshl_add_u32 v{a_}, v{a_}, 6, v{vT + 4}")
        s(f"v_add_u32 v{a_}, s36, v{a_}")

    def touch_a():
        s(f"buffer_load_dword v{PF + 2}, v{vQ}, {sr(K.SRD_Q, 4)}, s{K.sWQ} offen", 'PF')

    def poll_m():
        s(f"buffer_load_dwordx4 {vr(G0, 4)}, v{g0}, {sr(SW, 4)}, s37 offen {OPT['pm']}")
        s(f"buffer_load_dwordx4 {vr(G0 + 4, 4)}, v{g1}, {sr(SW, 4)}, s37 offen {OPT['pm']}")

    def check_m():
        for r in (1, 3, 5, 7):
            s(f"v_xor_b32 v{G0 + r}, s{K.sTAG}, v{G0 + r}")
        s(f"v_or3_b32 v{G0 + 1}, v{G0 + 1}, v{G0 + 3}, v{G0 + 5}")
        s(f"v_or_b32 v{G0 + 1}, v{G0 + 1}, v{G0 + 7}")
        s(f"v_cmp_ne_u32 vcc, 0, v{G0 + 1}")

    def early(n):
        if OPT['pp'] == n:
            poll_m()
            if OPT['qt'] == 4:
                touch_a()
    if OPT['tp'] in (0, 4):
        s("Lhead_tour:")
    unpack(s, X, XR, 12)
    early(0)
    if OPT['qt'] == 2:
        s(f"buffer_load_dword v{PF + 2}, v{vQ}, {sr(K.SRD_Q, 4)}, s{K.sWQ} offen", 'PF')
    m, v, t = vT, vT + 2, vT + 4

    def f_sum(acc, e, first):
        if e < 4:
            s(f"v_pk_add_f32 {vr(acc, 2)}, {vr(X + e, 2)}, {vr(X + e + 4, 2)}")
        elif e >= 8:
            s(f"v_pk_add_f32 {vr(acc, 2)}, {vr(acc, 2)}, {vr(X + e, 2)}")
    sum24(s, m, t, f_sum)
    red(s, [m], [t], (8, 4, 2, 1), True, False)
    s(f"v_mul_f32 v{m}, 0x3ae38e39, v{m}")
    early(1)
    for e in range(0, 24, 2):
        s(f"v_pk_add_f32 {vr(D + e, 2)}, {vr(X + e, 2)}, {vr(m, 2)} op_sel_hi:[1,0] neg_lo:[0,1] neg_hi:[0,1]")

    def f_sq(acc, e, first):
        if first:
            s(f"v_pk_mul_f32 {vr(acc, 2)}, {vr(D + e, 2)}, {vr(D + e, 2)}")
        else:
            s(f"v_pk_fma_f32 {vr(acc, 2)}, {vr(D + e, 2)}, {vr(D + e, 2)}, {vr(acc, 2)}")
    sum24(s, v, t, f_sq)
    s(f"v_cndmask_b32 v{v}, 0, v{v}, vcc")
    red(s, [v], [t], (8, 4, 2, 1), True, False)
    s(f"v_mul_f32 v{v}, 0x3ae38e39, v{v}")
    early(2)
    s(f"v_cvt_pk_bf16_f32 v{t}, v{m}, v{v}")
    s(f"v_and_b32 v{v}, 0xffff0000, v{t}")
    s(f"v_lshlrev_b32 v{m}, 16, v{t}")
    s(f"v_add_f32 v{v}, 0x3727c5ac, v{v}")
    rnd1(s, v)
    s(f"v_sqrt_f32 v{v}, v{v}")
    for e in range(0, 24, 2):
        s(f"v_pk_add_f32 {vr(D + e, 2)}, {vr(X + e, 2)}, {vr(m, 2)} op_sel_hi:[1,0] neg_lo:[0,1] neg_hi:[0,1]")
    rnd1(s, v)
    s(f"v_rcp_f32 v{v}, v{v}")
    pack(s, XR, D, 12)
    unpack(s, D, XR, 12)
    for e in range(0, 24, 2):
        s(f"v_pk_mul_f32 {vr(D + e, 2)}, {vr(D + e, 2)}, {vr(v, 2)} op_sel_hi:[1,0]")
    pack(s, XR, D, 12)
    unpack(s, D, XR, 12)
    if OPT['qt'] == 3:
        s(f"buffer_load_dword v{PF + 2}, v{vQ}, {sr(K.SRD_Q, 4)}, s{K.sWQ} offen", 'PF')
    for c in range(OPT['nq0']):
        for op in K.wq_tile(c, 0) + K.wq_tile(c, 1):
            K.emit_op(s, op)
    if OPT['tp'] == 2:
        s("Lhead_tour:")
    s(f"s_mov_b32 s38, {SPIN}")
    st(4)
    if OPT['pp'] >= 0:
        check_m()
        s("s_cbranch_vccz Lhead_gotm")
    s("Lhead_pollm:")
    s("@hide")
    poll_m()
    s("s_waitcnt vmcnt(0)")
    s("s_sub_u32 s38, s38, 1")
    s("s_cbranch_scc1 Lhead_gotm")
    check_m()
    s("s_cbranch_vccnz Lhead_pollm")
    s("@show")
    s("Lhead_gotm:")
    if OPT['qt'] == 5:
        touch_a()
    s(f"ds_write2_b32 v{a0}, v{G0}, v{G0 + 2} offset0:0 offset1:1")
    s(f"ds_write2_b32 v{a1}, v{G0 + 4}, v{G0 + 6} offset0:0 offset1:1")
    s("@lgkm 0")
    s("s_barrier")
    st(5)
    for i in range(3):
        s(f"ds_read_b128 {vr(X + 4 * i, 4)}, v{vM} offset:{L_MOD + 1152 + 384 * i}")
        s(f"ds_read_b128 {vr(X + 12 + 4 * i, 4)}, v{vM} offset:{L_MOD + 384 * i}")
    for i in range(3):
        unpack(s, C1 + 8 * i, X + 4 * i, 4)
        for e in range(8 * i, 8 * i + 8, 2):
            s(f"v_pk_mul_f32 {vr(D + e, 2)}, {vr(D + e, 2)}, {vr(C1 + e, 2)}")
        pack(s, XR + 4 * i, D + 8 * i, 4)
        unpack(s, SA + 8 * i, X + 12 + 4 * i, 4)
        unpack(s, D + 8 * i, XR + 4 * i, 4)
        for e in range(8 * i, 8 * i + 8, 2):
            s(f"v_pk_add_f32 {vr(D + e, 2)}, {vr(D + e, 2)}, {vr(SA + e, 2)}")
        pack(s, XR + 4 * i, D + 8 * i, 4)
        s(f"buffer_store_dwordx4 {vr(XR + 4 * i, 4)}, v{vP}, {sr(SW, 4)}, s92 offen offset:{768 * i} sc1", 'HS')
    if OPT['tp'] == 3:
        s("Lhead_tour:")
    if OPT['tp'] == 4:
        s("Lhead_tour2:")
    s("s_lshl_b32 s36, s5, 13")
    s(f"s_add_u32 s36, s36, {WS_HFLAG}")
    s("s_lshl_b32 s37, s4, 9")
    s("s_add_u32 s37, s37, s36")
    s("s_lshl_b32 s38, s3, 7")
    s("s_add_u32 s37, s37, s38")
    s("s_lshl_b32 s38, s3, 11")
    s("s_add_u32 s36, s36, s38")
    s(f"v_min_u32 v{vT}, 1, v1")
    s(f"v_lshlrev_b32 v{vT}, 31, v{vT}")
    s(f"v_and_b32 v{vT + 1}, 15, v1")
    s(f"v_lshlrev_b32 v{vT + 1}, 7, v{vT + 1}")
    s("v_cmp_gt_u32 vcc, 162, v0")
    for e in range(4):
        s(f"v_mov_b32 v{WV + e}, -1")
    s("s_mul_i32 s39, s2, 2592")
    s(f"s_add_u32 s39, s39, {WS_Y}")
    s(f"v_lshl_add_u32 v{vT + 2}, v0, 4, s39")
    s("s_lshl_b32 s39, s2, 7")
    s(f"s_add_u32 s39, s39, {WS_KEY}")
    s(f"v_mov_b32 v{vT + 3}, s39")
    s(f"v_cndmask_b32 v{vT + 2}, v{vT + 3}, v{vT + 2}, vcc")
    s("s_lshl_b32 s92, s5, 13")
    s(f"s_add_u32 s92, s92, {WS_FLAG}")
    s("s_add_u32 s92, s92, s38")
    s("s_lshl_b32 s38, s4, 7")
    s("s_add_u32 s92, s92, s38")
    s("s_getreg_b32 s38, hwreg(HW_REG_XCC_ID, 0, 4)")
    s("s_lshl_b32 s38, s38, 28")
    s(f"s_xor_b32 s38, s38, s{K.sTAG}")
    s(f"v_mov_b32 v{vT + 4}, s38")
    for i in range(5):
        s(f"v_mov_b32 v{K.MC + i}, v{CV + i}")
    s(f"v_mov_b32 v{K.MW}, v{vW}")
    if OPT['fl'] & 2:
        s("v_and_b32 v126, 31, v1")
        s("v_lshlrev_b32 v126, 2, v126")
    qops = [op for c in range(OPT['nq0'], OPT['nq2']) for op in K.wq_tile(c, 0) + K.wq_tile(c, 1)]
    for op in qops[:OPT['na']]:
        K.emit_op(s, op)
    s("@vm HS")
    s(f"buffer_store_dword v{UT + 1}, v{126 if OPT['fl'] & 2 else vT}, {sr(SW, 4)}, s37 offen sc1")
    st(6)
    if OPT['kt'] == -2:
        for op in touch_ops(K)[1:]:
            K.emit_op(s, op)
    for op in qops[OPT['na']:]:
        if op is qops[-8] and OPT['nq2'] == 5:
            s("s_barrier")
        K.emit_op(s, op)
    if OPT['tp'] == 1:
        s("Lhead_tour:")
    assert nA >= OPT['nq2']
    st(7)
    if OPT['sv']:
        for c in range(3):
            for op in K.h_loads(c):
                K.emit_op(s, op)
        return
    s(f"s_mov_b32 s38, {SPIN}")
    s("Lhead_pollh:")
    s(h_poll(K))
    s("s_sub_u32 s38, s38, 1")
    s("s_cbranch_scc1 Lhead_goth")
    s("@drain")
    s(f"v_cmp_ne_u32 vcc, s{K.sTAG}, v{vT + 3}")
    s("s_cbranch_vccnz Lhead_pollh")
    s("Lhead_goth:")
    s("@drain")
    st(8)
    for c in range(1):
        for op in K.h_loads(c):
            K.emit_op(s, op)


def h_poll(K):
    return f"buffer_load_dword v{vT + 3}, v{vT + 1}, {sr(K.SRD_H, 4)}, s36 offen {OPT['ph']}"


def h_probe(K):
    o = [f"{K.M16} v[96:99], {vr(K.ONES, 4)}, {ar(K.HF + 4 * f, 4)}, {'0' if f == 0 else 'v[96:99]'}" for f in range(12)]
    return o + ["v_cmp_u_f32 vcc, v96, v96"]


def cold(a, K):
    if not OPT['sv']:
        return
    a("Lhead_again:")
    a(f"s_mov_b32 s38, {SPIN_NAN}")
    a("Lhead_againl:")
    for c in range(3):
        for op in K.h_loads(c):
            a(op[1])
    a("s_waitcnt vmcnt(0)")
    p = h_probe(K)
    for x in p[:-1]:
        a(x)
    a("s_sub_u32 s38, s38, 1")
    a("s_nop 7")
    a(p[-1])
    a("s_cbranch_scc1 Lhead_valid")
    a("s_cbranch_vccnz Lhead_againl")
    a("s_branch Lhead_valid")
    a("Lhead_hspin:")
    a(f"s_mov_b32 s38, {SPIN}")
    a("Lhead_hspinl:")
    a(h_poll(K))
    a("s_waitcnt vmcnt(0)")
    a(f"v_cmp_ne_u32 vcc, s{K.sTAG}, v{vT + 3}")
    a("s_sub_u32 s38, s38, 1")
    a("s_cbranch_scc1 Lhead_goth")
    a("s_cbranch_vccnz Lhead_hspinl")
    a("s_branch Lhead_goth")


def touch_ops(K):
    ops = [f"buffer_load_dword v{vT + 5}, v{vQ2}, {sr(K.SRD_Q, 4)}, s{K.sWQ} offen"]
    if True:
        ops += [f"buffer_load_dword v{vT + 6}, v{vK}, {sr(K.SRD_K, 4)}, 0 offen",
                f"buffer_load_dword v{vT + 7}, v{vV}, {sr(K.SRD_V, 4)}, 0 offen"]
    return [([], t, 'PF', []) for t in ops]


def arm_ops(K):
    SW = K.SRD_H
    ops = [f"buffer_store_dword v{vT + 4}, v{vT}, {sr(SW, 4)}, s92 offen offset:12 sc1",
           f"buffer_store_dwordx4 {vr(WV, 4)}, v{vT + 2}, {sr(SW, 4)}, 0 offen sc1"]
    return [([], t, 'ARM', []) for t in ops]
```

```python
import sys, os
sys.path.insert(0, os.path.dirname(os.path.abspath(__file__)))
from dsl import *
import attn


DOC = """; Generated by gen/gen.py (hand-written generator: gen/head.py, gen/attn.py, gen/tail.py, gen/sched.py).
;
; One launch, 256 workgroups x 4 waves, one workgroup per CU (all co-resident). Workgroup = (kv head, 128 tokens).
; Hand-offs are write-through stores followed by a flag, or words armed with a NaN pattern inside this launch. Flags
; carry a tag derived from a counter in d_ws (only there to tell them from an earlier launch's); d_debug[0] counts
"""


def add_timeline(body, idx, name):
    lines = body.split('\n')
    end = f"L{name}_end:"
    epi = f"""    s_waitcnt vmcnt(0)
    s_memrealtime s[92:93]
    s_load_dwordx2 s[84:85], s[0:1], {KA['ws']}
    s_mov_b64 exec, -1
    v_mov_b32 v1, 0
    s_waitcnt lgkmcnt(0)
    s_add_u32 s84, s84, {WS_STAMP + 65536 + idx * 4096}
    s_addc_u32 s85, s85, 0
    s_mov_b32 s86, 4096
    s_mov_b32 s87, 0x20000
    s_lshl_b32 s88, s2, 3
    v_mov_b32 v2, s100
    v_mov_b32 v3, s92
    buffer_store_dwordx2 v[2:3], v1, s[84:87], s88 offen
    s_endpgm"""
    i = next(k for k, l in enumerate(lines) if l.strip() == 's_endpgm')
    lines[i] = epi
    if OPT['fine'] == 8:
        j = next(k for k, l in enumerate(lines) if l.strip() == 's_waitcnt lgkmcnt(0)')
        lines.insert(j + 1, "    s_memrealtime s[100:101]")
        return '\n'.join(lines)
    return "    s_memrealtime s[100:101]\n" + '\n'.join(lines)


def build(diag=False):
    ks = []
    for name, fn in ((NAME, lambda: attn.k_attn(diag)),):
        r = fn()
        if len(r) > 3:
            print(name, r[3], file=sys.stderr)
        body = r[0]
        if diag or OPT['tl']:
            body = add_timeline(body, len(ks), name)
        ks.append((name + '_kernel', body, r[1], r[2]))
    ref = open(os.path.join(os.path.dirname(os.path.abspath(__file__)), '..', NAME + '.s.ref')).read()
    head = [l for l in ref.split('\n') if l.startswith(';') and 'launch' not in l.replace('launch list', '').replace('later launches', '') and 'grid=' not in l]
    out = '\n'.join(head) + '\n'
    out += DOC
    for label, _, _, g in ks:
        out += f"; @launch {'kernel=' + label + ' ' if len(ks) > 1 or diag else ''}grid=({g['grid']},1,1) block=({g['block']},1,1) lds={g['lds']}\n"
    out += '.amdgcn_target "amdgcn-amd-amdhsa--gfx950"\n.text\n'
    for label, body, _, _ in ks:
        out += kernel_text(label, body)
    out += '.section .rodata,"a"\n'
    for label, _, nv, _ in ks:
        out += kd_text(label, nv, min(256, (nv + 3) // 4 * 4))
    return out


if __name__ == '__main__':
    diag = '--diag' in sys.argv
    for x in sys.argv[1:]:
        if x.startswith('--') and '=' in x:
            k, v = x[2:].split('=')
            assert k in OPT, k
            OPT[k] = type(OPT[k])(v.replace('+', ' '))
    dst = [x for x in sys.argv[1:] if not x.startswith('--')]
    dst = dst[0] if dst else os.path.join(os.path.dirname(os.path.abspath(__file__)), '..', NAME + '.s')
    open(dst, 'w').write(build(diag))
```
